```python
import torch

def _softmax(x, axis=-1):
    return torch.softmax(x, dim=axis)
def _gelu(x):
    return torch.nn.functional.gelu(x, approximate="tanh")
def _silu(x):
    return torch.nn.functional.silu(x)
def _sigmoid(x):
    return torch.sigmoid(x)
def _layernorm(x, axis=-1, eps=1e-5):
    m = x.mean(dim=axis, keepdim=True)
    v = x.var(dim=axis, keepdim=True, unbiased=False)
    return (x - m) / torch.sqrt(v + eps)
def _scatter_add(tgt, idx, src, axis=0):
    return tgt.clone().index_add_(axis, idx, src)
def _segment_sum(src, seg, n):
    out = torch.zeros((n,) + src.shape[1:], dtype=src.dtype)
    return out.index_add_(0, seg, src)
def _pad(x, pw):
    flat = tuple(v for pair in reversed(pw) for v in pair)
    return torch.nn.functional.pad(x, flat)

kernel_name = 'sequential_preLN__linear_attn_block__mixer_channel_mlp__prompt'

def setup_inputs():

    _w = (lambda a: (lambda t: t.to(torch.bfloat16) if t.is_floating_point() else t)(torch.as_tensor(a)))
    def _A_setup():
        B, S, D = 1, 2048, 640
        return {
            "x": _w((lambda *s: torch.randn(*s, dtype=torch.bfloat16) * 0.05)(B, S, D)),
            "wqkv": _w((lambda *s: torch.randn(*s, dtype=torch.bfloat16) * 0.1)(D, 3 * D)),
            "wo": _w((lambda *s: torch.randn(*s, dtype=torch.bfloat16) * 0.05)(D, D)),
        }
    _A_in = _A_setup()

    def _B_setup():
        B, S, D, F = 1, 2048, 640, 1728
        return {
            "x": _w((lambda *s: torch.randn(*s, dtype=torch.bfloat16) * 0.05)(B, S, D)),
            "w1": _w((lambda *s: torch.randn(*s, dtype=torch.bfloat16) * 3.2)(D, F) * (D ** -0.5)),
            "b1": _w((lambda *s: torch.randn(*s, dtype=torch.bfloat16) * 0.8)(F)),
            "w2": _w((lambda *s: torch.randn(*s, dtype=torch.bfloat16) * 0.05)(F, D) * (F ** -0.5)),
            "b2": _w((lambda *s: torch.randn(*s, dtype=torch.bfloat16) * 0.05)(D)),
        }
    _B_in = _B_setup()

    return {
        "A_x": _A_in["x"],
        "A_wqkv": _A_in["wqkv"],
        "A_wo": _A_in["wo"],
        "B_x": _B_in["x"],
        "B_w1": _B_in["w1"],
        "B_b1": _B_in["b1"],
        "B_w2": _B_in["w2"],
        "B_b2": _B_in["b2"],
    }

def reference(A_x, A_wqkv, A_wo, B_x, B_w1, B_b1, B_w2, B_b2):
    def _A_ref(x, wqkv, wo):
        B, S, D = x.shape
        H = 32; Dh = D // H
        qkv = (lambda x, *d: x.permute(*d))((x @ wqkv).reshape(B, S, 3, H, Dh), 2, 0, 3, 1, 4)
        q, k, v = qkv[0], qkv[1], qkv[2]
        phi = lambda t: torch.where(t > 0, t + 1, torch.exp(t)) + 1e-6
        pq, pk = phi(q), phi(k)
        kv = torch.einsum("bhsd,bhse->bhde", pk, v)
        z = torch.einsum("bhsd->bhd", pk)
        num = torch.einsum("bhqd,bhde->bhqe", pq, kv)
        den = torch.einsum("bhqd,bhd->bhq", pq, z)[..., None] + 1e-6
        o = num / den
        return (lambda x, *d: x.permute(*d))(o, 0, 2, 1, 3).reshape(B, S, D) @ wo

    def _B_ref(x, w1, b1, w2, b2):
        y = _layernorm(x, axis=-1)
        h = _gelu(torch.einsum("bsd,df->bsf", y, w1) + b1)
        return torch.einsum("bsf,fd->bsd", h, w2) + b2

    x = A_x
    h = x + _A_ref(_layernorm(x, axis=-1), A_wqkv, A_wo)
    h2 = h + _B_ref(_layernorm(h, axis=-1), B_w1, B_b1, B_w2, B_b2)
    return h2
```

```python
import re

REG_RE = re.compile(r'(?<![\w.])([vas])(?:(\d+)(?![\w\[])|\[(\d+):(\d+)\])')

def regs_of(op):
    out = set()
    op = op.strip()
    neg = op
    for m in REG_RE.finditer(op):
        k = m.group(1)
        if m.group(2) is not None:
            out.add((k, int(m.group(2))))
        else:
            for i in range(int(m.group(3)), int(m.group(4)) + 1):
                out.add((k, i))
    if re.search(r'\bvcc\b', op): out |= {('s', 'vcc')}
    if re.search(r'\bexec\b', op): out |= {('s', 'exec')}
    if re.search(r'\bm0\b', op): out |= {('s', 'm0')}
    return out

TRANS = ('v_exp_f32', 'v_log_f32', 'v_rcp_f32', 'v_rsq_f32', 'v_sqrt_f32', 'v_sin_f32', 'v_cos_f32')

class Ins:
    __slots__ = ('text', 'mn', 'ops', 'kind', 'defs', 'uses', 'A', 'B', 'C', 'data', 'label', 'target', 'states', 'passes', 'dpp')
    def __init__(self, text):
        self.text = text
        t = text.split(';')[0].strip()
        self.label = None; self.target = None
        self.defs = set(); self.uses = set(); self.A = self.B = self.C = set(); self.data = set()
        self.states = 1; self.passes = 0; self.dpp = False
        if t.endswith(':'):
            self.kind = 'label'; self.label = t[:-1]; self.mn = ''; self.ops = []; self.states = 0
            return
        if t == '' or t.startswith('.'):
            self.kind = 'dir'; self.mn = ''; self.ops = []; self.states = 0
            return
        parts = t.split(None, 1)
        mn = parts[0]; self.mn = mn
        rest = parts[1] if len(parts) > 1 else ''
        ops = []; cur = ''; d = 0
        for ch in rest:
            if ch == '[': d += 1
            if ch == ']': d -= 1
            if ch == ',' and d == 0:
                ops.append(cur.strip()); cur = ''
            else:
                cur += ch
        if cur.strip(): ops.append(cur.strip())
        mods = ''
        if ops:
            sp = ops[-1].split(None, 1)
            if len(sp) > 1:
                ops[-1] = sp[0]; mods = sp[1]
        self.ops = ops
        R = [regs_of(o) for o in ops]
        U = lambda l: set().union(*l) if l else set()
        if mn.startswith('v_mfma'):
            self.kind = 'mfma'
            self.defs = R[0]; self.A = R[1]; self.B = R[2]; self.C = R[3]; self.uses = U(R[1:])
            self.passes = 8 if '32x32x16' in mn else (4 if '16x16x32' in mn else None)
            assert self.passes, mn
        elif mn.startswith('v_'):
            self.kind = 'valu'
            self.dpp = ('dpp' in mn) or ('row_' in mods) or ('quad_perm' in mods)
            if mn.startswith('v_cmp'):
                self.defs = R[0]; self.uses = U(R[1:])
                if mn.startswith('v_cmpx'): self.defs |= {('s', 'exec')}
            elif 'permlane' in mn and 'swap' in mn:
                self.defs = R[0] | R[1]; self.uses = R[0] | R[1]
            elif re.match(r'v_(add|sub|subrev|addc|subb)_co_', mn):
                self.defs = R[0] | R[1]; self.uses = U(R[2:])
            else:
                self.defs = R[0]; self.uses = U(R[1:])
                if mn.startswith(('v_fmac', 'v_dot2c', 'v_pk_fmac')) or self.dpp or 'sdwa' in mn:
                    self.uses |= R[0]
                if mn.startswith('v_cndmask') and len(ops) == 3:
                    self.uses |= {('s', 'vcc')}
        elif mn.startswith('ds_'):
            self.kind = 'ds'
            if mn.startswith(('ds_read', 'ds_bpermute', 'ds_permute', 'ds_swizzle')) or '_rtn' in mn:
                self.defs = R[0]; self.uses = U(R[1:])
            else:
                self.uses = U(R); self.data = U(R[1:])
        elif mn.startswith(('buffer_', 'global_')):
            self.kind = 'vmem'
            if mn in ('buffer_wbl2', 'buffer_inv'):
                pass
            elif ' lds' in (' ' + mods) or 'load_lds' in mn:
                self.uses = U(R) | {('s', 'm0')}
            elif 'load' in mn:
                self.defs = R[0]; self.uses = U(R[1:])
            elif mn.startswith('buffer_'):
                self.uses = U(R); self.data = R[0]
                if 'atomic' in mn and 'sc0' in mods: self.defs = R[0]
            else:
                if 'atomic' in mn and 'sc0' in mods:
                    self.defs = R[0]; self.uses = U(R[1:]); self.data = R[2]
                else:
                    self.uses = U(R); self.data = R[1]
        elif mn.startswith('s_'):
            self.kind = 'salu'
            if mn == 's_nop':
                self.states = int(ops[0], 0) + 1
            elif mn in ('s_branch',) or mn.startswith('s_cbranch'):
                self.kind = 'branch'; self.target = ops[0]
            elif mn.startswith(('s_cmp', 's_bitcmp', 's_waitcnt', 's_barrier', 's_setprio', 's_sleep', 's_endpgm', 's_setreg')):
                self.uses = U(R)
            elif mn.startswith(('s_load', 's_memtime', 's_memrealtime', 's_getpc', 's_getreg')):
                self.kind = 'smem' if not mn.startswith(('s_getpc', 's_getreg')) else 'salu'
                self.defs = R[0]; self.uses = U(R[1:])
            else:
                self.defs = R[0]; self.uses = U(R[1:])
                if 'saveexec' in mn: self.defs = self.defs | {('s', 'exec')}
        else:
            raise ValueError('unknown instruction ' + text)

def isv(r): return r[0] in 'va'

def need(p, c):
    n = 0
    pv = {r for r in p.defs if isv(r)}
    ps = {r for r in p.defs if not isv(r)}
    if p.kind == 'valu':
        if c.kind == 'mfma' and pv & c.uses: n = max(n, 2)
        if c.kind == 'mfma' and ('s', 'exec') in ps: n = max(n, 4)
        if c.kind == 'vmem' and ps & c.uses: n = max(n, 5)
        if c.kind == 'valu':
            if ps & c.uses:
                n = max(n, 4 if c.mn.startswith(('v_readlane', 'v_writelane')) else 2)
            if c.mn.startswith(('v_readfirstlane', 'v_readlane')) and pv & c.uses: n = max(n, 1)
            if 'permlane' in c.mn and pv & c.uses: n = max(n, 2)
            if c.dpp and pv & c.uses: n = max(n, 2)
            if c.dpp and ('s', 'exec') in ps: n = max(n, 5)
            if p.mn.startswith(TRANS) and pv & (c.uses | c.defs) and not c.mn.startswith(TRANS): n = max(n, 1)
            if ('sdwa' in p.mn or 'op_sel' in p.text and not p.mn.startswith('v_pk')) and pv & (c.uses | c.defs): n = max(n, 1)
        if c.kind in ('salu', 'branch', 'smem') and ps & c.uses: n = max(n, 1)
        if p.mn.startswith(TRANS) and c.kind in ('vmem', 'ds', 'mfma') and pv & c.uses: n = max(n, 2 if c.kind == 'mfma' else 1)
    if p.kind == 'salu' and ('s', 'm0') in ps and c.kind == 'vmem' and ('s', 'm0') in c.uses: n = max(n, 1)
    if p.kind == 'mfma':
        big = {4: 8, 8: 12}[p.passes]; ovl = {4: 6, 8: 10}[p.passes]; war = {4: 3, 8: 7}[p.passes]
        if c.kind == 'mfma':
            if pv & (c.A | c.B): n = max(n, big)
            if pv & c.C and not (c.C == pv and c.passes == p.passes): n = max(n, ovl)
            if pv & c.defs and not (c.C == pv): n = max(n, ovl)
        elif c.kind in ('valu', 'vmem', 'ds'):
            if pv & (c.uses | c.defs): n = max(n, big)
            if p.C & c.defs: n = max(n, war)
    if p.kind == 'vmem' and len(p.data) >= 3 and p.data & c.defs:
        n = max(n, 2 if c.kind == 'valu' else 1)
    return n

WIN = 14

class Asm:
    def __init__(self):
        self.ins = []
    def __call__(self, text):
        for line in text.split('\n'):
            line = line.strip()
            if not line or line.startswith(';'):
                if line: self.ins.append(Ins('.; ' + line)); self.ins[-1].text = line
                continue
            self.ins.append(Ins(line))
    def label(self, name): self(name + ':')

    def _req(self, before, c):
        dist = 0; req = 0
        for p in reversed(before):
            if dist >= WIN: break
            if p.states:
                k = need(p, c)
                if k > dist: req = max(req, k - dist)
                dist += p.states
        return req

    def finalize(self):
        out = []
        for c in self.ins:
            if c.states:
                win = []
                for p in reversed(out):
                    if p.mn in ('s_branch', 's_endpgm'): break
                    win.append(p)
                    if len(win) > 3 * WIN: break
                win.reverse()
                r = self._req(win, c)
                while r > 0:
                    k = min(r, 16)
                    out.append(Ins(f's_nop {k-1}')); r -= k
            out.append(c)
        lab = {c.label: i for i, c in enumerate(out) if c.kind == 'label'}
        for i, c in enumerate(out):
            if c.kind == 'branch':
                j = lab[c.target]
                pre = []
                for p in reversed(out[:i + 1]):
                    if p is not c and p.mn in ('s_branch', 's_endpgm'): break
                    pre.append(p)
                    if len(pre) > 3 * WIN: break
                pre.reverse()
                post = []
                for q in out[j:j + 3 * WIN]:
                    if q.states:
                        r = self._req(pre + post, q)
                        assert r == 0, f'hazard across branch {c.text} -> {q.text} needs {r} more'
                    post.append(q)
                    if q.mn in ('s_branch', 's_endpgm'): break
        self.out = out
        return '\n'.join((c.text if c.kind in ('label', 'dir') else '  ' + c.text) for c in out) + '\n'
```

```python
import sys, math
sys.path.insert(0, 'gen')
from asmlib import Asm

NAME = 'sequential_preLN__linear_attn_block__mixer_channel_mlp__prompt'

OFF_KV = 0
OFF_C1 = 65536
OFF_C2 = 98304
OFF_C3 = 100352
ZBYTES = 102400
OFF_PQ = 1 << 20
OFF_H = 5 << 20
OFF_HST = 8 << 20
OFF_G = 9 << 20
OFF_TS = 24 << 20
WS_REC = 32 << 20

LOG2E = 1.4426950408889634
import struct
def f2u(x): return struct.unpack('<I', struct.pack('<f', x))[0]
def fhex(x): return '0x%08x' % f2u(x)

class VA:
    def __init__(self, start, limit=256):
        self.cur = start; self.limit = limit; self.hi = start
    def a(self, n=1, al=1):
        self.cur = (self.cur + al - 1) // al * al
        r = self.cur; self.cur += n
        assert self.cur <= self.limit, 'out of VGPRs'
        self.hi = max(self.hi, self.cur)
        return r
    def mark(self): return self.cur
    def reset(self, m): self.cur = m

def v(r, n=1): return f'v{r}' if n == 1 else f'v[{r}:{r+n-1}]'
def s(r, n=1): return f's{r}' if n == 1 else f's[{r}:{r+n-1}]'

class VM:
    def __init__(self, a): self.a = a; self.q = []
    def op(self, text, tag=None):
        self.a(text); self.q.append(tag)
    def wait(self, tag):
        idx = max(i for i, t in enumerate(self.q) if t == tag)
        n = len(self.q) - 1 - idx
        assert n <= 63
        self.a(f's_waitcnt vmcnt({n})')
        self.q = self.q[idx + 1:]
    def waitall(self):
        self.a('s_waitcnt vmcnt(0)'); self.q = []
    def has(self, tag): return tag in self.q

P_X, P_WQKV, P_WO, P_BX, P_W1, P_B1, P_W2, P_B2, P_OUT, P_DBG, P_WS = range(4, 26, 2)
S_W = 26; S_RT1 = 27; S_HP = 28; S_GRP = 29; S_MEM = 30; S_CT = 31
R_X = 32; R_WQ = 36; R_WO = 40; R_W1 = 44; R_W2 = 48; R_WS = 52; R_OUT = 56; R_DBG = 60; R_B1 = 64; R_B2 = 68
T0 = 72
M_A = 90; M_B = 92; M_C = 94; M_D = 96
S_TS = 98

def srd(a, r, ptr, add, nrec):
    if add is None:
        a(f's_mov_b32 {s(r)}, {s(ptr)}\ns_mov_b32 {s(r+1)}, {s(ptr+1)}')
    else:
        a(f's_add_u32 {s(r)}, {s(ptr)}, {add}\ns_addc_u32 {s(r+1)}, {s(ptr+1)}, 0')
    a(f's_mov_b32 {s(r+2)}, {nrec}\ns_mov_b32 {s(r+3)}, 0x20000')

def mask64(a, r, val):
    a(f's_mov_b32 {s(r)}, 0x{val & 0xffffffff:08x}\ns_mov_b32 {s(r+1)}, 0x{val >> 32:08x}')

def lanemask(f):
    m = 0
    for l in range(64):
        if f(l): m |= 1 << l
    return m

MF = 'v_mfma_f32_16x16x32_bf16'

def gen(stop_after=4, ts=False):
    a = Asm()
    va = VA(1)
    vL = va.a(); vL16 = va.a(); vDW = va.a(5); vONE = va.a(4, 4)
    vHR = va.a(6, 2)
    vXR = va.a(6, 2)
    vTmp = va.a(8, 4)
    vRO = va.a()
    base_mark = va.mark()
    tsn = [0]
    def stamp():
        if not ts: return
        i = tsn[0]; tsn[0] += 1
        a(f's_memtime {s(S_TS,2)}\ns_waitcnt lgkmcnt(0)\nv_mov_b32 {v(vTmp)}, {s(S_TS)}')
        a(f's_lshl_b32 {s(S_TS)}, s2, 3\ns_add_u32 {s(S_TS)}, {s(S_TS)}, {s(S_W)}\ns_lshl_b32 {s(S_TS)}, {s(S_TS)}, 7\ns_add_u32 {s(S_TS)}, {s(S_TS)}, {OFF_TS + 4*i}')
        a(f'v_mov_b32 {v(vTmp+1)}, 0\ns_mov_b64 exec, 1\nbuffer_store_dword {v(vTmp)}, {v(vTmp+1)}, {s(R_WS,4)}, {s(S_TS)} offen\ns_mov_b64 exec, -1')

    a(f'''s_cmp_ge_u32 s2, 256
s_cbranch_scc1 L_end
s_load_dwordx16 s[4:19], s[0:1], 0
s_load_dwordx4 s[20:23], s[0:1], 64
s_load_dwordx2 s[24:25], s[0:1], 80
v_lshrrev_b32 {v(vTmp)}, 6, v0
v_and_b32 {v(vL)}, 63, v0
v_readfirstlane_b32 {s(S_W)}, {v(vTmp)}
s_and_b32 {s(T0)}, s2, 7
s_lshr_b32 {s(T0+1)}, s2, 3
s_and_b32 {s(S_RT1)}, {s(T0)}, 3
s_lshl_b32 {s(S_RT1)}, {s(S_RT1)}, 2
s_and_b32 {s(T0+2)}, {s(T0+1)}, 3
s_add_u32 {s(S_RT1)}, {s(S_RT1)}, {s(T0+2)}
s_lshr_b32 {s(S_HP)}, {s(T0)}, 2
s_lshl_b32 {s(S_HP)}, {s(S_HP)}, 3
s_lshr_b32 {s(T0+3)}, {s(T0+1)}, 2
s_add_u32 {s(S_HP)}, {s(S_HP)}, {s(T0+3)}
s_lshl_b32 {s(S_GRP)}, {s(T0)}, 1
s_and_b32 {s(T0+4)}, {s(T0+1)}, 1
s_add_u32 {s(S_GRP)}, {s(S_GRP)}, {s(T0+4)}
s_lshr_b32 {s(S_MEM)}, {s(T0+1)}, 1
s_and_b32 {s(S_CT)}, {s(S_MEM)}, 7
v_lshlrev_b32 {v(vL16)}, 4, {v(vL)}''')
    S_CH = T0 + 5
    a(f'''s_mul_i32 {s(S_CH)}, {s(T0+2)}, 3
s_add_u32 {s(S_CH)}, {s(S_CH)}, {s(T0+3)}
s_cmp_ge_u32 {s(S_CH)}, 10
s_cselect_b32 {s(T0+6)}, 10, 0
s_sub_u32 {s(S_CH)}, {s(S_CH)}, {s(T0+6)}''')

    vX0 = va.a(); vX1 = va.a(); vWq = va.a(); vWk = va.a(); vWv = va.a()
    t0, t1, t2, t3 = vTmp, vTmp+1, vTmp+2, vTmp+3
    a(f'''v_lshrrev_b32 {v(t0)}, 3, {v(vL)}
v_and_b32 {v(t1)}, 7, {v(vL)}
v_lshrrev_b32 {v(t2)}, 4, {v(vL)}
s_lshl_b32 {s(T0+6)}, {s(S_W)}, 4
v_add_u32 {v(t3)}, {s(T0+6)}, {v(t0)}
v_mul_u32_u24 {v(t3)}, 1280, {v(t3)}
v_xor_b32 {v(vX0)}, {v(t1)}, {v(t2)}
v_lshl_add_u32 {v(vX0)}, {v(vX0)}, 4, {v(t3)}
v_xor_b32 {v(vX1)}, 64, {v(vX0)}
v_add_u32 {v(vX1)}, {8*1280-1024}, {v(vX1)}
s_lshl_b32 {s(T0+6)}, {s(S_W)}, 3
v_add_u32 {v(t3)}, {s(T0+6)}, {v(t0)}
v_mul_u32_u24 {v(t3)}, 3840, {v(t3)}
v_and_b32 {v(t2)}, 1, {v(t2)}
s_and_b32 {s(T0+6)}, {s(S_W)}, 1
s_lshl_b32 {s(T0+6)}, {s(T0+6)}, 1
v_or_b32 {v(t2)}, {s(T0+6)}, {v(t2)}
v_lshlrev_b32 {v(t2)}, 1, {v(t2)}
v_xor_b32 {v(t1)}, {v(t1)}, {v(t2)}
v_lshl_add_u32 {v(vWq)}, {v(t1)}, 4, {v(t3)}
v_add_u32 {v(vWk)}, 1280, {v(vWq)}
v_xor_b32 {v(vWv)}, 16, {v(vWq)}
v_add_u32 {v(vWv)}, 2560, {v(vWv)}
s_mul_i32 {s(T0+6)}, {s(S_RT1)}, 163840
s_mul_i32 {s(T0+7)}, {s(S_HP)}, 80
s_and_b32 {s(T0+7)}, {s(T0+7)}, 0xffffffc0
s_sub_u32 {s(T0+8)}, 2457600, {s(T0+7)}
s_waitcnt lgkmcnt(0)''')
    srd(a, R_X, P_X, s(T0+6), 163840)
    srd(a, R_WQ, P_WQKV, s(T0+7), s(T0+8))
    S_MX = T0 + 9; S_MW = T0 + 10
    S_SX = T0 + 11; S_SW = T0 + 12; S_SLOT = T0 + 13; S_I = T0 + 14; S_CSF = T0 + 15
    a(f's_lshl_b32 {s(S_MX)}, {s(S_W)}, 11\ns_lshl_b32 {s(S_MW)}, {s(S_W)}, 10\ns_add_u32 {s(S_MW)}, {s(S_MW)}, 16384')
    def p1_dma(slot):
        a(f'''s_lshl_b32 {s(S_SX)}, {s(S_CH)}, 7
s_mul_i32 {s(S_SW)}, {s(S_CH)}, 245760
s_add_u32 m0, {s(S_MX)}, {slot}
s_add_u32 {s(S_CH)}, {s(S_CH)}, 1
buffer_load_dwordx4 {v(vX0)}, {s(R_X,4)}, {s(S_SX)} offen lds
buffer_load_dwordx4 {v(vX1)}, {s(R_X,4)}, {s(S_SX)} offen offset:1024 lds
s_add_u32 m0, {s(S_MW)}, {slot}
s_cmp_eq_u32 {s(S_CH)}, 10
buffer_load_dwordx4 {v(vWq)}, {s(R_WQ,4)}, {s(S_SW)} offen lds
s_cselect_b32 {s(S_CH)}, 0, {s(S_CH)}
s_add_u32 m0, m0, 8192
s_nop 0
buffer_load_dwordx4 {v(vWk)}, {s(R_WQ,4)}, {s(S_SW)} offen lds
s_add_u32 m0, m0, 8192
s_nop 0
buffer_load_dwordx4 {v(vWv)}, {s(R_WQ,4)}, {s(S_SW)} offen lds''')
    SLOT = 40960
    srd(a, R_WS, P_WS, None, WS_REC)
    S_GW = T0 + 16
    a(f'''s_lshl_b32 {s(S_GW)}, s2, 3
s_add_u32 {s(S_GW)}, {s(S_GW)}, {s(S_W)}
s_cmp_ge_u32 {s(S_GW)}, {ZBYTES//1024}
s_cbranch_scc1 L_nozero
v_mov_b32 {v(t0)}, 0
v_mov_b32 {v(t1)}, 0
v_mov_b32 {v(t2)}, 0
v_mov_b32 {v(t3)}, 0
s_lshl_b32 {s(T0+6)}, {s(S_GW)}, 10
buffer_store_dwordx4 {v(t0,4)}, {v(vL16)}, {s(R_WS,4)}, {s(T0+6)} offen sc1
L_nozero:''')
    for i in range(3):
        p1_dma(((i + 2) % 4) * SLOT)
    srd(a, R_DBG, P_DBG, None, 256)
    a(f's_mul_i32 {s(T0+6)}, {s(S_CT)}, 160\ns_sub_u32 {s(T0+7)}, 819200, {s(T0+6)}\ns_sub_u32 {s(T0+8)}, 2211840, {s(T0+6)}')
    srd(a, R_WO, P_WO, s(T0+6), s(T0+7))
    srd(a, R_W2, P_W2, s(T0+6), s(T0+8))
    stamp()
    for i in range(4): a(f'v_mov_b32 {v(vONE+i)}, 0x3f803f80')
    a(f's_lshl_b32 {s(T0+6)}, {s(S_W)}, 6\nv_add_u32 {v(t0)}, {s(T0+6)}, {v(vL)}\ns_movk_i32 {s(T0+7)}, 1120')
    for j in range(5):
        a(f'''v_mul_u32_u24 {v(t1)}, 6554, {v(t0)}
v_lshrrev_b32 {v(t1)}, 16, {v(t1)}
v_lshlrev_b32 {v(t2)}, 4, {v(t0)}
v_mad_u32_u24 {v(vDW+j)}, {v(t1)}, {s(T0+7)}, {v(t2)}''')
        if j < 4: a(f'v_add_u32 {v(t0)}, 512, {v(t0)}')
    S_MD = T0 + 17
    a(f's_lshl_b32 {s(S_MD)}, {s(S_W)}, 10')

    bXa = va.a(2); bT = va.a(5)
    aXa = va.a(2); aT = va.a(5)
    g_, r_, c_, s_ = vTmp+4, vTmp+5, vTmp+6, vTmp+7
    a(f'''v_lshrrev_b32 {v(g_)}, 4, {v(vL)}
v_bfe_u32 {v(r_)}, {v(vL)}, 2, 2
v_and_b32 {v(c_)}, 3, {v(vL)}
v_and_b32 {v(s_)}, 15, {v(vL)}
s_and_b32 {s(T0+6)}, {s(S_W)}, 3
s_lshl_b32 {s(T0+6)}, {s(T0+6)}, 12
v_lshrrev_b32 {v(t0)}, 1, {v(s_)}
v_xor_b32 {v(t0)}, {v(t0)}, {v(g_)}
v_lshlrev_b32 {v(t0)}, 4, {v(t0)}
v_lshl_add_u32 {v(t0)}, {v(s_)}, 7, {v(t0)}
v_add_u32 {v(bXa)}, {s(T0+6)}, {v(t0)}
v_xor_b32 {v(bXa+1)}, 64, {v(bXa)}
v_lshl_add_u32 {v(t0)}, {v(g_)}, 3, {v(r_)}
v_lshlrev_b32 {v(t0)}, 7, {v(t0)}
v_add_u32 {v(t0)}, 16384, {v(t0)}
v_and_b32 {v(t1)}, 1, {v(g_)}
v_lshlrev_b32 {v(t1)}, 1, {v(t1)}
v_lshrrev_b32 {v(t2)}, 1, {v(r_)}
v_or_b32 {v(t1)}, {v(t1)}, {v(t2)}
v_lshlrev_b32 {v(t1)}, 5, {v(t1)}
s_and_b32 {s(T0+6)}, {s(S_HP)}, 3
s_lshl_b32 {s(T0+6)}, {s(T0+6)}, 4
v_lshl_add_u32 {v(t2)}, {v(c_)}, 3, {s(T0+6)}
v_xor_b32 {v(t3)}, {v(t2)}, {v(t1)}
v_add_u32 {v(bT+0)}, {v(t3)}, {v(t0)}
v_add_u32 {v(t2)}, 40, {v(t2)}
v_xor_b32 {v(t3)}, {v(t2)}, {v(t1)}
v_add_u32 {v(bT+1)}, {v(t3)}, {v(t0)}
v_and_b32 {v(t2)}, 1, {v(c_)}
v_mul_u32_u24 {v(t2)}, 40, {v(t2)}
v_add3_u32 {v(t2)}, {v(t2)}, {s(T0+6)}, 32
v_xor_b32 {v(t3)}, {v(t2)}, {v(t1)}
v_add_u32 {v(bT+2)}, {v(t3)}, {v(t0)}
v_xor_b32 {v(bT+3)}, 16, {v(bT+0)}
v_xor_b32 {v(bT+4)}, 16, {v(bT+1)}''')
    a(f's_and_b32 {s(S_CSF)}, {s(S_W)}, 3\ns_mov_b32 {s(S_I)}, 0\ns_mov_b32 {s(S_SLOT)}, {2*SLOT}')
    a(f'''s_cmp_ge_u32 {s(S_GW)}, {ZBYTES//1024}
s_cbranch_scc1 L_nozsig
v_mov_b32 {v(t0)}, 0
v_mov_b32 {v(t1)}, 1
s_waitcnt vmcnt(15)
s_mov_b64 exec, 1
buffer_atomic_add {v(t1)}, {v(t0)}, {s(R_DBG,4)}, 0 offen sc1
s_mov_b64 exec, -1
L_nozsig:''')
    ST = 106496; CS = ST + 1024; KVR = 122880
    p1_mark = va.mark()
    a(f's_cmp_ge_u32 {s(S_W)}, 4\ns_cbranch_scc1 L_p1q')

    def p1_loop(kind):
        nt = 5 if kind == 'kv' else 3
        lab = 'L_' + kind
        acc = va.a(2 * nt * 4, 4)
        csa = va.a(nt * 4, 4)
        gram = va.a(8, 4) if kind == 'q' else None
        fX = [va.a(8, 4), va.a(8, 4)]
        fW = [va.a(nt * 4, 4), va.a(nt * 4, 4)]
        if kind == 'kv':
            a(f'''v_xor_b32 {v(t0)}, 16, {v(bT+2)}
v_add_u32 {v(t0)}, 8192, {v(t0)}
v_cmp_lt_u32 vcc, 1, {v(c_)}
v_cndmask_b32 {v(bT+2)}, {v(bT+2)}, {v(t0)}, vcc''')
            tiles = [(0, 8192), (1, 8192), (3, 16384), (4, 16384), (2, 8192)]
            nb = [0, 1, 2, 3, 4]
        else:
            tiles = [(0, 0), (1, 0), (2, 0)]
            nb = [0, 1, 2]
            mask64(a, M_A, lanemask(lambda l: (l & 15) >= 8))
        for r in range(acc, acc + 2 * nt * 4): a(f'v_mov_b32 {v(r)}, 0')
        for r in range(csa, csa + nt * 4): a(f'v_mov_b32 {v(r)}, 0')
        if gram is not None:
            for r in range(gram, gram + 8): a(f'v_mov_b32 {v(r)}, 0')
        for r in range(fX[1], fX[1] + 8): a(f'v_mov_b32 {v(r)}, 0')
        for r in range(fW[1], fW[1] + nt * 4): a(f'v_mov_b32 {v(r)}, 0')
        def reads(j):
            for m in range(2):
                a(f'ds_read_b128 {v(fX[j]+4*m,4)}, {v(aXa+j)} offset:{2048*m}')
            for t, (b, imm) in enumerate(tiles):
                for jh in range(2):
                    a(f'ds_read_b64_tr_b16 {v(fW[j]+4*t+2*jh,2)}, {v(aT+b)} offset:{imm + 4096*j + 512*jh}')
        def mfmas(j, tag):
            if kind == 'q':
                for i in range(4):
                    a(f'v_cndmask_b32 {v(fW[j]+8+i)}, {v(fW[j]+8+i)}, {v(vONE)}, {s(M_A,2)}')
                for m in range(2):
                    a(f'{MF} {v(gram+4*m,4)}, {v(fX[j]+4*m,4)}, {v(fX[j]+4*m,4)}, {v(gram+4*m,4)}')
            for t in range(nt):
                for m in range(2):
                    d = v(acc + (m * nt + t) * 4, 4)
                    if kind == 'kv': a(f'{MF} {d}, {v(fX[j]+4*m,4)}, {v(fW[j]+4*t,4)}, {d}')
                    else: a(f'{MF} {d}, {v(fW[j]+4*t,4)}, {v(fX[j]+4*m,4)}, {d}')
            a(f's_cmp_lg_u32 {s(S_CSF)}, 0\ns_cbranch_scc1 {lab}_nc{tag}')
            for t in range(nt):
                a(f'{MF} {v(csa+4*t,4)}, {v(vONE,4)}, {v(fW[j]+4*t,4)}, {v(csa+4*t,4)}')
            a(f'{lab}_nc{tag}:\ns_sub_u32 {s(S_CSF)}, {s(S_CSF)}, 1\ns_and_b32 {s(S_CSF)}, {s(S_CSF)}, 3')
        a(f'{lab}_loop:')
        for i in range(2): a(f'v_add_u32 {v(aXa+i)}, {s(S_SLOT)}, {v(bXa+i)}')
        for b in nb: a(f'v_add_u32 {v(aT+b)}, {s(S_SLOT)}, {v(bT+b)}')
        a('s_waitcnt vmcnt(10)\ns_barrier')
        reads(0)
        mfmas(1, 'a')
        a(f'''s_sub_u32 {s(T0+6)}, {s(S_SLOT)}, {SLOT}
s_cmp_eq_u32 {s(S_SLOT)}, 0
s_cselect_b32 {s(T0+6)}, {3*SLOT}, {s(T0+6)}
s_cmp_ge_u32 {s(S_I)}, 7
s_cbranch_scc1 {lab}_wo''')
        p1_dma(s(T0+6))
        a(f'{lab}_back:')
        reads(1)
        a(f's_waitcnt lgkmcnt({min(15, 2 + 2*nt)})')
        mfmas(0, 'b')
        a(f'''s_add_u32 {s(S_SLOT)}, {s(S_SLOT)}, {SLOT}
s_cmp_eq_u32 {s(S_SLOT)}, {4*SLOT}
s_cselect_b32 {s(S_SLOT)}, 0, {s(S_SLOT)}
s_add_u32 {s(S_I)}, {s(S_I)}, 1
s_cmp_lt_u32 {s(S_I)}, 10
s_waitcnt lgkmcnt(0)
s_cbranch_scc1 {lab}_loop
s_branch {lab}_done''')
        a(f'''{lab}_wo:
s_sub_u32 {s(T0+7)}, {s(S_I)}, 7
s_mul_i32 {s(T0+7)}, {s(T0+7)}, {256*1280}
s_add_u32 m0, {s(T0+6)}, {s(S_MD)}''')
        for j in range(5):
            if j == 3: a(f's_cmp_eq_u32 {s(S_I)}, 9\ns_cbranch_scc1 {lab}_back')
            if j: a('s_add_u32 m0, m0, 8192')
            a(f'buffer_load_dwordx4 {v(vDW+j)}, {s(R_WO,4)}, {s(T0+7)} offen lds')
        a(f's_branch {lab}_back')
        a(f'{lab}_done:')
        mfmas(1, 'c')
        return acc, csa, gram

    def phi(x, tmp, n, cL, cE6, cE6L):
        for i in range(0, n, 2):
            a(f'v_pk_fma_f32 {v(tmp+i,2)}, {v(x+i,2)}, {s(cL,2)}, {v(cE6L,2)} op_sel_hi:[1,0,0]')
        for i in range(n): a(f'v_min_f32 {v(tmp+i)}, 0, {v(tmp+i)}')
        for i in range(n): a(f'v_exp_f32 {v(tmp+i)}, {v(tmp+i)}')
        for i in range(n): a(f'v_max_f32 {v(x+i)}, {s(cE6)}, {v(x+i)}')
        for i in range(0, n, 2):
            a(f'v_pk_add_f32 {v(x+i,2)}, {v(x+i,2)}, {v(tmp+i,2)}')

    C_L = T0 + 6; C_E6 = T0 + 8
    acc, csa, _ = p1_loop('kv')
    nt = 5
    stamp()
    aw = va.a()
    a(f'''s_and_b32 {s(T0+6)}, {s(S_W)}, 3
s_lshl_b32 {s(T0+6)}, {s(T0+6)}, 9
v_and_b32 {v(aw)}, 15, {v(vL)}
v_lshl_add_u32 {v(aw)}, {v(aw)}, 2, {s(T0+6)}
v_add_u32 {v(aw)}, {CS}, {v(aw)}''')
    for t in range(nt):
        a(f'ds_write_b32 {v(aw)}, {v(csa+4*t)} offset:{(3+t)*64}')
    a('s_waitcnt lgkmcnt(0)\ns_barrier')
    stt = va.a(16, 4); csp = va.a(20, 4); tmp = va.a(8, 4); cE6L = va.a(2, 2); ar = va.a()
    a(f'''s_and_b32 {s(T0+6)}, {s(S_W)}, 3
s_lshl_b32 {s(T0+6)}, {s(T0+6)}, 8
v_lshrrev_b32 {v(ar)}, 4, {v(vL)}
v_lshl_add_u32 {v(ar)}, {v(ar)}, 5, {s(T0+6)}
v_add_u32 {v(ar)}, {ST}, {v(ar)}
v_and_b32 {v(aw)}, 15, {v(vL)}
v_lshlrev_b32 {v(aw)}, 2, {v(aw)}
v_add_u32 {v(aw)}, {CS}, {v(aw)}''')
    for m in range(2):
        for hh in range(2):
            a(f'ds_read_b128 {v(stt+8*m+4*hh,4)}, {v(ar)} offset:{128*m+16*hh}')
    for t in range(nt):
        for p in range(4):
            a(f'ds_read_b32 {v(csp+4*t+p)}, {v(aw)} offset:{p*512+(3+t)*64}')
    a(f'''s_mov_b32 {s(C_L)}, {fhex(LOG2E)}
s_mov_b32 {s(C_E6)}, {fhex(1e-6)}
v_mov_b32 {v(cE6L)}, {fhex(-1e-6*LOG2E)}''')
    mask64(a, M_A, lanemask(lambda l: (l & 15) >= 8))
    a('s_waitcnt lgkmcnt(0)')
    for t in range(nt):
        a(f'v_add_f32 {v(csp+4*t)}, {v(csp+4*t)}, {v(csp+4*t+1)}\nv_add_f32 {v(csp+4*t+2)}, {v(csp+4*t+2)}, {v(csp+4*t+3)}')
        a(f'v_add_f32 {v(csp+4*t)}, {v(csp+4*t)}, {v(csp+4*t+2)}')
    op = va.a(24, 4)
    e6v = va.a(); zv = va.a()
    a(f'v_mov_b32 {v(e6v)}, {fhex(1e-6)}\nv_mov_b32 {v(zv)}, 0')
    a(f'v_cndmask_b32 {v(zv)}, {v(e6v)}, {v(zv)}, {s(M_A,2)}')
    for t in range(nt):
        for m in range(2):
            x = acc + (m * nt + t) * 4
            for r in range(4):
                rs = stt + 8 * m + 2 * r
                add = v(e6v) if t < 2 else (v(zv) if t == 4 else '0')
                a(f'v_fma_f32 {v(tmp+r)}, {v(rs+1)}, {v(csp+4*t)}, {add}')
            for r in range(4):
                rs = stt + 8 * m + 2 * r
                a(f'v_fma_f32 {v(x+r)}, {v(x+r)}, {v(rs)}, {v(tmp+r)}')
            if t < 2:
                phi(x, tmp, 4, C_L, C_E6, cE6L)
            elif t == 4:
                for r in range(4): a(f'v_mov_b32 {v(tmp+4+r)}, {v(x+r)}')
                phi(x, tmp, 4, C_L, C_E6, cE6L)
                for r in range(4): a(f'v_cndmask_b32 {v(x+r)}, {v(x+r)}, {v(tmp+4+r)}, {s(M_A,2)}')
            a(f'v_cvt_pk_bf16_f32 {v(op+4*t+2*m)}, {v(x)}, {v(x+1)}\nv_cvt_pk_bf16_f32 {v(op+4*t+2*m+1)}, {v(x+2)}, {v(x+3)}')
    for i in range(4):
        a(f'v_cndmask_b32 {v(op+20+i)}, {v(vONE)}, {v(op+16+i)}, {s(M_A,2)}')
    KA, KB, VA_, VB, KVC, KVCp = [v(op + 4 * i, 4) for i in range(6)]
    D = acc
    prods = [(KA, VA_), (KB, VB), (KVC, VA_), (KVC, VB), (KA, KVCp), (KB, KVCp), (KVC, KVCp)]
    for i, (x, y) in enumerate(prods):
        a(f'{MF} {v(D+4*i,4)}, {x}, {y}, 0')
    mask64(a, M_B, lanemask(lambda l: (l >> 4) == 1))
    mask64(a, M_C, lanemask(lambda l: ((l & 15) >> 2) & 1))
    a(f'''s_and_b32 {s(T0+6)}, {s(S_W)}, 3
s_mul_i32 {s(T0+6)}, {s(T0+6)}, 5120
s_add_u32 {s(T0+6)}, {s(T0+6)}, {KVR}
v_add_u32 {v(aw)}, {s(T0+6)}, {v(vL16)}
v_and_b32 {v(tmp)}, 3, {v(vL)}
v_bfe_u32 {v(tmp+1)}, {v(vL)}, 2, 2
v_lshl_add_u32 {v(tmp)}, {v(tmp)}, 2, {v(tmp+1)}
v_and_b32 {v(tmp+1)}, 48, {v(vL)}
v_add_u32 {v(tmp)}, {v(tmp)}, {v(tmp+1)}
v_lshl_add_u32 {v(ar)}, {v(tmp)}, 4, {s(T0+6)}''')
    for r in range(4):
        a(f'v_cndmask_b32 {v(D+8+r)}, {v(D+8+r)}, {v(D+12+r)}, {s(M_B,2)}')
        a(f'v_cndmask_b32 {v(D+16+r)}, {v(D+16+r)}, {v(D+20+r)}, {s(M_C,2)}')
    a(f'''ds_write_b128 {v(aw)}, {v(D,4)}
ds_write_b128 {v(aw)}, {v(D+4,4)} offset:1024
ds_write_b128 {v(aw)}, {v(D+8,4)} offset:3072
ds_write_b128 {v(ar)}, {v(D+16,4)} offset:2048
ds_write_b128 {v(ar)}, {v(D+24,4)} offset:3584
s_waitcnt lgkmcnt(0)
s_branch L_p1join''')

    va.reset(p1_mark)
    a('L_p1q:')
    acc, csa, gram = p1_loop('q')
    nt = 3
    stamp()
    aw = va.a(); ar = va.a(); tmp = va.a(12, 4); cE6L = va.a(2, 2)
    a(f'''s_and_b32 {s(T0+6)}, {s(S_W)}, 3
s_lshl_b32 {s(T0+7)}, {s(T0+6)}, 9
v_and_b32 {v(ar)}, 15, {v(vL)}
v_lshl_add_u32 {v(aw)}, {v(ar)}, 2, {s(T0+7)}
v_add_u32 {v(aw)}, {CS}, {v(aw)}
s_lshl_b32 {s(T0+6)}, {s(T0+6)}, 8
v_lshl_add_u32 {v(ar)}, {v(ar)}, 3, {s(T0+6)}
v_add_u32 {v(ar)}, {ST}, {v(ar)}''')
    mask64(a, M_A, lanemask(lambda l: (l & 3) == 1))
    mask64(a, M_B, lanemask(lambda l: (l & 3) == 2))
    mask64(a, M_C, lanemask(lambda l: (l & 3) == 3))
    mask64(a, M_D, lanemask(lambda l: ((l & 15) >> 2) == (l >> 4)))
    for t in range(nt):
        a(f'ds_write_b32 {v(aw)}, {v(csa+4*t)} offset:{t*64}')
    a(f's_mov_b32 {s(T0+6)}, {fhex(1/640)}\ns_mov_b32 {s(T0+7)}, {fhex(1e-5)}')
    for m in range(2):
        G = gram + 4 * m; qc = acc + (m * nt + 2) * 4
        sm = tmp + 4 * m; sq = tmp + 4 * m + 1; o = tmp + 4 * m + 2
        a(f'''v_cndmask_b32 {v(sq)}, {v(G)}, {v(G+1)}, {s(M_A,2)}
v_cndmask_b32 {v(sq)}, {v(sq)}, {v(G+2)}, {s(M_B,2)}
v_cndmask_b32 {v(sq)}, {v(sq)}, {v(G+3)}, {s(M_C,2)}
v_mov_b32 {v(o)}, {v(qc)}
v_mov_b32 {v(sm)}, {v(qc)}
v_permlane32_swap_b32 {v(o)}, {v(sm)}
v_mul_f32 {v(sm)}, {s(T0+6)}, {v(sm)}
v_mul_f32 {v(sq)}, {s(T0+6)}, {v(sq)}
v_fma_f32 {v(sq)}, -{v(sm)}, {v(sm)}, {v(sq)}
v_max_f32 {v(sq)}, 0, {v(sq)}
v_add_f32 {v(sq)}, {s(T0+7)}, {v(sq)}
v_rsq_f32 {v(o)}, {v(sq)}
v_mul_f32 {v(o+1)}, -{v(sm)}, {v(o)}''')
    a(f's_mov_b64 exec, {s(M_D,2)}')
    for m in range(2):
        a(f'ds_write_b64 {v(ar)}, {v(tmp+4*m+2,2)} offset:{128*m}')
    a('s_mov_b64 exec, -1\ns_waitcnt lgkmcnt(0)\ns_barrier')
    stt = va.a(4, 4); csp = va.a(48, 4); pk = va.a(12, 4)
    a(f'v_lshrrev_b32 {v(aw)}, 4, {v(vL)}\nv_lshlrev_b32 {v(aw)}, 4, {v(aw)}\nv_add_u32 {v(aw)}, {CS}, {v(aw)}')
    for m in range(2):
        a(f'ds_read_b64 {v(stt+2*m,2)}, {v(ar)} offset:{128*m}')
    for t in range(nt):
        for p in range(4):
            a(f'ds_read_b128 {v(csp+16*t+4*p,4)}, {v(aw)} offset:{p*512+t*64}')
    e6p = va.a(2, 2)
    a(f'''s_mov_b32 {s(C_L)}, {fhex(LOG2E)}
s_mov_b32 {s(C_E6)}, {fhex(1e-6)}
v_mov_b32 {v(cE6L)}, {fhex(-1e-6*LOG2E)}
v_mov_b32 {v(e6p)}, {fhex(1e-6)}''')
    a(f'''s_and_b32 {s(T0+9)}, {s(S_W)}, 3
s_lshl_b32 {s(T0+9)}, {s(T0+9)}, 1
s_lshl_b32 {s(T0+10)}, {s(S_RT1)}, 3
s_add_u32 {s(T0+9)}, {s(T0+9)}, {s(T0+10)}
s_lshl_b32 {s(T0+9)}, {s(T0+9)}, 4
s_add_u32 {s(T0+9)}, {s(T0+9)}, {s(S_HP)}
s_mul_i32 {s(T0+9)}, {s(T0+9)}, 1536
s_add_u32 {s(T0+9)}, {s(T0+9)}, {OFF_PQ}
s_add_u32 {s(T0+10)}, {s(T0+9)}, {16*1536}
v_lshlrev_b32 {v(ar)}, 3, {v(vL)}
s_waitcnt lgkmcnt(0)''')
    for t in range(nt):
        c = csp + 16 * t
        for i in (0, 2):
            a(f'v_pk_add_f32 {v(c+i,2)}, {v(c+i,2)}, {v(c+4+i,2)}\nv_pk_add_f32 {v(c+8+i,2)}, {v(c+8+i,2)}, {v(c+12+i,2)}')
        for i in (0, 2):
            a(f'v_pk_add_f32 {v(c+i,2)}, {v(c+i,2)}, {v(c+8+i,2)}')
    dst = {0: 0, 2: 2, 1: 4}
    for m in range(2):
        for t in range(nt):
            x = acc + (m * nt + t) * 4; c = csp + 16 * t
            for i in (0, 2):
                a(f'v_pk_fma_f32 {v(tmp+i,2)}, {v(c+i,2)}, {v(stt+2*m,2)}, {v(e6p,2)} op_sel:[0,1,0] op_sel_hi:[1,1,0]')
            for i in (0, 2):
                a(f'v_pk_fma_f32 {v(x+i,2)}, {v(x+i,2)}, {v(stt+2*m,2)}, {v(tmp+i,2)} op_sel_hi:[1,0,1]')
            phi(x, tmp, 4, C_L, C_E6, cE6L)
            o = pk + 6 * m + dst[t]
            a(f'v_cvt_pk_bf16_f32 {v(o)}, {v(x)}, {v(x+1)}\nv_cvt_pk_bf16_f32 {v(o+1)}, {v(x+2)}, {v(x+3)}')
        a(f'buffer_store_dwordx4 {v(pk+6*m,4)}, {v(vL16)}, {s(R_WS,4)}, {s(T0+9+m)} offen sc1')
        a(f'buffer_store_dwordx2 {v(pk+6*m+4,2)}, {v(ar)}, {s(R_WS,4)}, {s(T0+9+m)} offen offset:1024 sc1')
    a(f'''s_cmp_lg_u32 {s(S_W)}, 4
s_cbranch_scc1 L_p1join
v_mov_b32 {v(tmp)}, 0
s_mov_b32 {s(T0+6)}, 0x400000
L_zpoll:
buffer_load_dword {v(tmp+1)}, {v(tmp)}, {s(R_DBG,4)}, 0 offen sc1
s_waitcnt vmcnt(0)
v_readfirstlane_b32 {s(T0+7)}, {v(tmp+1)}
s_sub_u32 {s(T0+6)}, {s(T0+6)}, 1
s_cmp_eq_u32 {s(T0+6)}, 0
s_cbranch_scc1 L_p1join
s_cmp_lt_u32 {s(T0+7)}, {ZBYTES//1024}
s_cbranch_scc1 L_zpoll''')
    va.reset(base_mark)
    a('L_p1join:\ns_barrier')
    rd = va.a(8, 4); ad = va.a(); ag = va.a()
    a(f'''s_lshl_b32 {s(T0+6)}, {s(S_W)}, 9
v_lshl_add_u32 {v(ag)}, {v(vL)}, 2, {s(T0+6)}
v_add_u32 {v(ad)}, {KVR}, {v(ag)}
s_lshl_b32 {s(T0+7)}, {s(S_HP)}, 12''')
    for p in range(4):
        for hh in range(2):
            a(f'ds_read_b32 {v(rd+2*p+hh)}, {v(ad)} offset:{p*5120+hh*256}')
    a('s_waitcnt lgkmcnt(0)')
    a(f'v_pk_add_f32 {v(rd,2)}, {v(rd,2)}, {v(rd+2,2)}\nv_pk_add_f32 {v(rd+4,2)}, {v(rd+4,2)}, {v(rd+6,2)}\nv_pk_add_f32 {v(rd,2)}, {v(rd,2)}, {v(rd+4,2)}')
    for hh in range(2):
        a(f'buffer_atomic_add_f32 {v(rd+hh)}, {v(ag)}, {s(R_WS,4)}, {s(T0+7)} offen offset:{OFF_KV + hh*256}')
    stamp()
    S_ODD = T0 + 9; S_STILE = T0 + 10; S_KH = T0 + 11; S_CM = T0 + 12; S_CO = T0 + 13; S_CS = T0 + 14
    a(f'''s_and_b32 {s(S_ODD)}, {s(S_CT)}, 1
s_lshr_b32 {s(S_KH)}, {s(S_W)}, 2
s_lshl_b32 {s(S_STILE)}, {s(S_GRP)}, 3
s_lshr_b32 {s(T0+6)}, {s(S_MEM)}, 3
s_lshl_b32 {s(T0+6)}, {s(T0+6)}, 2
s_add_u32 {s(S_STILE)}, {s(S_STILE)}, {s(T0+6)}
s_and_b32 {s(T0+6)}, {s(S_W)}, 3
s_add_u32 {s(S_STILE)}, {s(S_STILE)}, {s(T0+6)}
s_lshl_b32 {s(T0+6)}, {s(S_ODD)}, 5
s_lshl_b32 {s(T0+7)}, {s(S_KH)}, 6
s_add_u32 {s(S_CM)}, {s(T0+6)}, {s(T0+7)}
s_xor_b32 {s(T0+7)}, {s(T0+7)}, 64
s_add_u32 {s(S_CO)}, {s(T0+6)}, {s(T0+7)}
s_cmp_eq_u32 {s(S_ODD)}, 0
s_cselect_b32 {s(S_CS)}, 128, 0''')
    srd(a, R_X, P_X, None, 2621440)
    srd(a, R_OUT, P_OUT, None, 2621440)
    S_RB = T0 + 15
    a(f'''v_and_b32 {v(t0)}, 15, {v(vL)}
v_mul_u32_u24 {v(t0)}, 1280, {v(t0)}
v_lshrrev_b32 {v(t1)}, 4, {v(vL)}
v_lshl_add_u32 {v(vRO)}, {v(t1)}, 3, {v(t0)}
s_mul_i32 {s(S_RB)}, {s(S_STILE)}, 20480
s_mul_i32 {s(T0+6)}, {s(S_CT)}, 160
s_add_u32 {s(S_RB)}, {s(S_RB)}, {s(T0+6)}
s_add_u32 {s(T0+6)}, {s(S_RB)}, {s(S_CM)}
s_add_u32 {s(T0+7)}, {s(S_RB)}, {s(S_CS)}
buffer_load_dwordx2 {v(vXR,2)}, {v(vRO)}, {s(R_X,4)}, {s(T0+6)} offen
buffer_load_dwordx2 {v(vXR+2,2)}, {v(vRO)}, {s(R_X,4)}, {s(T0+6)} offen offset:32
buffer_load_dwordx2 {v(vXR+4,2)}, {v(vRO)}, {s(R_X,4)}, {s(T0+7)} offen
s_waitcnt vmcnt(0)
s_barrier''')
    stamp()

    def sync(tag, sig_lanes, sig_addr_code, poll_lanes, poll_addr_code, target):
        a(f's_cmp_lg_u32 {s(S_W)}, 0\ns_cbranch_scc1 L_{tag}_w')
        a(sig_addr_code(t0))
        a(poll_addr_code(t2))
        a(f'''v_mov_b32 {v(t1)}, 1
s_mov_b64 exec, 0x{(1<<sig_lanes)-1:x}
buffer_atomic_add {v(t1)}, {v(t0)}, {s(R_WS,4)}, 0 offen sc1
s_mov_b64 exec, 0x{(1<<poll_lanes)-1:x}
s_mov_b32 {s(T0+6)}, 0x400000
L_{tag}_p:
buffer_load_dword {v(t3)}, {v(t2)}, {s(R_WS,4)}, 0 offen sc1
s_sub_u32 {s(T0+6)}, {s(T0+6)}, 1
s_cmp_eq_u32 {s(T0+6)}, 0
s_cbranch_scc1 L_{tag}_d
s_waitcnt vmcnt(0)
v_cmp_gt_u32 vcc, {target}, {v(t3)}
s_cbranch_vccnz L_{tag}_p
L_{tag}_d:
s_mov_b64 exec, -1
L_{tag}_w:
s_barrier''')

    if stop_after >= 2:
        sync('s1', 16,
             lambda r: f's_lshl_b32 {s(T0+6)}, {s(S_HP)}, 7\ns_add_u32 {s(T0+6)}, {s(T0+6)}, {OFF_C1}\nv_lshl_add_u32 {v(r)}, {v(vL)}, 11, {s(T0+6)}',
             16,
             lambda r: f's_lshl_b32 {s(T0+6)}, {s(S_MEM)}, 11\ns_add_u32 {s(T0+6)}, {s(T0+6)}, {OFF_C1}\nv_lshl_add_u32 {v(r)}, {v(vL)}, 7, {s(T0+6)}',
             16)
        stamp()
        va.reset(base_mark)
        vm = VM(a)
        KVF = 106496; XCH = 102400
        kvr = va.a(32, 4); pq = va.a(48, 4); vL8 = va.a()
        a(f'''s_lshl_b32 {s(T0+6)}, {s(S_W)}, 13
s_add_u32 {s(T0+7)}, {s(T0+6)}, 4096
v_lshlrev_b32 {v(vL8)}, 3, {v(vL)}''')
        for h in range(2):
            for b in range(4):
                vm.op(f'buffer_load_dwordx4 {v(kvr+16*h+4*b,4)}, {v(vL16)}, {s(R_WS,4)}, {s(T0+6+h)} offen offset:{OFF_KV+1024*b} sc1', 'kv')
        a(f'''s_lshl_b32 {s(T0+6)}, {s(S_STILE)}, 4
s_lshl_b32 {s(T0+7)}, {s(S_KH)}, 3
s_add_u32 {s(T0+6)}, {s(T0+6)}, {s(T0+7)}
s_mul_i32 {s(T0+6)}, {s(T0+6)}, 1536
s_add_u32 {s(T0+6)}, {s(T0+6)}, {OFF_PQ}''')
        for j in range(8):
            o = (j & 1) * 1536
            vm.op(f'buffer_load_dwordx4 {v(pq+6*j,4)}, {v(vL16)}, {s(R_WS,4)}, {s(T0+6)} offen offset:{o} sc1', f'pq{j}')
            vm.op(f'buffer_load_dwordx2 {v(pq+6*j+4,2)}, {v(vL8)}, {s(R_WS,4)}, {s(T0+6)} offen offset:{o+1024} sc1', f'pq{j}')
            if j & 1 and j < 7: a(f's_add_u32 {s(T0+6)}, {s(T0+6)}, 3072')
        aM = va.a(3); aS = va.a(3); aK = va.a(); aKw = va.a()
        a(f'''v_lshrrev_b32 {v(g_)}, 4, {v(vL)}
v_bfe_u32 {v(r_)}, {v(vL)}, 2, 2
v_and_b32 {v(c_)}, 3, {v(vL)}
v_lshl_add_u32 {v(t0)}, {v(g_)}, 2, {v(r_)}
v_mul_u32_u24 {v(t0)}, 160, {v(t0)}
v_lshl_add_u32 {v(t0)}, {v(c_)}, 3, {v(t0)}
v_mul_u32_u24 {v(t1)}, 20, {v(r_)}
v_add3_u32 {v(t1)}, {v(t1)}, {v(g_)}, 16
v_mul_u32_u24 {v(t1)}, 160, {v(t1)}
v_lshl_add_u32 {v(t1)}, {v(c_)}, 3, {v(t1)}
s_mul_i32 {s(T0+6)}, {s(S_KH)}, 51200''')
        for i, sc in enumerate((S_CM, S_CO, S_CS)):
            a(f's_add_u32 {s(T0+7)}, {s(T0+6)}, {s(sc)}\nv_add_u32 {v(aM+i)}, {s(T0+7)}, {v(t0)}\nv_add_u32 {v(aS+i)}, {s(T0+7)}, {v(t1)}')
        a(f'''s_mul_i32 {s(T0+6)}, {s(S_KH)}, {8*3072}
s_add_u32 {s(T0+6)}, {s(T0+6)}, {KVF}
v_add_u32 {v(aK)}, {s(T0+6)}, {v(vL16)}
s_mul_i32 {s(T0+6)}, {s(S_W)}, {2*3072}
s_add_u32 {s(T0+6)}, {s(T0+6)}, {KVF}
v_add_u32 {v(aKw)}, {s(T0+6)}, {v(vL16)}''')
        mask64(a, M_A, lanemask(lambda l: (l >> 4) == 0))
        mask64(a, M_B, lanemask(lambda l: (l >> 4) == 1))
        mask64(a, M_C, lanemask(lambda l: ((l >> 4) == 0 and (l & 1) == 0) or ((l >> 4) == 1 and (l & 1) == 1)))
        mask64(a, M_D, lanemask(lambda l: (l & 1) == 0))
        fr = va.a(24, 4); tt = va.a(6, 2)
        vm.wait('kv')
        for h in range(2):
            k = kvr + 16 * h; f = fr + 12 * h
            M0, M1, EM, XX = k, k + 4, k + 8, k + 12
            em, xx, tx = tt, tt + 2, tt + 4
            for i in range(2):
                a(f'v_cvt_pk_bf16_f32 {v(xx+i)}, {v(XX+2*i)}, {v(XX+2*i+1)}')
                a(f'v_cvt_pk_bf16_f32 {v(f+i)}, {v(M0+2*i)}, {v(M0+2*i+1)}')
                a(f'v_cvt_pk_bf16_f32 {v(f+6+i)}, {v(M1+2*i)}, {v(M1+2*i+1)}')
                a(f'v_cvt_pk_bf16_f32 {v(em+i)}, {v(EM+2*i)}, {v(EM+2*i+1)}')
            for i in range(2):
                a(f'v_mov_b32 {v(tx+i)}, 0')
            for i in range(2):
                a(f'v_permlane32_swap_b32 {v(xx+i)}, {v(tx+i)}')
            for i in range(2):
                a(f'v_cndmask_b32 {v(f+2+i)}, 0, {v(xx+i)}, {s(M_A,2)}')
                a(f'v_cndmask_b32 {v(f+4+i)}, 0, {v(xx+i)}, {s(M_B,2)}')
                a(f'v_cndmask_b32 {v(tx+i)}, 0, {v(tx+i)}, {s(M_C,2)}')
            for i in range(2):
                a(f'v_cndmask_b32 {v(f+8+i)}, {v(tx+i)}, {v(em+i)}, {s(M_D,2)}')
                a(f'v_cndmask_b32 {v(f+10+i)}, {v(em+i)}, {v(tx+i)}, {s(M_D,2)}')
            for b in range(3):
                a(f'ds_write_b128 {v(aKw)}, {v(f+4*b,4)} offset:{h*3072+b*1024}')
        a('s_waitcnt lgkmcnt(0)\ns_barrier')
        O = va.a(32, 4); OS = va.a(8, 4); Dq = kvr
        a(f's_mov_b32 {s(C_E6)}, {fhex(1e-6)}')
        def kvread(j):
            for b in range(3):
                a(f'ds_read_b128 {v(fr+12*(j&1)+4*b,4)}, {v(aK)} offset:{j*3072+b*1024}')
        kvread(0)
        for j in range(8):
            if j < 7: kvread(j + 1)
            vm.wait(f'pq{j}')
            a(f's_waitcnt lgkmcnt({3 if j < 7 else 0})')
            f = fr + 12 * (j & 1); d = Dq + 16 * (j & 1)
            X0 = v(pq + 6 * j, 4); X1 = v(pq + 6 * j + 2, 4)
            a(f'''{MF} {v(d+8,4)}, {v(f+8,4)}, {X0}, 0
{MF} {v(d+12,4)}, {v(f+8,4)}, {X1}, 0
{MF} {v(d,4)}, {v(f,4)}, {X0}, 0
{MF} {v(d+4,4)}, {v(f+4,4)}, {X1}, 0
v_add_f32 {v(tt)}, {s(C_E6)}, {v(d+8)}
v_add_f32 {v(tt+1)}, {s(C_E6)}, {v(d+13)}
v_rcp_f32 {v(tt)}, {v(tt)}
v_rcp_f32 {v(tt+1)}, {v(tt+1)}
v_mul_f32 {v(tt+2)}, {v(tt)}, {v(d+10)}
v_mul_f32 {v(tt+3)}, {v(tt+1)}, {v(d+15)}
v_pk_mul_f32 {v(d,2)}, {v(d,2)}, {v(tt,2)} op_sel_hi:[1,0]
v_pk_mul_f32 {v(d+2,2)}, {v(d+2,2)}, {v(tt,2)} op_sel_hi:[1,0]
v_pk_mul_f32 {v(d+4,2)}, {v(d+4,2)}, {v(tt,2)} op_sel:[0,1] op_sel_hi:[1,1]
v_pk_mul_f32 {v(d+6,2)}, {v(d+6,2)}, {v(tt,2)} op_sel:[0,1] op_sel_hi:[1,1]
v_cvt_pk_bf16_f32 {v(OS+j)}, {v(tt+2)}, {v(tt+3)}''')
            for i in range(4):
                a(f'v_cvt_pk_bf16_f32 {v(O+4*j+i)}, {v(d+2*i)}, {v(d+2*i+1)}')
        a('s_barrier')
        acc2 = fr; wf = [pq, pq + 20]
        tl = [(0, 0), (0, 32), (1, 0), (1, 32), (2, 0)]
        steps = [('m', j) for j in range(8)] + [('s', 0), ('s', 1)]
        def wread(n):
            kind, j = steps[n]
            for t, (ai, ci) in enumerate(tl):
                for jh in range(2):
                    if kind == 'm': ad_, off = aM + ai, j * 6400 + jh * 3200 + ci
                    else: ad_, off = aS + ai, j * 25600 + jh * 12800 + ci
                    a(f'ds_read_b64_tr_b16 {v(wf[n&1]+4*t+2*jh,2)}, {v(ad_)} offset:{off}')
        wread(0)
        for n in range(10):
            if n < 9: wread(n + 1)
            a(f's_waitcnt lgkmcnt({10 if n < 9 else 0})')
            kind, j = steps[n]
            X = v(O + 4 * j, 4) if kind == 'm' else v(OS + 4 * j, 4)
            for t in range(5):
                a(f'{MF} {v(acc2+4*t,4)}, {v(wf[n&1]+4*t,4)}, {X}, {v(acc2+4*t,4) if n else 0}')

        def exchange(acc2, rcv):
            axw = va.a(); axr = va.a()
            a(f'''s_mul_i32 {s(T0+6)}, {s(S_W)}, 3072
s_add_u32 {s(T0+6)}, {s(T0+6)}, {XCH}
v_add_u32 {v(axw)}, {s(T0+6)}, {v(vL16)}
s_xor_b32 {s(T0+6)}, {s(S_W)}, 4
s_mul_i32 {s(T0+6)}, {s(T0+6)}, 3072
s_add_u32 {s(T0+6)}, {s(T0+6)}, {XCH}
v_add_u32 {v(axr)}, {s(T0+6)}, {v(vL16)}''')
            for i in range(3):
                a(f'ds_write_b128 {v(axw)}, {v(acc2+8+4*i,4)} offset:{1024*i}')
            a('s_waitcnt lgkmcnt(0)\ns_barrier')
            for i in range(3):
                a(f'ds_read_b128 {v(rcv+4*i,4)}, {v(axr)} offset:{1024*i}')
        rcv = wf[0]; xf = wf[1]
        exchange(acc2, rcv)
        for i in range(6):
            a(f'v_lshlrev_b32 {v(xf+2*i)}, 16, {v(vXR+i)}\nv_and_b32 {v(xf+2*i+1)}, 0xffff0000, {v(vXR+i)}')
        own = [acc2, acc2 + 4, acc2 + 16]
        for i in range(3):
            for hh in (0, 2):
                a(f'v_pk_add_f32 {v(own[i]+hh,2)}, {v(own[i]+hh,2)}, {v(xf+4*i+hh,2)}')
        S_KP = T0 + 16
        a(f'''s_mul_i32 {s(T0+6)}, {s(S_CT)}, 5
s_add_u32 {s(T0+6)}, {s(T0+6)}, 1
s_lshr_b32 {s(T0+6)}, {s(T0+6)}, 1
s_mul_i32 {s(T0+7)}, {s(S_STILE)}, 20
s_add_u32 {s(T0+6)}, {s(T0+6)}, {s(T0+7)}
s_cmp_eq_u32 {s(S_ODD)}, 0
s_cselect_b32 {s(T0+7)}, 2, -1
s_add_u32 {s(T0+7)}, {s(T0+7)}, {s(T0+6)}
s_lshl_b32 {s(T0+7)}, {s(T0+7)}, 10
s_lshl_b32 {s(T0+8)}, {s(S_ODD)}, 3
s_add_u32 {s(T0+7)}, {s(T0+7)}, {s(T0+8)}
s_add_u32 {s(T0+7)}, {s(T0+7)}, {OFF_H}
s_add_u32 {s(T0+6)}, {s(T0+6)}, {s(S_KH)}
s_lshl_b32 {s(T0+6)}, {s(T0+6)}, 10
s_add_u32 {s(T0+6)}, {s(T0+6)}, {OFF_H}
s_lshl_b32 {s(T0+8)}, {s(S_STILE)}, 3
s_add_u32 {s(T0+8)}, {s(T0+8)}, {s(S_CT)}
s_lshl_b32 {s(T0+8)}, {s(T0+8)}, 8
s_lshl_b32 {s(S_KP)}, {s(S_KH)}, 3
s_add_u32 {s(T0+8)}, {s(T0+8)}, {s(S_KP)}
s_add_u32 {s(T0+8)}, {s(T0+8)}, {OFF_HST}
s_waitcnt lgkmcnt(0)''')
        for i in range(3):
            for hh in (0, 2):
                a(f'v_pk_add_f32 {v(own[i]+hh,2)}, {v(own[i]+hh,2)}, {v(rcv+4*i+hh,2)}')
        for i in range(3):
            for hh in range(2):
                a(f'v_cvt_pk_bf16_f32 {v(vHR+2*i+hh)}, {v(own[i]+2*hh)}, {v(own[i]+2*hh+1)}')
        a(f'buffer_store_dwordx4 {v(vHR,4)}, {v(vL16)}, {s(R_WS,4)}, {s(T0+6)} offen sc1')
        for i in range(6):
            a(f'v_lshlrev_b32 {v(xf+2*i)}, 16, {v(vHR+i)}\nv_and_b32 {v(xf+2*i+1)}, 0xffff0000, {v(vHR+i)}')
        sm = rcv; sq = rcv + 2
        a(f'v_pk_add_f32 {v(sm,2)}, {v(xf,2)}, {v(xf+2,2)}\nv_pk_mul_f32 {v(sq,2)}, {v(xf,2)}, {v(xf,2)}')
        a(f'v_pk_fma_f32 {v(sq,2)}, {v(xf+2,2)}, {v(xf+2,2)}, {v(sq,2)}')
        for i in (4, 6):
            a(f'v_pk_add_f32 {v(sm,2)}, {v(sm,2)}, {v(xf+i,2)}\nv_pk_fma_f32 {v(sq,2)}, {v(xf+i,2)}, {v(xf+i,2)}, {v(sq,2)}')
        a(f's_cmp_lg_u32 {s(S_KH)}, 0\ns_cbranch_scc1 L_p2ns')
        a(f'buffer_store_dwordx2 {v(vHR+4,2)}, {v(vL16)}, {s(R_WS,4)}, {s(T0+7)} offen sc1')
        for i in (8, 10):
            a(f'v_pk_add_f32 {v(sm,2)}, {v(sm,2)}, {v(xf+i,2)}\nv_pk_fma_f32 {v(sq,2)}, {v(xf+i,2)}, {v(xf+i,2)}, {v(sq,2)}')
        a('L_p2ns:')
        p = rcv + 4; q = rcv + 6
        a(f'''v_add_f32 {v(p)}, {v(sm)}, {v(sm+1)}
v_add_f32 {v(p+1)}, {v(sq)}, {v(sq+1)}
v_mov_b32 {v(q)}, {v(p)}
v_mov_b32 {v(q+1)}, {v(p+1)}
v_permlane32_swap_b32 {v(p)}, {v(q)}
v_permlane32_swap_b32 {v(p+1)}, {v(q+1)}
v_pk_add_f32 {v(p,2)}, {v(p,2)}, {v(q,2)}
v_mov_b32 {v(q)}, {v(p)}
v_mov_b32 {v(q+1)}, {v(p+1)}
v_permlane16_swap_b32 {v(p)}, {v(q)}
v_permlane16_swap_b32 {v(p+1)}, {v(q+1)}
v_pk_add_f32 {v(p,2)}, {v(p,2)}, {v(q,2)}
s_mov_b64 exec, 0xffff
buffer_store_dwordx2 {v(p,2)}, {v(vL16)}, {s(R_WS,4)}, {s(T0+8)} offen sc1
s_mov_b64 exec, -1''')
        stamp()

    if stop_after >= 3:
        va.reset(base_mark)
        S_T0 = T0 + 16; S_O3 = T0 + 17
        W1POS = lambda ks: 163840 - 7168 * (ks + 1)
        vD1 = va.a()
        a(f'''s_mul_i32 {s(S_T0)}, {s(S_MEM)}, 7
s_mul_i32 {s(T0+6)}, {s(S_MEM)}, 6
s_add_u32 {s(T0+6)}, {s(T0+6)}, 12
s_cmp_lt_u32 {s(S_MEM)}, 12
s_cselect_b32 {s(S_T0)}, {s(S_T0)}, {s(T0+6)}
s_and_b32 {s(S_O3)}, {s(S_T0)}, 1
s_lshl_b32 {s(T0+6)}, {s(S_T0)}, 5
s_sub_u32 {s(T0+7)}, 2211840, {s(T0+6)}
s_sub_u32 {s(T0+8)}, 3456, {s(T0+6)}''')
        srd(a, R_W1, P_W1, s(T0+6), s(T0+7))
        srd(a, R_B1, P_B1, s(T0+6), s(T0+8))
        a(f'''s_lshl_b32 {s(T0+6)}, {s(S_W)}, 6
v_add_u32 {v(t0)}, {s(T0+6)}, {v(vL)}
v_mul_u32_u24 {v(t1)}, 4682, {v(t0)}
v_lshrrev_b32 {v(t1)}, 16, {v(t1)}
v_lshlrev_b32 {v(t2)}, 4, {v(t0)}
s_movk_i32 {s(T0+7)}, {3456-224}
v_mad_u32_u24 {v(vD1)}, {v(t1)}, {s(T0+7)}, {v(t2)}
s_lshl_b32 {s(T0+8)}, {s(S_W)}, 10''')
        def w1dma(kss, tag):
            a(f's_cmp_eq_u32 {s(S_W)}, 7\ns_cbranch_scc1 L_w1{tag}')
            for ks in kss:
                a(f's_add_u32 m0, {s(T0+8)}, {W1POS(ks)}\ns_mov_b32 {s(T0+6)}, {ks*32*3456}')
                a(f'buffer_load_dwordx4 {v(vD1)}, {s(R_W1,4)}, {s(T0+6)} offen lds')
            a(f'L_w1{tag}:')
        a('s_waitcnt vmcnt(0)\ns_barrier')
        w1dma(range(20), 'a')
        b1r = va.a(14, 2); ab = va.a()
        a(f'''v_mov_b32 {v(t0)}, 0
v_lshlrev_b32 {v(t1)}, 2, {v(vL)}
ds_write_b32 {v(t1)}, {v(t0)}
ds_write_b32 {v(t1)}, {v(t0)} offset:256
v_lshrrev_b32 {v(ab)}, 4, {v(vL)}
v_lshlrev_b32 {v(ab)}, 3, {v(ab)}
s_lshl_b32 {s(T0+6)}, {s(S_O3)}, 5
s_cmp_eq_u32 {s(S_O3)}, 0
s_cselect_b32 {s(T0+7)}, 192, 0''')
        for t in range(6):
            a(f'buffer_load_dwordx2 {v(b1r+2*t,2)}, {v(ab)}, {s(R_B1,4)}, {s(T0+6)} offen offset:{32*t}')
        a(f'buffer_load_dwordx2 {v(b1r+12,2)}, {v(ab)}, {s(R_B1,4)}, {s(T0+7)} offen')
        aP = va.a(3); aS1 = va.a(3)
        WB = [20480, 20480 + 7 * 7168, 20480 + 14 * 7168]
        a(f'''v_lshrrev_b32 {v(t0)}, 2, {v(vL)}
v_mul_u32_u24 {v(t0)}, 224, {v(t0)}
v_and_b32 {v(t1)}, 3, {v(vL)}
v_lshl_add_u32 {v(t0)}, {v(t1)}, 3, {v(t0)}''')
        for i in range(3):
            a(f's_add_u32 {s(T0+8)}, {s(T0+6)}, {WB[i]}\nv_add_u32 {v(aP+i)}, {s(T0+8)}, {v(t0)}')
            a(f's_add_u32 {s(T0+8)}, {s(T0+7)}, {WB[i]}\nv_add_u32 {v(aS1+i)}, {s(T0+8)}, {v(t0)}')
        a('s_waitcnt lgkmcnt(0)')
        sync('s2', 1,
             lambda r: f's_lshl_b32 {s(T0+6)}, {s(S_GRP)}, 7\ns_add_u32 {s(T0+6)}, {s(T0+6)}, {OFF_C2}\nv_mov_b32 {v(r)}, {s(T0+6)}',
             1,
             lambda r: f'v_mov_b32 {v(r)}, {s(T0+6)}',
             16)
        stamp()
        vm = VM(a)
        X3 = va.a(80, 4); hs = va.a(8, 4); acc3 = va.a(28, 4); cs3 = va.a(28, 4); wf = [va.a(28, 4), va.a(28, 4)]
        S_ST3 = T0 + 8
        a(f'''s_lshl_b32 {s(S_ST3)}, {s(S_GRP)}, 3
s_add_u32 {s(S_ST3)}, {s(S_ST3)}, {s(S_W)}
s_mul_i32 {s(T0+6)}, {s(S_ST3)}, 20480
s_add_u32 {s(T0+6)}, {s(T0+6)}, {OFF_H}''')
        for ks in range(20):
            vm.op(f'buffer_load_dwordx4 {v(X3+4*ks,4)}, {v(vL16)}, {s(R_WS,4)}, {s(T0+6)} offen offset:{(ks&3)*1024} sc1', f'x{ks}')
            if ks & 3 == 3 and ks < 19: a(f's_add_u32 {s(T0+6)}, {s(T0+6)}, 4096')
        a(f's_lshl_b32 {s(T0+6)}, {s(S_ST3)}, 11\ns_add_u32 {s(T0+6)}, {s(T0+6)}, {OFF_HST}')
        for i in range(2):
            vm.op(f'buffer_load_dwordx4 {v(hs+4*i,4)}, {v(vL16)}, {s(R_WS,4)}, {s(T0+6)} offen offset:{1024*i} sc1', 'hs')
        for r in range(cs3, cs3 + 28): a(f'v_mov_b32 {v(r)}, 0')
        vm.wait('x0')
        a('s_barrier')
        def w1read(ks):
            pos = W1POS(ks); wi = (pos - 20480) // (7 * 7168); off = pos - WB[wi]
            for t in range(7):
                for jh in range(2):
                    ad_, o = (aP + wi, off + 32 * t + jh * 16 * 224) if t < 6 else (aS1 + wi, off + jh * 16 * 224)
                    a(f'ds_read_b64_tr_b16 {v(wf[ks&1]+4*t+2*jh,2)}, {v(ad_)} offset:{o}')
        w1read(0)
        for ks in range(20):
            if ks < 19: w1read(ks + 1)
            if ks: vm.wait(f'x{ks}')
            a(f's_waitcnt lgkmcnt({14 if ks < 19 else 0})')
            for t in range(7):
                a(f'{MF} {v(acc3+4*t,4)}, {v(wf[ks&1]+4*t,4)}, {v(X3+4*ks,4)}, {v(acc3+4*t,4) if ks else 0}')
            a(f's_cmp_lg_u32 {s(S_W)}, {ks & 7}\ns_cbranch_scc1 L_p3nc{ks}')
            for t in range(7):
                a(f'{MF} {v(cs3+4*t,4)}, {v(vONE,4)}, {v(wf[ks&1]+4*t,4)}, {v(cs3+4*t,4)}')
            a(f'L_p3nc{ks}:')
        stamp()
        a(f'v_lshlrev_b32 {v(t1)}, 2, {v(vL)}\ns_mov_b64 exec, 0xffff')
        for t in range(7):
            a(f'ds_add_f32 {v(t1)}, {v(cs3+4*t)} offset:{64*t}')
        a('s_mov_b64 exec, -1')
        vm.wait('hs')
        p = hs; q = hs + 2
        a(f'''v_pk_add_f32 {v(hs,2)}, {v(hs,2)}, {v(hs+2,2)}
v_pk_add_f32 {v(hs+4,2)}, {v(hs+4,2)}, {v(hs+6,2)}
v_pk_add_f32 {v(p,2)}, {v(hs,2)}, {v(hs+4,2)}
v_mov_b32 {v(q)}, {v(p)}
v_mov_b32 {v(q+1)}, {v(p+1)}
v_permlane32_swap_b32 {v(p)}, {v(q)}
v_permlane32_swap_b32 {v(p+1)}, {v(q+1)}
v_pk_add_f32 {v(p,2)}, {v(p,2)}, {v(q,2)}
v_mov_b32 {v(q)}, {v(p)}
v_mov_b32 {v(q+1)}, {v(p+1)}
v_permlane16_swap_b32 {v(p)}, {v(q)}
v_permlane16_swap_b32 {v(p+1)}, {v(q+1)}
v_pk_add_f32 {v(p,2)}, {v(p,2)}, {v(q,2)}
s_mov_b32 {s(T0+6)}, {fhex(1/640)}
s_mov_b32 {s(T0+7)}, {fhex(1e-5)}
v_mul_f32 {v(p)}, {s(T0+6)}, {v(p)}
v_mul_f32 {v(p+1)}, {s(T0+6)}, {v(p+1)}
v_fma_f32 {v(p+1)}, -{v(p)}, {v(p)}, {v(p+1)}
v_max_f32 {v(p+1)}, 0, {v(p+1)}
v_add_f32 {v(q)}, {s(T0+7)}, {v(p+1)}
v_rsq_f32 {v(q)}, {v(q)}
v_mul_f32 {v(q+1)}, {v(q)}, {v(q)}
v_fma_f32 {v(q+1)}, {v(q+1)}, {v(p+1)}, {s(T0+7)}
v_rsq_f32 {v(q+1)}, {v(q+1)}
v_mul_f32 {v(hs+4)}, {v(q)}, {v(q+1)}
v_mul_f32 {v(hs+5)}, -{v(p)}, {v(hs+4)}
v_lshrrev_b32 {v(t1)}, 4, {v(vL)}
v_lshlrev_b32 {v(t1)}, 4, {v(t1)}
s_waitcnt lgkmcnt(0)
s_barrier''')
        rr = hs + 4
        for t in range(7):
            a(f'ds_read_b128 {v(cs3+4*t,4)}, {v(t1)} offset:{64*t}')
        c0 = math.sqrt(2 / math.pi); K1 = -2 * LOG2E * c0; K2 = K1 * 0.044715
        C_K2 = T0 + 6
        k1v = vXR
        a(f's_mov_b32 {s(C_K2)}, {fhex(K2)}\nv_mov_b32 {v(k1v)}, {fhex(K1)}')
        S_GP = M_A; S_GS = M_A + 1
        a(f'''s_add_u32 {s(S_GP)}, {s(S_T0)}, 1
s_lshr_b32 {s(S_GP)}, {s(S_GP)}, 1
s_mul_i32 {s(S_GS)}, {s(S_ST3)}, 54
s_add_u32 {s(S_GP)}, {s(S_GP)}, {s(S_GS)}
s_cmp_eq_u32 {s(S_O3)}, 0
s_cselect_b32 {s(S_GS)}, 3, -1
s_add_u32 {s(S_GS)}, {s(S_GS)}, {s(S_GP)}
s_lshl_b32 {s(S_GS)}, {s(S_GS)}, 10
s_lshl_b32 {s(M_B)}, {s(S_O3)}, 3
s_add_u32 {s(S_GS)}, {s(S_GS)}, {s(M_B)}
s_add_u32 {s(S_GS)}, {s(S_GS)}, {OFF_G}
s_lshl_b32 {s(S_GP)}, {s(S_GP)}, 10
s_add_u32 {s(S_GP)}, {s(S_GP)}, {OFF_G}''')
        bt = wf[0]; w2_ = wf[1]; gp = X3
        for i in range(14):
            a(f'v_lshlrev_b32 {v(bt+2*i)}, 16, {v(b1r+i)}\nv_and_b32 {v(bt+2*i+1)}, 0xffff0000, {v(b1r+i)}')
        a('s_waitcnt lgkmcnt(0)')
        for t in range(7):
            x = acc3 + 4 * t; c = cs3 + 4 * t; b = bt + 4 * t; u = w2_ + 4 * t
            for i in (0, 2):
                a(f'v_pk_fma_f32 {v(b+i,2)}, {v(c+i,2)}, {v(rr,2)}, {v(b+i,2)} op_sel:[0,1,0] op_sel_hi:[1,1,1]')
            for i in (0, 2):
                a(f'v_pk_fma_f32 {v(x+i,2)}, {v(x+i,2)}, {v(rr,2)}, {v(b+i,2)} op_sel_hi:[1,0,1]')
            for i in (0, 2):
                a(f'v_pk_mul_f32 {v(u+i,2)}, {v(x+i,2)}, {v(x+i,2)}')
            for i in (0, 2):
                a(f'v_pk_fma_f32 {v(u+i,2)}, {v(u+i,2)}, {s(C_K2,2)}, {v(k1v,2)} op_sel_hi:[1,0,0]')
            for i in (0, 2):
                a(f'v_pk_mul_f32 {v(u+i,2)}, {v(u+i,2)}, {v(x+i,2)}')
            for i in range(4): a(f'v_exp_f32 {v(u+i)}, {v(u+i)}')
            for i in (0, 2):
                a(f'v_pk_add_f32 {v(u+i,2)}, {v(u+i,2)}, 1.0 op_sel_hi:[1,0]')
            for i in range(4): a(f'v_rcp_f32 {v(u+i)}, {v(u+i)}')
            for i in (0, 2):
                a(f'v_pk_mul_f32 {v(x+i,2)}, {v(x+i,2)}, {v(u+i,2)}')
            a(f'v_cvt_pk_bf16_f32 {v(gp+2*t)}, {v(x)}, {v(x+1)}\nv_cvt_pk_bf16_f32 {v(gp+2*t+1)}, {v(x+2)}, {v(x+3)}')
            if t & 1:
                a(f'buffer_store_dwordx4 {v(gp+2*t-2,4)}, {v(vL16)}, {s(R_WS,4)}, {s(S_GP)} offen offset:{(t>>1)*1024} sc1')
        a(f's_cmp_ge_u32 {s(S_MEM)}, 12\ns_cbranch_scc1 L_p3ns')
        a(f'buffer_store_dwordx2 {v(gp+12,2)}, {v(vL16)}, {s(R_WS,4)}, {s(S_GS)} offen sc1')
        a('L_p3ns:')
        stamp()

    if stop_after >= 4:
        va.reset(base_mark)
        vm = VM(a)
        S_MD = T0 + 17
        a(f's_lshl_b32 {s(S_MD)}, {s(S_W)}, 10')
        SLOT4 = lambda c: (c % 4) * SLOT
        def w2dma(c):
            nblk = 5 if c < 6 else 4
            a(f's_mov_b32 {s(T0+6)}, {c*256*1280}')
            for j in range(nblk):
                a(f's_add_u32 m0, {s(S_MD)}, {SLOT4(c)+j*8192}')
                vm.op(f'buffer_load_dwordx4 {v(vDW+j)}, {s(R_W2,4)}, {s(T0+6)} offen lds', f'sc{c}')
        a('s_waitcnt vmcnt(0)\ns_barrier')
        for c in range(4): w2dma(c)
        b2r = va.a(6, 2); ab = va.a()
        a(f's_mul_i32 {s(T0+6)}, {s(S_CT)}, 160\ns_sub_u32 {s(T0+7)}, 1280, {s(T0+6)}')
        srd(a, R_B2, P_B2, s(T0+6), s(T0+7))
        a(f'v_lshrrev_b32 {v(ab)}, 4, {v(vL)}\nv_lshlrev_b32 {v(ab)}, 3, {v(ab)}')
        vm.op(f'buffer_load_dwordx2 {v(b2r,2)}, {v(ab)}, {s(R_B2,4)}, {s(S_CM)} offen', 'b2')
        vm.op(f'buffer_load_dwordx2 {v(b2r+2,2)}, {v(ab)}, {s(R_B2,4)}, {s(S_CM)} offen offset:32', 'b2')
        vm.op(f'buffer_load_dwordx2 {v(b2r+4,2)}, {v(ab)}, {s(R_B2,4)}, {s(S_CS)} offen', 'b2')
        aW = va.a(12)
        a(f'''v_lshrrev_b32 {v(t0)}, 2, {v(vL)}
v_mul_u32_u24 {v(t0)}, 160, {v(t0)}
v_and_b32 {v(t1)}, 3, {v(vL)}
v_lshl_add_u32 {v(t0)}, {v(t1)}, 3, {v(t0)}
s_mul_i32 {s(T0+6)}, {s(S_KH)}, 5120''')
        for i, sc in enumerate((S_CM, S_CO, S_CS)):
            a(f's_add_u32 {s(T0+7)}, {s(T0+6)}, {s(sc)}\nv_add_u32 {v(aW+i)}, {s(T0+7)}, {v(t0)}')
            for sl in range(1, 4):
                a(f'v_add_u32 {v(aW+3*sl+i)}, {sl*SLOT}, {v(aW+i)}')
        sync('s3', 1,
             lambda r: f's_lshl_b32 {s(T0+6)}, {s(S_GRP)}, 7\ns_add_u32 {s(T0+6)}, {s(T0+6)}, {OFF_C3}\nv_mov_b32 {v(r)}, {s(T0+6)}',
             1,
             lambda r: f'v_mov_b32 {v(r)}, {s(T0+6)}',
             16)
        stamp()
        X4 = va.a(108, 4); acc4 = va.a(20, 4); wf = [va.a(20, 4), va.a(20, 4)]
        S_GX = T0 + 8
        a(f'''s_mul_i32 {s(S_GX)}, {s(S_STILE)}, 54
s_add_u32 {s(S_GX)}, {s(S_GX)}, {s(S_KH)}
s_lshl_b32 {s(S_GX)}, {s(S_GX)}, 10
s_add_u32 {s(S_GX)}, {s(S_GX)}, {OFF_G}''')
        def xload(i):
            vm.op(f'buffer_load_dwordx4 {v(X4+4*i,4)}, {v(vL16)}, {s(R_WS,4)}, {s(S_GX)} offen offset:{(i&1)*2048} sc1', f'x{i}')
            if i & 1: a(f's_add_u32 {s(S_GX)}, {s(S_GX)}, 4096')
        PRE = 10
        for i in range(PRE): xload(i)
        tl = [(0, 0), (0, 32), (1, 0), (1, 32), (2, 0)]
        def w2read(i):
            c = i // 4; off = (i % 4) * 10240
            for t, (ai, ci) in enumerate(tl):
                for jh in range(2):
                    a(f'ds_read_b64_tr_b16 {v(wf[i&1]+4*t+2*jh,2)}, {v(aW+3*(c%4)+ai)} offset:{off+ci+jh*16*160}')
        vm.wait('x0')
        a('s_barrier')
        w2read(0)
        for i in range(27):
            nxt = i + 1
            if nxt < 27:
                if nxt % 4 == 0:
                    c = nxt // 4
                    if vm.has(f'sc{c}'): vm.wait(f'sc{c}')
                    a('s_waitcnt lgkmcnt(0)\ns_barrier')
                    if c + 3 <= 6: w2dma(c + 3)
                w2read(nxt)
            if i + PRE < 27: xload(i + PRE)
            if vm.has(f'x{i}'): vm.wait(f'x{i}')
            a(f's_waitcnt lgkmcnt({10 if nxt < 27 else 0})')
            for t in range(5):
                a(f'{MF} {v(acc4+4*t,4)}, {v(wf[i&1]+4*t,4)}, {v(X4+4*i,4)}, {v(acc4+4*t,4) if i else 0}')
        stamp()
        XCH = 3 * SLOT
        rcv = X4; xf = X4 + 12; bf = X4 + 24
        axw = va.a(); axr = va.a()
        a(f'''s_mul_i32 {s(T0+6)}, {s(S_W)}, 3072
s_add_u32 {s(T0+6)}, {s(T0+6)}, {XCH}
v_add_u32 {v(axw)}, {s(T0+6)}, {v(vL16)}
s_xor_b32 {s(T0+6)}, {s(S_W)}, 4
s_mul_i32 {s(T0+6)}, {s(T0+6)}, 3072
s_add_u32 {s(T0+6)}, {s(T0+6)}, {XCH}
v_add_u32 {v(axr)}, {s(T0+6)}, {v(vL16)}''')
        for i in range(3):
            a(f'ds_write_b128 {v(axw)}, {v(acc4+8+4*i,4)} offset:{1024*i}')
        a('s_waitcnt lgkmcnt(0)\ns_barrier')
        for i in range(3):
            a(f'ds_read_b128 {v(rcv+4*i,4)}, {v(axr)} offset:{1024*i}')
        for i in range(6):
            a(f'v_lshlrev_b32 {v(xf+2*i)}, 16, {v(vHR+i)}\nv_and_b32 {v(xf+2*i+1)}, 0xffff0000, {v(vHR+i)}')
            a(f'v_lshlrev_b32 {v(bf+2*i)}, 16, {v(b2r+i)}\nv_and_b32 {v(bf+2*i+1)}, 0xffff0000, {v(b2r+i)}')
        own = [acc4, acc4 + 4, acc4 + 16]
        for i in range(3):
            for hh in (0, 2):
                a(f'v_pk_add_f32 {v(xf+4*i+hh,2)}, {v(xf+4*i+hh,2)}, {v(bf+4*i+hh,2)}')
                a(f'v_pk_add_f32 {v(own[i]+hh,2)}, {v(own[i]+hh,2)}, {v(xf+4*i+hh,2)}')
        a(f's_add_u32 {s(T0+6)}, {s(S_RB)}, {s(S_CM)}\ns_add_u32 {s(T0+7)}, {s(S_RB)}, {s(S_CS)}\ns_waitcnt lgkmcnt(0)')
        for i in range(3):
            for hh in (0, 2):
                a(f'v_pk_add_f32 {v(own[i]+hh,2)}, {v(own[i]+hh,2)}, {v(rcv+4*i+hh,2)}')
        for i in range(3):
            for hh in range(2):
                a(f'v_cvt_pk_bf16_f32 {v(bf+2*i+hh)}, {v(own[i]+2*hh)}, {v(own[i]+2*hh+1)}')
        a(f'buffer_store_dwordx2 {v(bf,2)}, {v(vRO)}, {s(R_OUT,4)}, {s(T0+6)} offen')
        a(f'buffer_store_dwordx2 {v(bf+2,2)}, {v(vRO)}, {s(R_OUT,4)}, {s(T0+6)} offen offset:32')
        a(f's_cmp_lg_u32 {s(S_KH)}, 0\ns_cbranch_scc1 L_p4ns')
        a(f'buffer_store_dwordx2 {v(bf+4,2)}, {v(vRO)}, {s(R_OUT,4)}, {s(T0+7)} offen')
        a('L_p4ns:')
        stamp()
    a('L_end:\ns_endpgm')
    body = a.finalize()
    return body, va.hi

def wrap(body, nvgpr, listmode=False):
    ref = open('cdna_kernels/%s.s.ref' % NAME).read().split('\n')
    hdr = [l for l in ref if l.startswith(';') and '@launch' not in l]
    kn = NAME + '_kernel'
    nv = 256
    if listmode:
        launch = f'; @launch kernel={kn} grid=(256,1,1) block=(512,1,1) lds=163840'
    else:
        launch = '; @launch grid=(256,1,1) block=(512,1,1) lds=163840'
    s_ = '\n'.join(hdr) + '\n' + launch + '\n'
    s_ += f'''.amdgcn_target "amdgcn-amd-amdhsa--gfx950"
.text
.globl {kn}
.p2align 8
.type {kn},@function
{kn}:
{body}.section .rodata,"a"
.p2align 6
.amdhsa_kernel {kn}
  .amdhsa_next_free_vgpr {nv}
  .amdhsa_next_free_sgpr 102
  .amdhsa_accum_offset {nv}
  .amdhsa_group_segment_fixed_size 0
  .amdhsa_kernarg_size 88
  .amdhsa_user_sgpr_count 2
  .amdhsa_user_sgpr_kernarg_segment_ptr 1
  .amdhsa_system_sgpr_workgroup_id_x 1
.end_amdhsa_kernel
'''
    return s_

if __name__ == '__main__':
    import argparse
    ap = argparse.ArgumentParser()
    ap.add_argument('--stop', type=int, default=4)
    ap.add_argument('--ts', action='store_true')
    ap.add_argument('--list', action='store_true')
    ap.add_argument('-o', default='cdna_kernels/%s.s' % NAME)
    args = ap.parse_args()
    body, hi = gen(args.stop, args.ts)
    open(args.o, 'w').write(wrap(body, hi, args.list))
    print('vgpr hi', hi, 'lines', body.count('\n'))
```

```python
import re

REG_RE = re.compile(r'(?<![\w.])([vas])(?:(\d+)(?![\w\[])|\[(\d+):(\d+)\])')

def regs_of(op):
    out = set()
    op = op.strip()
    neg = op
    for m in REG_RE.finditer(op):
        k = m.group(1)
        if m.group(2) is not None:
            out.add((k, int(m.group(2))))
        else:
            for i in range(int(m.group(3)), int(m.group(4)) + 1):
                out.add((k, i))
    if re.search(r'\bvcc\b', op): out |= {('s', 'vcc')}
    if re.search(r'\bexec\b', op): out |= {('s', 'exec')}
    if re.search(r'\bm0\b', op): out |= {('s', 'm0')}
    return out

TRANS = ('v_exp_f32', 'v_log_f32', 'v_rcp_f32', 'v_rsq_f32', 'v_sqrt_f32', 'v_sin_f32', 'v_cos_f32')

class Ins:
    __slots__ = ('text', 'mn', 'ops', 'kind', 'defs', 'uses', 'A', 'B', 'C', 'data', 'label', 'target', 'states', 'passes', 'dpp')
    def __init__(self, text):
        self.text = text
        t = text.split(';')[0].strip()
        self.label = None; self.target = None
        self.defs = set(); self.uses = set(); self.A = self.B = self.C = set(); self.data = set()
        self.states = 1; self.passes = 0; self.dpp = False
        if t.endswith(':'):
            self.kind = 'label'; self.label = t[:-1]; self.mn = ''; self.ops = []; self.states = 0
            return
        if t == '' or t.startswith('.'):
            self.kind = 'dir'; self.mn = ''; self.ops = []; self.states = 0
            return
        parts = t.split(None, 1)
        mn = parts[0]; self.mn = mn
        rest = parts[1] if len(parts) > 1 else ''
        ops = []; cur = ''; d = 0
        for ch in rest:
            if ch == '[': d += 1
            if ch == ']': d -= 1
            if ch == ',' and d == 0:
                ops.append(cur.strip()); cur = ''
            else:
                cur += ch
        if cur.strip(): ops.append(cur.strip())
        mods = ''
        if ops:
            sp = ops[-1].split(None, 1)
            if len(sp) > 1:
                ops[-1] = sp[0]; mods = sp[1]
        self.ops = ops
        R = [regs_of(o) for o in ops]
        U = lambda l: set().union(*l) if l else set()
        if mn.startswith('v_mfma'):
            self.kind = 'mfma'
            self.defs = R[0]; self.A = R[1]; self.B = R[2]; self.C = R[3]; self.uses = U(R[1:])
            self.passes = 8 if '32x32x16' in mn else (4 if '16x16x32' in mn else None)
            assert self.passes, mn
        elif mn.startswith('v_'):
            self.kind = 'valu'
            assert not re.search(r'op_sel:\[\d,1', t), 'op_sel on src1 is unsafe: ' + t
            self.dpp = ('dpp' in mn) or ('row_' in mods) or ('quad_perm' in mods)
            if mn.startswith('v_cmp'):
                self.defs = R[0]; self.uses = U(R[1:])
                if mn.startswith('v_cmpx'): self.defs |= {('s', 'exec')}
            elif 'permlane' in mn and 'swap' in mn:
                self.defs = R[0] | R[1]; self.uses = R[0] | R[1]
            elif re.match(r'v_(add|sub|subrev|addc|subb)_co_', mn):
                self.defs = R[0] | R[1]; self.uses = U(R[2:])
            else:
                self.defs = R[0]; self.uses = U(R[1:])
                if mn.startswith(('v_fmac', 'v_dot2c', 'v_pk_fmac')) or self.dpp or 'sdwa' in mn:
                    self.uses |= R[0]
                if mn.startswith('v_cndmask') and len(ops) == 3:
                    self.uses |= {('s', 'vcc')}
        elif mn.startswith('ds_'):
            self.kind = 'ds'
            if mn.startswith(('ds_read', 'ds_bpermute', 'ds_permute', 'ds_swizzle')) or '_rtn' in mn:
                self.defs = R[0]; self.uses = U(R[1:])
            else:
                self.uses = U(R); self.data = U(R[1:])
        elif mn.startswith(('buffer_', 'global_')):
            self.kind = 'vmem'
            if mn in ('buffer_wbl2', 'buffer_inv'):
                pass
            elif ' lds' in (' ' + mods) or 'load_lds' in mn:
                self.uses = U(R) | {('s', 'm0')}
            elif 'load' in mn:
                self.defs = R[0]; self.uses = U(R[1:])
            elif mn.startswith('buffer_'):
                self.uses = U(R); self.data = R[0]
                if 'atomic' in mn and 'sc0' in mods: self.defs = R[0]
            else:
                if 'atomic' in mn and 'sc0' in mods:
                    self.defs = R[0]; self.uses = U(R[1:]); self.data = R[2]
                else:
                    self.uses = U(R); self.data = R[1]
        elif mn.startswith('s_'):
            self.kind = 'salu'
            if mn == 's_nop':
                self.states = int(ops[0], 0) + 1
            elif mn in ('s_branch',) or mn.startswith('s_cbranch'):
                self.kind = 'branch'; self.target = ops[0]
            elif mn.startswith(('s_cmp', 's_bitcmp', 's_waitcnt', 's_barrier', 's_setprio', 's_sleep', 's_endpgm', 's_setreg')):
                self.uses = U(R)
            elif mn.startswith(('s_load', 's_memtime', 's_memrealtime', 's_getpc', 's_getreg')):
                self.kind = 'smem' if not mn.startswith(('s_getpc', 's_getreg')) else 'salu'
                self.defs = R[0]; self.uses = U(R[1:])
            else:
                self.defs = R[0]; self.uses = U(R[1:])
                if 'saveexec' in mn: self.defs = self.defs | {('s', 'exec')}
        else:
            raise ValueError('unknown instruction ' + text)

def isv(r): return r[0] in 'va'

def need(p, c):
    n = 0
    pv = {r for r in p.defs if isv(r)}
    ps = {r for r in p.defs if not isv(r)}
    if p.kind == 'valu':
        if c.kind == 'mfma' and pv & c.uses: n = max(n, 2)
        if c.kind == 'mfma' and ('s', 'exec') in ps: n = max(n, 4)
        if c.kind == 'vmem' and ps & c.uses: n = max(n, 5)
        if c.kind == 'valu':
            if ps & c.uses:
                n = max(n, 4 if c.mn.startswith(('v_readlane', 'v_writelane')) else 2)
            if c.mn.startswith(('v_readfirstlane', 'v_readlane')) and pv & c.uses: n = max(n, 1)
            if 'permlane' in c.mn and pv & c.uses: n = max(n, 2)
            if c.dpp and pv & c.uses: n = max(n, 2)
            if c.dpp and ('s', 'exec') in ps: n = max(n, 5)
            if p.mn.startswith(TRANS) and pv & (c.uses | c.defs) and not c.mn.startswith(TRANS): n = max(n, 1)
            if ('sdwa' in p.mn or 'op_sel' in p.text and not p.mn.startswith('v_pk')) and pv & (c.uses | c.defs): n = max(n, 1)
        if c.kind in ('salu', 'branch', 'smem') and ps & c.uses: n = max(n, 1)
        if p.mn.startswith(TRANS) and c.kind in ('vmem', 'ds', 'mfma') and pv & c.uses: n = max(n, 2 if c.kind == 'mfma' else 1)
    if p.kind == 'salu' and ('s', 'm0') in ps and c.kind == 'vmem' and ('s', 'm0') in c.uses: n = max(n, 1)
    if p.kind == 'mfma':
        big = {4: 8, 8: 12}[p.passes]; ovl = {4: 6, 8: 10}[p.passes]; war = {4: 3, 8: 7}[p.passes]
        if c.kind == 'mfma':
            if pv & (c.A | c.B): n = max(n, big)
            if pv & c.C and not (c.C == pv and c.passes == p.passes): n = max(n, ovl)
            if pv & c.defs and not (c.C == pv): n = max(n, ovl)
        elif c.kind in ('valu', 'vmem', 'ds'):
            if pv & (c.uses | c.defs): n = max(n, big)
            if p.C & c.defs: n = max(n, war)
    if p.kind == 'vmem' and len(p.data) >= 3 and p.data & c.defs:
        n = max(n, 2 if c.kind == 'valu' else 1)
    return n

WIN = 14

class Asm:
    def __init__(self):
        self.ins = []
    def __call__(self, text):
        if isinstance(text, (list, tuple)):
            for t in text: self(t)
            return
        for line in text.split('\n'):
            line = line.strip()
            if not line: continue
            if line.startswith(';'):
                i = Ins('.x'); i.text = line; self.ins.append(i)
                continue
            self.ins.append(Ins(line))
    def label(self, name): self(name + ':')

    def _req(self, before, c):
        dist = 0; req = 0
        for p in reversed(before):
            if dist >= WIN: break
            if p.states:
                k = need(p, c)
                if k > dist: req = max(req, k - dist)
                dist += p.states
        return req

    def _autowait(self):
        out = []
        Q = {'v': [], 'l': []}
        saved = {}
        opt = False; tag = None; dummy = set()
        LIM = {'v': 63, 'l': 15}; NM = {'v': 'vmcnt', 'l': 'lgkmcnt'}
        def younger(q, idx): return sum(1 for e in q[idx + 1:] if not e[2] and not e[3])
        def dowait(k, idx):
            q = Q[k]
            n = min(younger(q, idx), LIM[k])
            apply(k, n)
            return f'{NM[k]}({n})'
        def apply(k, n):
            q = Q[k]
            keep = [i for i in range(len(q)) if younger(q, i) < n]
            Q[k] = [q[i] for i in keep]
        for c in self.ins:
            t = c.text
            if t.startswith(';@'):
                w = t[2:].split()
                if w[0] == 'tag': tag = w[1]
                elif w[0] == 'opt': opt = (w[1] == 'on')
                elif w[0] == 'mark': Q['v'].append([set(), w[1], False, True])
                elif w[0] in ('wait', 'lwait'):
                    k = 'v' if w[0] == 'wait' else 'l'
                    idx = [i for i, e in enumerate(Q[k]) if e[1] == w[1]]
                    if idx: out.append(Ins('s_waitcnt ' + dowait(k, idx[-1])))
                elif w[0] == 'save': saved[w[1]] = {k: [list(e) for e in q] for k, q in Q.items()}
                elif w[0] == 'restore': Q = {k: [list(e) for e in q] for k, q in saved[w[1]].items()}
                elif w[0] == 'dummy': dummy.add(('v', int(w[1][1:])))
                elif w[0] == 'clearv': Q['v'] = []
                elif w[0] == 'clearl': Q['l'] = []
                else: raise ValueError(t)
                continue
            if c.states:
                touched = {r for r in (c.uses | c.defs) if isv(r)} - dummy
                ws = []
                for k in ('v', 'l'):
                    idx = [i for i, e in enumerate(Q[k]) if e[0] & touched]
                    if idx:
                        if opt:
                            keep = [list(e) for e in Q[k]]
                            ws.append(dowait(k, idx[-1]))
                            Q[k] = [e for e in keep if not (e[2] and e[0] & touched)]
                        else:
                            ws.append(dowait(k, idx[-1]))
                if ws: out.append(Ins('s_waitcnt ' + ' '.join(ws)))
                if c.mn == 's_waitcnt' and not opt:
                    m = re.search(r'vmcnt\((\d+)\)', t)
                    if m: apply('v', int(m.group(1)))
                    m = re.search(r'lgkmcnt\((\d+)\)', t)
                    if m: apply('l', int(m.group(1)))
                if c.mn == 's_waitcnt' and opt:
                    if 'vmcnt(0)' in t: Q['v'] = [e for e in Q['v'] if not e[2]]
                    if 'lgkmcnt(0)' in t: Q['l'] = [e for e in Q['l'] if not e[2]]
                if c.kind == 'vmem' and c.mn not in ('buffer_wbl2', 'buffer_inv'):
                    Q['v'].append([{r for r in c.defs if isv(r)}, tag, opt, False]); tag = None
                elif c.kind == 'ds':
                    Q['l'].append([{r for r in c.defs if isv(r)}, tag, opt, False]); tag = None
            out.append(c)
        return out

    def finalize(self):
        src = self._autowait()
        out = []
        for c in src:
            if c.states:
                win = []
                for p in reversed(out):
                    if p.mn in ('s_branch', 's_endpgm'): break
                    win.append(p)
                    if len(win) > 3 * WIN: break
                win.reverse()
                r = self._req(win, c)
                while r > 0:
                    k = min(r, 16)
                    out.append(Ins(f's_nop {k-1}')); r -= k
            out.append(c)
        lab = {c.label: i for i, c in enumerate(out) if c.kind == 'label'}
        for i, c in enumerate(out):
            if c.kind == 'branch':
                j = lab[c.target]
                pre = []
                for p in reversed(out[:i + 1]):
                    if p is not c and p.mn in ('s_branch', 's_endpgm'): break
                    pre.append(p)
                    if len(pre) > 3 * WIN: break
                pre.reverse()
                post = []
                for q in out[j:j + 3 * WIN]:
                    if q.states:
                        r = self._req(pre + post, q)
                        assert r == 0, f'hazard across branch {c.text} -> {q.text} needs {r} more'
                    post.append(q)
                    if q.mn in ('s_branch', 's_endpgm'): break
        self.out = out
        return '\n'.join((c.text if c.kind in ('label', 'dir') else '  ' + c.text) for c in out) + '\n'

def weave(main, fill, start=0, per=1):
    out = []; k = 0
    for i, m in enumerate(main):
        out.append(m)
        if i >= start:
            for _ in range(per):
                if k < len(fill): out.append(fill[k]); k += 1
    out += fill[k:]
    return out

def spread(main, fill, start=0, end=None):
    end = len(main) if end is None else end
    n = max(1, end - start)
    out = []; k = 0
    for i, m in enumerate(main):
        out.append(m)
        if start <= i < end:
            tgt = (len(fill) * (i - start + 1) + n - 1) // n
            while k < tgt: out.append(fill[k]); k += 1
    out += fill[k:]
    return out
```

```python
import sys, math, struct
sys.path.insert(0, 'gen')
from asmlib import Asm, weave, spread

NAME = 'sequential_preLN__linear_attn_block__mixer_channel_mlp__prompt'

OFF_KV = 0
OFF_C1 = 65536
OFF_C2 = 94208
OFF_C3 = 100352
OFF_C4 = 102400
ZBYTES = 102400
OFF_PQ = 1 << 20
OFF_H = 5 << 20
OFF_HST = 8 << 20
OFF_G = 9 << 20
OFF_W2P = 17 << 20
OFF_W1P = OFF_W2P + 540 * 4096
OFF_TS = 24 << 20
WS_REC = 32 << 20

LOG2E = 1.4426950408889634
def f2u(x): return struct.unpack('<I', struct.pack('<f', x))[0]
def fhex(x): return '0x%08x' % f2u(x)

class VA:
    def __init__(self, start, limit=256):
        self.cur = start; self.limit = limit; self.hi = start
    def a(self, n=1, al=1):
        self.cur = (self.cur + al - 1) // al * al
        r = self.cur; self.cur += n
        assert self.cur <= self.limit, 'out of VGPRs'
        self.hi = max(self.hi, self.cur)
        return r
    def mark(self): return self.cur
    def reset(self, m): self.cur = m

def v(r, n=1): return f'v{r}' if n == 1 else f'v[{r}:{r+n-1}]'
def s(r, n=1): return f's{r}' if n == 1 else f's[{r}:{r+n-1}]'

P_X, P_WQKV, P_WO, P_BX, P_W1, P_B1, P_W2, P_B2, P_OUT, P_DBG, P_WS = range(4, 26, 2)
S_W = 26; S_RT1 = 27; S_HP = 28; S_GRP = 29; S_MEM = 30; S_CT = 31
R_X = 32; R_WQ = 36; R_WO = 40; R_W1 = 44; R_W2 = 48; R_WS = 52; R_OUT = 56; R_DBG = 60; R_B1 = 64; R_B2 = 68
T0 = 72
S_MG = 80; S_KH = 81; S_T = 82; S_STILE = 83; S_CM = 84; S_CO = 85; S_CS = 86; S_RB = 87; S_ODD = 88; S_MD = 89
M_A = 90; M_B = 92; M_C = 94; M_D = 96
S_TS = 98
S_U0 = 100; S_U1 = 101

def srd(a, r, ptr, add, nrec):
    if add is None:
        a(f's_mov_b32 {s(r)}, {s(ptr)}\ns_mov_b32 {s(r+1)}, {s(ptr+1)}')
    else:
        a(f's_add_u32 {s(r)}, {s(ptr)}, {add}\ns_addc_u32 {s(r+1)}, {s(ptr+1)}, 0')
    a(f's_mov_b32 {s(r+2)}, {nrec}\ns_mov_b32 {s(r+3)}, 0x20000')

def mask64(a, r, val):
    a(f's_mov_b32 {s(r)}, 0x{val & 0xffffffff:08x}\ns_mov_b32 {s(r+1)}, 0x{val >> 32:08x}')

def lanemask(f):
    m = 0
    for l in range(64):
        if f(l): m |= 1 << l
    return m

MF = 'v_mfma_f32_16x16x32_bf16'
SLOT = 40960
OPT = {}

def gen(stop_after=4, ts=False):
    QXOR = OPT.get('qxor', 1)
    a = Asm()
    va = VA(1)
    vL = va.a(); vL16 = va.a(); vRO = va.a(); vONE = va.a(4, 4)
    vHR = va.a(6, 2)
    vDUM = va.a(); vD10 = va.a()
    vTmp = va.a(8, 4)
    base_mark = va.mark()
    vXR = va.a(6, 2)
    xr_mark = va.mark()
    t0, t1, t2, t3, t4, t5, t6, t7 = range(vTmp, vTmp + 8)
    names = []
    RT = ['start', 'p1loop', 'drained1', 'sync1', 'drained2', 'sync2', 'drained3', 'sync3', 'end']
    def stamp_txt(name, key='fine3'):
        if not ts or not OPT.get(key): return ''
        idx = len(names); names.append(name)
        return f';@opt on\ns_memtime {s(S_TS,2)}\ns_waitcnt lgkmcnt(0)\nv_writelane_b32 v0, {s(S_TS)}, {idx}\n'
    def stamp(name, idx=None):
        if not ts: return
        if idx is None:
            idx = len(names); names.append(name)
        a(f''';@opt on
s_memtime {s(S_TS,2)}
s_waitcnt lgkmcnt(0)
v_writelane_b32 v0, {s(S_TS)}, {idx}
;@opt off''')
        if name in RT:
            a(f';@opt on\ns_memrealtime {s(S_TS,2)}\ns_waitcnt lgkmcnt(0)\nv_writelane_b32 v0, {s(S_TS)}, {63 - RT.index(name)}\n;@opt off')
        return idx

    a(f'''s_cmp_ge_u32 s2, 256
s_cbranch_scc1 L_end
s_load_dwordx16 s[4:19], s[0:1], 0
s_load_dwordx4 s[20:23], s[0:1], 64
s_load_dwordx2 s[24:25], s[0:1], 80
s_getpc_b64 {s(T0+6,2)}
s_lshr_b32 {s(S_T)}, s2, 3
v_lshrrev_b32 {v(t0)}, 5, v0
s_lshl_b32 {s(T0+4)}, {s(S_T)}, 11
v_lshl_add_u32 {v(t1)}, {v(t0)}, 7, {s(T0+4)}
v_min_u32 {v(t1)}, CODE_BYTES, {v(t1)}
s_mov_b32 exec_lo, 1
s_mov_b32 exec_hi, 1
global_load_dword {v(vDUM)}, {v(t1)}, {s(T0+6,2)}
s_mov_b64 exec, -1
v_lshrrev_b32 {v(t0)}, 6, v0
v_and_b32 {v(vL)}, 63, v0
v_readfirstlane_b32 {s(S_W)}, {v(t0)}
s_and_b32 {s(T0)}, s2, 7
s_and_b32 {s(S_RT1)}, {s(T0)}, 3
s_lshl_b32 {s(S_RT1)}, {s(S_RT1)}, 2
s_and_b32 {s(T0+2)}, {s(S_T)}, 3
s_add_u32 {s(S_RT1)}, {s(S_RT1)}, {s(T0+2)}
s_lshr_b32 {s(S_HP)}, {s(T0)}, 2
s_lshl_b32 {s(S_HP)}, {s(S_HP)}, 3
s_lshr_b32 {s(T0+3)}, {s(S_T)}, 2
s_add_u32 {s(S_HP)}, {s(S_HP)}, {s(T0+3)}
s_and_b32 {s(S_MG)}, {s(S_W)}, 3
s_lshr_b32 {s(S_KH)}, {s(S_W)}, 2
v_lshlrev_b32 {v(vL16)}, 4, {v(vL)}
s_cmp_ge_u32 {s(S_W)}, 4
;@save p1
s_cbranch_scc1 L_p1c''')

    def late_ids():
        a(f'''s_and_b32 {s(T0)}, s2, 7
s_lshl_b32 {s(S_GRP)}, {s(T0)}, 1
s_and_b32 {s(T0+4)}, {s(S_T)}, 1
s_add_u32 {s(S_GRP)}, {s(S_GRP)}, {s(T0+4)}
s_lshr_b32 {s(S_MEM)}, {s(S_T)}, 1
s_and_b32 {s(S_CT)}, {s(S_MEM)}, 7
s_and_b32 {s(S_ODD)}, {s(S_CT)}, 1
s_lshl_b32 {s(S_STILE)}, {s(S_GRP)}, 3
s_lshr_b32 {s(T0+4)}, {s(S_MEM)}, 3
s_lshl_b32 {s(T0+4)}, {s(T0+4)}, 2
s_add_u32 {s(S_STILE)}, {s(S_STILE)}, {s(T0+4)}
s_add_u32 {s(S_STILE)}, {s(S_STILE)}, {s(S_MG)}
s_lshl_b32 {s(T0+4)}, {s(S_ODD)}, 5
s_lshl_b32 {s(T0+5)}, {s(S_KH)}, 6
s_add_u32 {s(S_CM)}, {s(T0+4)}, {s(T0+5)}
s_xor_b32 {s(T0+5)}, {s(T0+5)}, 64
s_add_u32 {s(S_CO)}, {s(T0+4)}, {s(T0+5)}
s_cmp_eq_u32 {s(S_ODD)}, 0
s_cselect_b32 {s(S_CS)}, 128, 0
s_mul_i32 {s(S_RB)}, {s(S_STILE)}, 20480
s_mul_i32 {s(T0+4)}, {s(S_CT)}, 160
s_add_u32 {s(S_RB)}, {s(S_RB)}, {s(T0+4)}
s_lshl_b32 {s(S_MD)}, {s(S_W)}, 10
s_sub_u32 {s(T0+5)}, 819200, {s(T0+4)}
s_sub_u32 {s(T0+6)}, 1280, {s(T0+4)}''')
        srd(a, R_WO, P_WO, s(T0+4), s(T0+5))
        srd(a, R_B2, P_B2, s(T0+4), s(T0+6))
        srd(a, R_DBG, P_DBG, None, 256)
        srd(a, R_OUT, P_OUT, None, 2621440)
        for i in range(4): a(f'v_mov_b32 {v(vONE+i)}, 0x3f803f80')
        a(f'''v_and_b32 {v(t0)}, 15, {v(vL)}
v_mul_u32_u24 {v(t0)}, 1280, {v(t0)}
v_lshrrev_b32 {v(t1)}, 4, {v(vL)}
v_lshl_add_u32 {v(vRO)}, {v(t1)}, 3, {v(t0)}''')

    RQ, RK, RV = 16384, 24576, 32768
    WO = 24576
    ST = 126976; CS = ST + 1024; QX = ST + 2048; PKS = QX + 24576
    KVR = 0
    ool = []

    def phi4(x, tmp, cL, cE6L, e6v):
        L = [f'v_pk_fma_f32 {v(tmp+i,2)}, {v(x+i,2)}, {v(cL,2)}, {v(cE6L,2)} op_sel_hi:[1,0,0]' for i in (0, 2)]
        L += [f'v_exp_f32 {v(tmp+i)}, {v(tmp+i)} clamp' for i in range(4)]
        L += [f'v_max_f32 {v(x+i)}, {v(e6v)}, {v(x+i)}' for i in range(4)]
        L += [f'v_pk_add_f32 {v(x+i,2)}, {v(x+i,2)}, {v(tmp+i,2)}' for i in (0, 2)]
        return L
    mk = lambda r, f: f's_mov_b32 {s(r)}, 0x{lanemask(f) & 0xffffffff:08x}\ns_mov_b32 {s(r+1)}, 0x{lanemask(f) >> 32:08x}'

    def frag_addrs():
        aX = va.a(2); aT = va.a(8)
        g_, r_, c_, s_ = t4, t5, t6, t7
        a(f"""v_lshrrev_b32 {v(g_)}, 4, {v(vL)}
v_bfe_u32 {v(r_)}, {v(vL)}, 2, 2
v_and_b32 {v(c_)}, 3, {v(vL)}
v_and_b32 {v(s_)}, 15, {v(vL)}
s_lshl_b32 {s(T0+4)}, {s(S_MG)}, 12
v_lshrrev_b32 {v(t0)}, 1, {v(s_)}
v_xor_b32 {v(t0)}, {v(t0)}, {v(g_)}
v_lshlrev_b32 {v(t0)}, 4, {v(t0)}
v_lshl_add_u32 {v(t0)}, {v(s_)}, 7, {v(t0)}
v_add_u32 {v(aX)}, {s(T0+4)}, {v(t0)}
v_xor_b32 {v(aX+1)}, 64, {v(aX)}
v_lshl_add_u32 {v(t0)}, {v(g_)}, 3, {v(r_)}
v_lshlrev_b32 {v(t0)}, 7, {v(t0)}
v_and_b32 {v(t1)}, 1, {v(g_)}
v_lshlrev_b32 {v(t1)}, 1, {v(t1)}
v_lshrrev_b32 {v(t2)}, 1, {v(r_)}
v_or_b32 {v(t1)}, {v(t1)}, {v(t2)}
v_lshlrev_b32 {v(t1)}, 5, {v(t1)}
v_and_b32 {v(s_)}, 1, {v(c_)}
v_mul_u32_u24 {v(s_)}, 40, {v(s_)}""")
        for (iC, iA, iB, xor, ring) in ((0, 1, 2, QXOR, RQ), (7, 3, 4, 0, RK)):
            a(f"""s_xor_b32 {s(T0+4)}, {s(S_HP)}, {xor}
s_and_b32 {s(T0+4)}, {s(T0+4)}, 3
s_lshl_b32 {s(T0+4)}, {s(T0+4)}, 4
s_mov_b32 {s(T0+5)}, {ring}
v_lshl_add_u32 {v(t2)}, {v(c_)}, 3, {s(T0+4)}
v_xor_b32 {v(t3)}, {v(t2)}, {v(t1)}
v_add3_u32 {v(aT+iA)}, {v(t3)}, {v(t0)}, {s(T0+5)}
v_add_u32 {v(t2)}, 40, {v(t2)}
v_xor_b32 {v(t3)}, {v(t2)}, {v(t1)}
v_add3_u32 {v(aT+iB)}, {v(t3)}, {v(t0)}, {s(T0+5)}
v_add3_u32 {v(t2)}, {v(s_)}, {s(T0+4)}, 32
v_xor_b32 {v(t3)}, {v(t2)}, {v(t1)}
v_add3_u32 {v(aT+iC)}, {v(t3)}, {v(t0)}, {s(T0+5)}""")
        a(f"""v_xor_b32 {v(aT+5)}, 16, {v(aT+3)}
v_xor_b32 {v(aT+6)}, 16, {v(aT+4)}
v_xor_b32 {v(t0)}, 16, {v(aT+7)}
v_add_u32 {v(aT+5)}, {RV-RK}, {v(aT+5)}
v_add_u32 {v(aT+6)}, {RV-RK}, {v(aT+6)}
v_add_u32 {v(t0)}, {RV-RK}, {v(t0)}
v_cmp_lt_u32 vcc, 1, {v(c_)}
v_cndmask_b32 {v(aT+7)}, {v(aT+7)}, {v(t0)}, vcc""")
        return aX, aT
    def second_set(aX, aT, nt):
        aX2 = va.a(2); aT2 = va.a(nt)
        for i in range(2): a(f'v_add_u32 {v(aX2+i)}, {2*SLOT}, {v(aX+i)}')
        for i in range(nt): a(f'v_add_u32 {v(aT2+i)}, {2*SLOT}, {v(aT+i)}')
        return [aX, aX2], [aT, aT2]

    def xr_loads():
        srd(a, R_X, P_X, None, 2621440)
        a(f'''s_add_u32 {s(T0+4)}, {s(S_RB)}, {s(S_CM)}
s_add_u32 {s(T0+5)}, {s(S_RB)}, {s(S_CS)}
buffer_load_dwordx2 {v(vXR,2)}, {v(vRO)}, {s(R_X,4)}, {s(T0+4)} offen
buffer_load_dwordx2 {v(vXR+2,2)}, {v(vRO)}, {s(R_X,4)}, {s(T0+4)} offen offset:32
buffer_load_dwordx2 {v(vXR+4,2)}, {v(vRO)}, {s(R_X,4)}, {s(T0+5)} offen''')

    def kvjoin():
        rd = va.a(8, 4); ad = va.a(); ag = va.a()
        a(f'''s_lshl_b32 {s(T0+4)}, {s(S_W)}, 9
v_lshl_add_u32 {v(ag)}, {v(vL)}, 2, {s(T0+4)}
v_add_u32 {v(ad)}, {KVR}, {v(ag)}
s_lshl_b32 {s(T0+5)}, {s(S_HP)}, 12
s_waitcnt lgkmcnt(0)
s_barrier''')
        for p in range(4):
            a(f'ds_read2st64_b32 {v(rd+2*p,2)}, {v(ad)} offset0:{p*20} offset1:{p*20+1}')
        a(f'v_pk_add_f32 {v(rd,2)}, {v(rd,2)}, {v(rd+2,2)}\nv_pk_add_f32 {v(rd+4,2)}, {v(rd+4,2)}, {v(rd+6,2)}\nv_pk_add_f32 {v(rd,2)}, {v(rd,2)}, {v(rd+4,2)}')
        for hh in range(2):
            a(f'buffer_atomic_add_f32 {v(rd+hh)}, {v(ag)}, {s(R_WS,4)}, {s(T0+5)} offen offset:{OFF_KV + hh*256}')

    p1_mark = va.mark()
    vX = va.a(4); vW = va.a(6)
    a(f"""v_lshrrev_b32 {v(t0)}, 3, {v(vL)}
v_and_b32 {v(t1)}, 7, {v(vL)}
v_lshrrev_b32 {v(t2)}, 4, {v(vL)}
s_lshl_b32 {s(T0+4)}, {s(S_MG)}, 5
v_add_u32 {v(t3)}, {s(T0+4)}, {v(t0)}
v_mul_u32_u24 {v(t3)}, 1280, {v(t3)}
v_xor_b32 {v(vX)}, {v(t1)}, {v(t2)}
v_lshl_add_u32 {v(vX)}, {v(vX)}, 4, {v(t3)}
v_xor_b32 {v(vX+1)}, 64, {v(vX)}
v_add_u32 {v(vX+1)}, {8*1280-1024}, {v(vX+1)}
v_add_u32 {v(vX+2)}, {16*1280-2048}, {v(vX)}
v_add_u32 {v(vX+3)}, {16*1280-2048}, {v(vX+1)}
s_mul_i32 {s(T0+6)}, {s(S_RT1)}, 163840""")
    S_MX = M_C; S_MW = M_C + 1; S_SX = M_D; S_SW = M_D + 1; S_CH = S_U1
    a(f's_lshl_b32 {s(S_MX)}, {s(S_MG)}, 12\ns_lshl_b32 {s(S_MW)}, {s(S_MG)}, 11')
    a(f"""s_mul_i32 {s(S_CH)}, {s(T0+2)}, 3
s_add_u32 {s(S_CH)}, {s(S_CH)}, {s(T0+3)}""")
    if OPT.get('rot2', 1):
        a(f"""s_and_b32 {s(T0+7)}, {s(T0)}, 3
s_add_u32 {s(S_CH)}, {s(S_CH)}, {s(T0+7)}
s_lshr_b32 {s(T0+7)}, {s(T0)}, 2
s_lshl_b32 {s(T0+7)}, {s(T0+7)}, 1
s_add_u32 {s(S_CH)}, {s(S_CH)}, {s(T0+7)}
s_cmp_ge_u32 {s(S_CH)}, 10
s_cselect_b32 {s(T0+7)}, 10, 0
s_sub_u32 {s(S_CH)}, {s(S_CH)}, {s(T0+7)}""")
    a(f"""s_cmp_ge_u32 {s(S_CH)}, 10
s_cselect_b32 {s(T0+7)}, 10, 0
s_sub_u32 {s(S_CH)}, {s(S_CH)}, {s(T0+7)}""")
    wsetup = f"""s_lshl_b32 {s(T0+4)}, {s(S_MG)}, 4
v_add_u32 {v(t3)}, {s(T0+4)}, {v(t0)}
v_mul_u32_u24 {v(t3)}, 3840, {v(t3)}
v_and_b32 {v(t2)}, 1, {v(t2)}
v_lshlrev_b32 {v(t2)}, 1, {v(t2)}
v_xor_b32 {v(t1)}, {v(t1)}, {v(t2)}
v_lshl_add_u32 {v(t3)}, {v(t1)}, 4, {v(t3)}
v_xor_b32 {v(t0)}, 64, {v(t3)}
v_add_u32 {v(t0)}, {8*3840-1024}, {v(t0)}
s_xor_b32 {s(T0+5)}, {s(S_HP)}, {QXOR}
s_mul_i32 {s(T0+5)}, {s(T0+5)}, 80
s_and_b32 {s(T0+5)}, {s(T0+5)}, 0xffffffc0
v_add_u32 {v(vW)}, {s(T0+5)}, {v(t3)}
v_add_u32 {v(vW+1)}, {s(T0+5)}, {v(t0)}
s_mul_i32 {s(T0+5)}, {s(S_HP)}, 80
s_and_b32 {s(T0+5)}, {s(T0+5)}, 0xffffffc0
s_add_u32 {s(T0+5)}, {s(T0+5)}, 1280
v_add_u32 {v(vW+2)}, {s(T0+5)}, {v(t3)}
v_add_u32 {v(vW+3)}, {s(T0+5)}, {v(t0)}
s_add_u32 {s(T0+5)}, {s(T0+5)}, 1280
v_xor_b32 {v(t3)}, 16, {v(t3)}
v_xor_b32 {v(t0)}, 16, {v(t0)}
v_add_u32 {v(vW+4)}, {s(T0+5)}, {v(t3)}
v_add_u32 {v(vW+5)}, {s(T0+5)}, {v(t0)}"""
    a(wsetup)
    a('s_waitcnt lgkmcnt(0)')
    srd(a, R_X, P_X, s(T0+6), 163840)
    srd(a, R_WQ, P_WQKV, None, 2457600)
    def p1_dma(c):
        sl = c % 4
        L = [f's_lshl_b32 {s(S_SX)}, {s(S_CH)}, 7\ns_mul_i32 {s(S_SW)}, {s(S_CH)}, 245760\ns_add_u32 m0, {s(S_MX)}, {sl*SLOT}\ns_add_u32 {s(S_CH)}, {s(S_CH)}, 1\ns_cmp_eq_u32 {s(S_CH)}, 10\ns_cselect_b32 {s(S_CH)}, 0, {s(S_CH)}\n'
             f'buffer_load_dwordx4 {v(vX)}, {s(R_X,4)}, {s(S_SX)} offen lds']
        for i in range(1, 4):
            L.append(f'buffer_load_dwordx4 {v(vX+i)}, {s(R_X,4)}, {s(S_SX)} offen offset:{1024*i} lds')
        for sec in range(3):
            L[-1] += f'\ns_add_u32 m0, {s(S_MW)}, {RQ + 8192*sec + sl*SLOT}'
            for b in range(2):
                tg = f';@tag c{c}\n' if (sec == 2 and b == 1) else ''
                L.append(f'{tg}buffer_load_dwordx4 {v(vW+2*sec+b)}, {s(R_WQ,4)}, {s(S_SW)} offen offset:{1024*b} lds')
        return L
    stamp('start')
    a(p1_dma(0))
    if OPT.get('fine'): stamp('dma0')
    if OPT.get('fine'): stamp('dma1')
    srd(a, R_WS, P_WS, None, WS_REC)
    late_ids()
    aX, aT = frag_addrs()
    for k in range(1, 4):
        a(f's_cmp_lg_u32 {s(S_MG)}, {k}\ns_cbranch_scc1 L_sel{k}\nv_mov_b32 {v(aT)}, {v(aT+2*k)}\nv_mov_b32 {v(aT+1)}, {v(aT+2*k+1)}\nL_sel{k}:')
    aX, aT = second_set(aX, aT, 2)
    vDW = va.a(5)
    assert vDW + 5 <= 196
    kc = va.a(8, 2); cL, cE6L, e6v, cN = kc, kc + 2, kc + 4, kc + 6
    def wodma(ns):
        return [f's_add_u32 m0, {s(S_MD)}, {WO + n*4096}\ns_mov_b32 {s(T0+4)}, {(n//5)*128*1280}\n'
                f'buffer_load_dwordx4 {v(vDW + n%5)}, {s(R_WO,4)}, {s(T0+4)} offen lds' for n in ns]
    aST = va.a(); aC4 = va.a(); vL8 = va.a(); aQX = va.a(); zp = va.a(2, 2); aCSw = va.a(); aTW = va.a()
    a(mk(M_A, lambda l: (l & 3) == 1)); a(mk(M_B, lambda l: (l & 3) == 2)); a(mk(T0+2, lambda l: (l & 3) == 3))
    a(mk(T0+6, lambda l: ((l & 15) >> 2) == (l >> 4)))
    a(f"""v_mov_b32 {v(cL)}, {fhex(LOG2E)}
v_mov_b32 {v(cE6L)}, {fhex(-1e-6*LOG2E)}
v_mov_b32 {v(e6v)}, {fhex(1e-6)}
v_mov_b32 {v(cN)}, {fhex(1/640)}
v_mov_b32 {v(cN+1)}, {fhex(1e-5)}
v_and_b32 {v(t0)}, 15, {v(vL)}
v_lshlrev_b32 {v(t0)}, 2, {v(t0)}
s_lshl_b32 {s(T0+4)}, {s(S_MG)}, 7
s_add_u32 {s(T0+5)}, {s(T0+4)}, {ST}
v_add_u32 {v(aST)}, {s(T0+5)}, {v(t0)}
s_add_u32 {s(T0+5)}, {s(T0+4)}, {CS}
v_add_u32 {v(aCSw)}, {s(T0+5)}, {v(t0)}
v_and_b32 {v(aC4)}, 48, {v(vL)}
v_add_u32 {v(aC4)}, {CS}, {v(aC4)}
v_lshlrev_b32 {v(vL8)}, 3, {v(vL)}
s_mul_i32 {s(T0+4)}, {s(S_MG)}, 6144
s_add_u32 {s(T0+4)}, {s(T0+4)}, {QX}
v_add_u32 {v(aQX)}, {s(T0+4)}, {v(vL16)}
v_mov_b32 {v(zp)}, 0
s_lshl_b32 {s(T0)}, {s(S_MG)}, 1
s_lshl_b32 {s(T0+1)}, {s(S_RT1)}, 3
s_add_u32 {s(T0)}, {s(T0)}, {s(T0+1)}
s_lshl_b32 {s(T0)}, {s(T0)}, 4
s_xor_b32 {s(T0+1)}, {s(S_HP)}, {QXOR}
s_add_u32 {s(T0)}, {s(T0)}, {s(T0+1)}
s_mul_i32 {s(T0)}, {s(T0)}, 1536
s_add_u32 {s(T0)}, {s(T0)}, {OFF_PQ}
s_add_u32 {s(T0+1)}, {s(T0)}, {16*1536}
s_lshl_b32 {s(T0+5)}, {s(S_T)}, 2
s_add_u32 {s(T0+5)}, {s(T0+5)}, {s(S_MG)}
s_lshl_b32 {s(T0+5)}, {s(T0+5)}, 13
v_lshl_add_u32 {v(aTW)}, {v(vL)}, 7, {s(T0+5)}""")
    srd(a, R_B1, P_WO, None, 819200)
    gram = va.a(8, 4); rsum = va.a(8, 4); csa = va.a(8, 4); fX = va.a(16, 4); fW = va.a(16, 4)
    raw = va.a(32, 4); vPK = va.a(4); PKO = P_BX; PKI = P_BX + 1
    i_ls = stamp('loopstart')
    def extras(i):
        if i == 3:
            a(f's_lshl_b32 {s(T0+4)}, {s(S_MG)}, 6\nv_add_u32 {v(t0)}, {s(T0+4)}, {v(vL)}\ns_movk_i32 {s(T0+4)}, 1120')
            for j in range(5):
                a(f'''v_mul_u32_u24 {v(t1)}, 6554, {v(t0)}
v_lshrrev_b32 {v(t1)}, 16, {v(t1)}
v_lshlrev_b32 {v(t2)}, 4, {v(t0)}
v_mad_u32_u24 {v(vDW+j)}, {v(t1)}, {s(T0+4)}, {v(t2)}
v_add_u32 {v(t0)}, 256, {v(t0)}''')
        if i == min(4, OPT.get('pkat', 8)):
            a(f'''v_lshrrev_b32 {v(t0)}, 3, {v(vL)}
v_and_b32 {v(t1)}, 7, {v(vL)}
v_lshlrev_b32 {v(t1)}, 4, {v(t1)}
s_lshl_b32 {s(S_U0)}, s2, 2
s_add_u32 {s(S_U0)}, {s(S_U0)}, {s(S_MG)}
s_movk_i32 {s(T0+4)}, 3456
s_movk_i32 {s(PKO)}, {(1<<16)//27+1}
s_cmp_lt_u32 {s(S_U0)}, 540
s_cselect_b32 {s(R_W2)}, {s(P_W2)}, {s(P_W1)}
s_cselect_b32 {s(R_W2+1)}, {s(P_W2+1)}, {s(P_W1+1)}
s_mov_b32 {s(R_W2+2)}, 2211840
s_mov_b32 {s(R_W2+3)}, 0x20000
s_cselect_b32 {s(T0+4)}, 1280, {s(T0+4)}
s_cselect_b32 {s(T0+5)}, 0, 540
s_cselect_b32 {s(PKO)}, {(1<<16)//10+1}, {s(PKO)}
v_mad_u32_u24 {v(vPK)}, {v(t0)}, {s(T0+4)}, {v(t1)}
s_lshl_b32 {s(PKI)}, {s(T0+4)}, 3
s_sub_u32 {s(T0+5)}, {s(S_U0)}, {s(T0+5)}
s_mul_i32 {s(PKO)}, {s(PKO)}, {s(T0+5)}
s_lshr_b32 {s(PKO)}, {s(PKO)}, 16
s_mul_i32 {s(PKO)}, {s(PKO)}, {s(T0+4)}
s_mul_i32 {s(PKO)}, {s(PKO)}, 31
s_lshl_b32 {s(T0+5)}, {s(T0+5)}, 7
s_add_u32 {s(PKO)}, {s(PKO)}, {s(T0+5)}
s_movk_i32 {s(T0+4)}, 3456
v_mad_u32_u24 {v(vPK+1)}, {v(t0)}, {s(T0+4)}, {v(t1)}
s_lshl_b32 {s(T0+4)}, {s(S_MG)}, 11
s_add_u32 {s(T0+4)}, {s(T0+4)}, {PKS}
v_add_u32 {v(vPK+2)}, {s(T0+4)}, {v(vL16)}
v_lshrrev_b32 {v(t0)}, 2, {v(vL)}
v_lshlrev_b32 {v(t0)}, 7, {v(t0)}
v_and_b32 {v(t1)}, 3, {v(vL)}
v_lshl_add_u32 {v(t0)}, {v(t1)}, 3, {v(t0)}
v_add_u32 {v(vPK+3)}, {s(T0+4)}, {v(t0)}
s_lshl_b32 {s(S_U0)}, {s(S_U0)}, 12
s_add_u32 {s(S_U0)}, {s(S_U0)}, {OFF_W2P}''')
            assert all((j * ((1<<16)//10+1)) >> 16 == j // 10 for j in range(540)) and all((j * ((1<<16)//27+1)) >> 16 == j // 27 for j in range(540))
            srd(a, R_W1, P_W1, None, 2211840)
        if i == OPT.get('pkat', 8):
            for r in range(4):
                a(f'buffer_load_dwordx4 {v(raw+4*r,4)}, {v(vPK)}, {s(R_W2,4)}, {s(PKO)} offen')
                if r < 3: a(f's_add_u32 {s(PKO)}, {s(PKO)}, {s(PKI)}')
            a(f'''s_lshl_b32 {s(T0+4)}, {s(S_MG)}, 8
s_xor_b32 {s(T0+5)}, s2, 0xe0
s_add_u32 {s(T0+4)}, {s(T0+4)}, {s(T0+5)}
s_add_u32 {s(T0+5)}, {s(T0+4)}, 484
s_mul_i32 {s(PKO)}, {s(T0+5)}, {(1<<16)//27+1}
s_lshr_b32 {s(PKO)}, {s(PKO)}, 16
s_mul_i32 {s(PKO)}, {s(PKO)}, {31*3456}
s_lshl_b32 {s(T0+5)}, {s(T0+5)}, 7
s_add_u32 {s(PKO)}, {s(PKO)}, {s(T0+5)}
s_cmp_ge_u32 {s(T0+4)}, 56
s_cselect_b32 {s(PKO)}, 0x1000000, {s(PKO)}''')
            for r in range(4):
                a(f'buffer_load_dwordx4 {v(raw+16+4*r,4)}, {v(vPK+1)}, {s(R_W1,4)}, {s(PKO)} offen')
                if r < 3: a(f's_add_u32 {s(PKO)}, {s(PKO)}, {8*3456}')
        if i == OPT.get('pjat', 10):
            def packjob(rw, dst):
                for hf in range(2):
                    for r in range(2): a(f'ds_write_b128 {v(vPK+2)}, {v(rw+8*hf+4*r,4)} offset:{1024*r}')
                    for t in range(4): a(f'ds_read_b64_tr_b16 {v(fX+4*t+2*hf,2)}, {v(vPK+3)} offset:{32*t}')
                for t in range(4):
                    a(f'buffer_store_dwordx4 {v(fX+4*t,4)}, {v(vL16)}, {s(R_WS,4)}, {dst} offen offset:{1024*t} sc1')
            packjob(raw, s(S_U0))
            a(f'''s_lshl_b32 {s(T0+4)}, {s(S_MG)}, 8
s_xor_b32 {s(T0+5)}, s2, 0xe0
s_add_u32 {s(T0+4)}, {s(T0+4)}, {s(T0+5)}
s_cmp_ge_u32 {s(T0+4)}, 56
s_cbranch_scc1 L_pk2b
s_lshl_b32 {s(T0+4)}, {s(T0+4)}, 12
s_add_u32 {s(T0+4)}, {s(T0+4)}, {OFF_W2P + 1024*4096}''')
            packjob(raw + 16, s(T0+4))
            a(';@opt off\nL_pk2b:')
        if i == 9:
            a(wodma([24] + list(range(24 - OPT.get('wo9', 4), 24 - OPT.get('wo8', 0)))))
    extras(-2)
    a(p1_dma(1))
    extras(-1)
    for i in range(10):
        a(f';@wait c{i}\ns_barrier')
        sl = i % 4
        for j in range(2):
            for m in range(2): a(f'ds_read_b128 {v(fX+8*j+4*m,4)}, {v(aX[sl>>1]+j)} offset:{(sl&1)*SLOT + 2048*m}')
            for t in range(2):
                for jh in range(2):
                    a(f'ds_read_b64_tr_b16 {v(fW+8*j+4*t+2*jh,2)}, {v(aT[sl>>1]+t)} offset:{(sl&1)*SLOT + 4096*j + 512*jh}')
        M = []
        for j in range(2):
            z = (i == 0 and j == 0)
            for m in range(2):
                x = v(fX + 8 * j + 4 * m, 4)
                M.append(f'{MF} {v(gram+4*m,4)}, {x}, {x}, {0 if z else v(gram+4*m,4)}')
                M.append(f'{MF} {v(rsum+4*m,4)}, {v(vONE,4)}, {x}, {0 if z else v(rsum+4*m,4)}')
            for t in range(2):
                M.append(f'{MF} {v(csa+4*t,4)}, {v(vONE,4)}, {v(fW+8*j+4*t,4)}, {0 if z else v(csa+4*t,4)}')
        D_ = p1_dma(i + 2) if i <= 7 else (wodma(range(24 - OPT.get('wo8', 0), 24)) if i == 8 else [])
        if i == 6: a(f'buffer_load_dword {v(zp+1)}, {v(zp)}, {s(R_DBG,4)}, 0 offen sc1')
        if i == OPT.get('twoat', 7) and OPT.get('touchwo', 1): D_ = D_ + [f'buffer_load_dword {v(vDUM)}, {v(aTW)}, {s(R_B1,4)}, 0 offen']
        a(D_[:2]); a(weave(M, D_[2:]))
        if i < 9: extras(i)
        if i == 9:
            a(f'v_readfirstlane_b32 {s(T0+4)}, {v(zp+1)}\ns_cmp_ge_u32 {s(T0+4)}, {ZBYTES//1024}\ns_cbranch_scc1 L_zok\n;@opt on')
            a(f"""s_mov_b32 {s(T0+5)}, 0x400000
L_zpoll:
buffer_load_dword {v(zp+1)}, {v(zp)}, {s(R_DBG,4)}, 0 offen sc1
s_waitcnt vmcnt(0)
v_readfirstlane_b32 {s(T0+4)}, {v(zp+1)}
s_sub_u32 {s(T0+5)}, {s(T0+5)}, 1
s_cmp_eq_u32 {s(T0+5)}, 0
s_cbranch_scc1 L_zok
s_cmp_lt_u32 {s(T0+4)}, {ZBYTES//1024}
s_cbranch_scc1 L_zpoll
L_zok:""")
    tmp = va.a(16, 4)
    SS = []
    for m in range(2):
        G = gram + 4 * m; sm = rsum + 4 * m; sq = tmp + 4 * m + 1; o = tmp + 4 * m + 2
        SS.append(f"""v_cndmask_b32 {v(sq)}, {v(G)}, {v(G+1)}, {s(M_A,2)}
v_cndmask_b32 {v(sq)}, {v(sq)}, {v(G+2)}, {s(M_B,2)}
v_cndmask_b32 {v(sq)}, {v(sq)}, {v(G+3)}, {s(T0+2,2)}
v_mul_f32 {v(sm)}, {v(cN)}, {v(sm)}
v_fma_f32 {v(sq)}, {v(sq)}, {v(cN)}, {v(cN+1)}
v_fma_f32 {v(sq)}, -{v(sm)}, {v(sm)}, {v(sq)}
v_max_f32 {v(sq)}, {v(cN+1)}, {v(sq)}
v_rsq_f32 {v(o)}, {v(sq)}
v_mul_f32 {v(o+1)}, -{v(sm)}, {v(o)}""".split('\n'))
    for x, y in zip(*SS): a(x); a(y)
    a(f'ds_write2_b32 {v(aCSw)}, {v(csa)}, {v(csa+4)} offset0:0 offset1:16')
    a(f's_mov_b64 exec, {s(T0+6,2)}')
    for m in range(2):
        a(f'ds_write2_b32 {v(aST)}, {v(tmp+4*m+2)}, {v(tmp+4*m+3)} offset0:{16*m} offset1:{128+16*m}')
    a('s_mov_b64 exec, -1')
    extras(9)
    a('s_waitcnt lgkmcnt(0)')
    i_le = stamp('p1loop')
    a('s_barrier')
    acc = va.a(24, 4); stt = va.a(4, 4); csv = va.a(12, 4); pk = va.a(12, 4)
    for m in range(2):
        a(f'ds_read2_b32 {v(stt+2*m,2)}, {v(aST)} offset0:{16*m} offset1:{128+16*m}')
    for t in range(3):
        a(f'ds_read_b128 {v(csv+4*t,4)}, {v(aC4)} offset:{t*64}')
        for m in range(2): a(f'ds_read_b128 {v(acc+(2*t+m)*4,4)}, {v(aQX)} offset:{1024*(2*t+m)}')
    QE = []
    dst = {1: 0, 0: 2, 2: 4}
    for t in range(3):
        c = csv + 4 * t
        for m in range(2):
            for i in (0, 2):
                QE.append(f'v_pk_fma_f32 {v(tmp+8*m+i,2)}, {v(stt+2*m,2)}, {v(c+i,2)}, {v(e6v,2)} op_sel:[1,0,0] op_sel_hi:[1,1,0]')
        for m in range(2):
            x = acc + (2 * t + m) * 4
            for i in (0, 2):
                QE.append(f'v_pk_fma_f32 {v(x+i,2)}, {v(x+i,2)}, {v(stt+2*m,2)}, {v(tmp+8*m+i,2)} op_sel_hi:[1,0,1]')
        P = [phi4(acc + (2 * t + m) * 4, tmp + 8 * m + 4, cL, cE6L, e6v) for m in range(2)]
        for x, y in zip(*P): QE += [x, y]
        for m in range(2):
            x = acc + (2 * t + m) * 4; o = pk + 6 * m + dst[t]
            QE.append(f'v_cvt_pk_bf16_f32 {v(o)}, {v(x)}, {v(x+1)}\nv_cvt_pk_bf16_f32 {v(o+1)}, {v(x+2)}, {v(x+3)}')
    NR = 24 - OPT.get('wo9', 4); NQ = OPT.get('nq', 14)
    a(spread(QE, wodma(range(NQ)), start=0, end=len(QE) - 8))
    for m in range(2):
        a(f'buffer_store_dwordx4 {v(pk+6*m,4)}, {v(vL16)}, {s(R_WS,4)}, {s(T0+m)} offen sc1')
        a(f'buffer_store_dwordx2 {v(pk+6*m+4,2)}, {v(vL8)}, {s(R_WS,4)}, {s(T0+m)} offen offset:1024 sc1')
    kvjoin()
    i_at = stamp('atomics')
    extras(10)
    for j in range(5): a(f'v_mov_b32 {v(196+j)}, {v(vDW+j)}')
    vDW = 196
    a('s_branch L_p1join')

    va.reset(p1_mark)
    a('L_p1c:\n;@restore p1')
    stamp('start', 0)
    a('s_waitcnt lgkmcnt(0)')
    srd(a, R_WS, P_WS, None, WS_REC)
    S_GW = S_U1
    a(f"""s_lshl_b32 {s(S_GW)}, s2, 2
s_add_u32 {s(S_GW)}, {s(S_GW)}, {s(S_MG)}
s_cmp_ge_u32 {s(S_GW)}, {ZBYTES//1024}
s_cbranch_scc1 L_nozero
v_mov_b32 {v(t0)}, 0
v_mov_b32 {v(t1)}, 0
v_mov_b32 {v(t2)}, 0
v_mov_b32 {v(t3)}, 0
s_lshl_b32 {s(T0+4)}, {s(S_GW)}, 10
buffer_store_dwordx4 {v(t0,4)}, {v(vL16)}, {s(R_WS,4)}, {s(T0+4)} offen sc1
L_nozero:""")
    late_ids()
    aX, aT = frag_addrs()
    aX, aT = second_set(aX, aT, 8)
    kc = va.a(6, 2)
    cL, cE6L, e6v, zv = kc, kc + 2, kc + 4, kc + 5
    aCS = va.a(); aST = va.a(); aW1 = va.a(); aW2 = va.a(); aQX = va.a()
    a(mk(M_A, lambda l: (l & 15) >= 8)); a(mk(M_B, lambda l: (l >> 4) == 1)); a(mk(M_C, lambda l: ((l & 15) >> 2) & 1))
    a(f"""v_mov_b32 {v(cL)}, {fhex(LOG2E)}
v_mov_b32 {v(cE6L)}, {fhex(-1e-6*LOG2E)}
v_mov_b32 {v(e6v)}, {fhex(1e-6)}
v_cndmask_b32 {v(zv)}, {v(e6v)}, 0, {s(M_A,2)}
v_and_b32 {v(t0)}, 15, {v(vL)}
v_lshlrev_b32 {v(t0)}, 2, {v(t0)}
v_add_u32 {v(aCS)}, {CS}, {v(t0)}
s_lshl_b32 {s(T0+4)}, {s(S_MG)}, 7
s_add_u32 {s(T0+4)}, {s(T0+4)}, {ST}
v_and_b32 {v(t0)}, 48, {v(vL)}
v_add_u32 {v(aST)}, {s(T0+4)}, {v(t0)}
s_mul_i32 {s(T0+4)}, {s(S_MG)}, 5120
s_add_u32 {s(T0+4)}, {s(T0+4)}, {KVR}
v_add_u32 {v(aW1)}, {s(T0+4)}, {v(vL16)}
v_and_b32 {v(t1)}, 3, {v(vL)}
v_bfe_u32 {v(t2)}, {v(vL)}, 2, 2
v_lshl_add_u32 {v(t1)}, {v(t1)}, 2, {v(t2)}
v_add_u32 {v(t1)}, {v(t1)}, {v(t0)}
v_lshl_add_u32 {v(aW2)}, {v(t1)}, 4, {s(T0+4)}
s_mul_i32 {s(T0+4)}, {s(S_MG)}, 6144
s_add_u32 {s(T0+4)}, {s(T0+4)}, {QX}
v_add_u32 {v(aQX)}, {s(T0+4)}, {v(vL16)}""")
    acc = va.a(64, 4)
    fX = [va.a(8, 4), va.a(8, 4)]; fW = [va.a(32, 4), va.a(32, 4)]
    A_ = lambda t, m: acc + (t * 2 + m) * 4
    zsig = (f"""s_cmp_ge_u32 {s(S_GW)}, {ZBYTES//1024}
s_cbranch_scc1 L_nozsig
v_mov_b32 {v(t0)}, 0
v_mov_b32 {v(t2)}, 1
s_waitcnt vmcnt(0)
s_mov_b64 exec, 1
buffer_atomic_add {v(t2)}, {v(t0)}, {s(R_DBG,4)}, 0 offen sc1
s_mov_b64 exec, -1
L_nozsig:""")
    stamp('loopstart', i_ls)
    def reads(n):
        sl = (n // 2) % 4; j = n & 1; b = n & 1
        L = [f'ds_read_b128 {v(fX[b]+4*m,4)}, {v(aX[sl>>1]+j)} offset:{(sl&1)*SLOT + 2048*m}' for m in range(2)]
        for t in range(8):
            for jh in range(2):
                L.append(f'ds_read_b64_tr_b16 {v(fW[b]+4*t+2*jh,2)}, {v(aT[sl>>1]+t)} offset:{(sl&1)*SLOT + 4096*j + 512*jh}')
        return L
    def mfmas(n):
        b = n & 1; L = []
        for t in ((0, 1, 2, 3, 4, 5, 6, 7) if n < 19 else (0, 1, 2, 3, 7, 5, 4, 6)):
            for m in range(2):
                d = v(A_(t, m), 4); c = d if n else '0'
                if t >= 3: L.append(f'{MF} {d}, {v(fX[b]+4*m,4)}, {v(fW[b]+4*t,4)}, {c}')
                else: L.append(f'{MF} {d}, {v(fW[b]+4*t,4)}, {v(fX[b]+4*m,4)}, {c}')
        return L
    a('s_barrier')
    if OPT.get('fine'): stamp('b0')
    a(reads(0))
    for n in range(20):
        if n & 1 and n < 19:
            if OPT.get('fine'): stamp(f'b{(n+1)//2}pre')
            a('s_barrier')
            if OPT.get('fine'): stamp(f'b{(n+1)//2}')
        if n == 4: a(zsig)
        M = mfmas(n)
        LW = OPT.get('lw', 2)
        if LW == 1: a('s_waitcnt lgkmcnt(0)')
        if LW == 2:
            a('s_waitcnt lgkmcnt(8)')
        if n < 19:
            seq = spread(M, reads(n + 1), start=0, end=OPT.get('rdend', 16))
            if LW == 2:
                k = [i for i, x in enumerate(seq) if x.startswith(MF)][8]
                nrd = sum(1 for x in seq[:k] if x.startswith('ds_'))
                seq.insert(k, f's_waitcnt lgkmcnt({nrd})')
            a(seq)
        else:
            a(weave(M, [f'ds_write_b128 {v(aQX)}, {v(acc+4*i,4)} offset:{1024*i}' for i in range(6)], start=8))
    stamp('p1loop', i_le)
    a('s_setprio 1\ns_waitcnt lgkmcnt(0)\ns_barrier')
    stt = fW[0]; csv = fW[0] + 16; tmp = va.a(16, 4); op = va.a(24, 4)
    for m in range(2):
        a(f'ds_read_b128 {v(stt+8*m+4,4)}, {v(aST)} offset:{512+64*m}')
        a(f'ds_read_b128 {v(stt+8*m,4)}, {v(aST)} offset:{64*m}')
    for t in (0, 4, 2, 1, 3): a(f'ds_read_b32 {v(csv+t)}, {v(aCS)} offset:{(3+t)*64}')
    KA, KB, VA_, VB, KVC, KVCp = [v(op + 4 * i, 4) for i in range(6)]
    D = fW[1]
    prods = [(KA, VA_), (KB, VB), (KVC, VA_), (KVC, VB), (KA, KVCp), (KB, KVCp), (KVC, KVCp)]
    PM = lambda i: f'{MF} {v(D+4*i,4)}, {prods[i][0]}, {prods[i][1]}, 0'
    for t in (0, 4, 2, 1, 3):
        sel = t & 1; cp = v(csv + (t & ~1), 2)
        for m in range(2):
            tt_ = tmp + 8 * m
            for i in (0, 2):
                if t in (2, 3):
                    a(f'v_pk_mul_f32 {v(tt_+i,2)}, {cp}, {v(stt+8*m+4+i,2)} op_sel:[{sel},0] op_sel_hi:[{sel},1]')
                else:
                    zs = 1 if t == 4 else 0
                    a(f'v_pk_fma_f32 {v(tt_+i,2)}, {cp}, {v(stt+8*m+4+i,2)}, {v(e6v,2)} op_sel:[{sel},0,{zs}] op_sel_hi:[{sel},1,{zs}]')
        if t == 2: a(PM(4)); a(PM(6))
        if t == 1: a(PM(0)); a(PM(2))
        if t == 3: a(PM(5))
        for m in range(2):
            x = A_(3 + t, m); tt_ = tmp + 8 * m
            for i in (0, 2):
                a(f'v_pk_fma_f32 {v(x+i,2)}, {v(x+i,2)}, {v(stt+8*m+i,2)}, {v(tt_+i,2)}')
        if t == 4:
            for m in range(2):
                x = A_(3 + t, m)
                a(f'v_cvt_pk_bf16_f32 {v(op+20+2*m)}, {v(x)}, {v(x+1)}\nv_cvt_pk_bf16_f32 {v(op+20+2*m+1)}, {v(x+2)}, {v(x+3)}')
        if t in (0, 1, 4):
            P = [phi4(A_(3 + t, m), tmp + 8 * m + 4, cL, cE6L, e6v) for m in range(2)]
            for x, y in zip(*P): a(x); a(y)
        if t == 1: a(f'ds_write_b128 {v(aW1)}, {v(D,4)}')
        for m in range(2):
            x = A_(3 + t, m)
            a(f'v_cvt_pk_bf16_f32 {v(op+4*t+2*m)}, {v(x)}, {v(x+1)}\nv_cvt_pk_bf16_f32 {v(op+4*t+2*m+1)}, {v(x+2)}, {v(x+3)}')
        if t == 4:
            for i in range(4): a(f'v_cndmask_b32 {v(op+20+i)}, {v(vONE)}, {v(op+20+i)}, {s(M_A,2)}')
    a(PM(3)); a(PM(1))
    for r in range(4): a(f'v_cndmask_b32 {v(D+16+r)}, {v(D+16+r)}, {v(D+20+r)}, {s(M_C,2)}')
    a(f'ds_write_b128 {v(aW2)}, {v(D+16,4)} offset:2048')
    for r in range(4): a(f'v_cndmask_b32 {v(D+8+r)}, {v(D+8+r)}, {v(D+12+r)}, {s(M_B,2)}')
    a(f"""ds_write_b128 {v(aW1)}, {v(D+8,4)} offset:3072
ds_write_b128 {v(aW2)}, {v(D+24,4)} offset:3584
ds_write_b128 {v(aW1)}, {v(D+4,4)} offset:1024
s_setprio 0""")
    va.reset(tmp)
    kvjoin()
    stamp('atomics', i_at)

    va.reset(xr_mark)
    a('L_p1join:\n;@clearv\n;@clearl')
    E0, E1, E2, E3, E4, E5, E6, E7 = 36, 37, 38, 39, 6, 7, 10, 11
    OOR = WS_REC

    def wave_block(tag, cmp, body, other=None):
        a(f'{cmp}\ns_cbranch_scc1 L_{tag}_e\n;@opt on')
        a(body)
        if other is not None:
            a(f's_branch L_{tag}_j\nL_{tag}_e:'); a(other); a(f';@opt off\nL_{tag}_j:')
        else:
            a(f';@opt off\nL_{tag}_e:')
    def signal(tag, lanes, addr_code):
        wave_block(tag + 'sig', f's_cmp_lg_u32 {s(S_W)}, 7', [addr_code(t0), f'''v_mov_b32 {v(t1)}, 1
s_mov_b64 exec, 0x{(1<<lanes)-1:x}
buffer_atomic_add {v(t1)}, {v(t0)}, {s(R_WS,4)}, 0 offen sc1
s_mov_b64 exec, -1'''])
    def poll(tag, lanes, addr_code, tgt_code):
        sl = OPT.get('sleep', 2)
        wave_block(tag + 'pol', f's_cmp_lg_u32 {s(S_W)}, 7', [addr_code(t2), tgt_code(t4), f'''s_mov_b64 exec, 0x{(1<<lanes)-1:x}
s_mov_b32 {s(T0+4)}, 0x400000
L_{tag}_p:
buffer_load_dword {v(t3)}, {v(t2)}, {s(R_WS,4)}, 0 offen sc1
s_sub_u32 {s(T0+4)}, {s(T0+4)}, 1
s_cmp_eq_u32 {s(T0+4)}, 0
s_cbranch_scc1 L_{tag}_d
s_waitcnt vmcnt(0)
v_cmp_gt_u32 vcc, {v(t4)}, {v(t3)}
s_cbranch_vccz L_{tag}_d
{f"s_sleep {sl}" if sl else ""}
s_branch L_{tag}_p
L_{tag}_d:
s_mov_b64 exec, -1'''])
        a('s_waitcnt lgkmcnt(0)\ns_barrier')
    if stop_after < 2:
        a('s_waitcnt vmcnt(0)\ns_barrier')
        stamp('drained1')

    if stop_after >= 2:
        KVF1 = 139264
        va.reset(xr_mark)
        aM = va.a(3); aS = va.a(3); aK = va.a(); aKw = va.a(); vL8 = va.a(); axw = va.a(); axr = va.a()
        WP = [va.a(20, 4) for _ in range(4)]
        kvr = va.a(32, 4); pq = va.a(48, 4); fr = va.a(24, 4); acc2 = va.a(20, 4)
        O = vTmp; OS = pq; tt = vHR; cden = va.a(4, 4); c4 = va.a(2)
        g_, r_, c_ = t4, t5, t6
        a(f'''v_lshrrev_b32 {v(g_)}, 4, {v(vL)}
v_bfe_u32 {v(r_)}, {v(vL)}, 2, 2
v_and_b32 {v(c_)}, 3, {v(vL)}
v_lshl_add_u32 {v(t0)}, {v(g_)}, 2, {v(r_)}
v_mul_u32_u24 {v(t0)}, 160, {v(t0)}
v_lshl_add_u32 {v(t0)}, {v(c_)}, 3, {v(t0)}
v_mul_u32_u24 {v(t1)}, 20, {v(r_)}
v_add3_u32 {v(t1)}, {v(t1)}, {v(g_)}, 16
v_mul_u32_u24 {v(t1)}, 160, {v(t1)}
v_lshl_add_u32 {v(t1)}, {v(c_)}, 3, {v(t1)}
s_mul_i32 {s(T0+4)}, {s(S_KH)}, 51200
s_add_u32 {s(T0+4)}, {s(T0+4)}, {WO}''')
        for i, sc in enumerate((S_CM, S_CO, S_CS)):
            a(f's_add_u32 {s(T0+5)}, {s(T0+4)}, {s(sc)}\nv_add_u32 {v(aM+i)}, {s(T0+5)}, {v(t0)}\nv_add_u32 {v(aS+i)}, {s(T0+5)}, {v(t1)}')
        a(f'''s_mul_i32 {s(T0+5)}, {s(S_MG)}, 3072
s_add_u32 {s(T0+6)}, {s(T0+5)}, {s(T0+4)}
v_add_u32 {v(axw)}, {s(T0+6)}, {v(vL16)}
s_sub_u32 {s(T0+6)}, {51200+2*WO}, {s(T0+4)}
s_add_u32 {s(T0+6)}, {s(T0+6)}, {s(T0+5)}
v_add_u32 {v(axr)}, {s(T0+6)}, {v(vL16)}
s_mul_i32 {s(T0+4)}, {s(S_KH)}, {KVF1}
v_add_u32 {v(aK)}, {s(T0+4)}, {v(vL16)}
s_mul_i32 {s(T0+4)}, {s(S_MG)}, {2*3072}
v_add_u32 {v(aKw)}, {s(T0+4)}, {v(aK)}
v_lshlrev_b32 {v(vL8)}, 3, {v(vL)}
v_mov_b32 {v(cden)}, {fhex(1e-6)}
v_mov_b32 {v(cden+1)}, {fhex(1e-6)}
v_mov_b32 {v(cden+2)}, 0
v_mov_b32 {v(cden+3)}, 0''')
        a(mk(M_A, lambda l: (l >> 4) == 0)); a(mk(M_B, lambda l: (l >> 4) == 1))
        a(mk(M_C, lambda l: ((l >> 4) == 0 and (l & 1) == 0) or ((l >> 4) == 1 and (l & 1) == 1)))
        a(mk(M_D, lambda l: (l & 1) == 0))
        S_T0 = S_U0; S_O3 = S_U1
        a(f'''s_mul_i32 {s(S_T0)}, {s(S_HP)}, 7
s_mul_i32 {s(T0+4)}, {s(S_HP)}, 6
s_add_u32 {s(T0+4)}, {s(T0+4)}, 12
s_cmp_lt_u32 {s(S_HP)}, 12
s_cselect_b32 {s(S_T0)}, {s(S_T0)}, {s(T0+4)}
s_and_b32 {s(S_O3)}, {s(S_T0)}, 1
s_lshl_b32 {s(T0+4)}, {s(S_T0)}, 5
s_sub_u32 {s(T0+6)}, 3456, {s(T0+4)}''')
        srd(a, R_B1, P_B1, s(T0+4), s(T0+6))
        tl = [(0, 0), (0, 32), (1, 0), (1, 32), (2, 0)]
        def wread(kind, j):
            buf = WP[j & 1] if kind == 'm' else WP[2 + j]
            L = []
            for t, (ai, ci) in enumerate(tl):
                for jh in range(2):
                    if kind == 'm': ad_, off = aM + ai, j * 6400 + jh * 3200 + ci
                    else: ad_, off = aS + ai, j * 25600 + jh * 12800 + ci
                    L.append(f'ds_read_b64_tr_b16 {v(buf+4*t+2*jh,2)}, {v(ad_)} offset:{off}')
            return L
        S_W1 = E6
        S_M1 = R_W2
        a(f's_min_u32 {s(S_M1)}, {s(S_MD)}, 6144')
        a(f'''s_min_u32 {s(S_W1)}, {s(S_W)}, 6
s_add_u32 {s(S_W1)}, {s(S_T0)}, {s(S_W1)}
s_lshl_b32 {s(S_W1)}, {s(S_W1)}, 10
s_add_u32 {s(S_W1)}, {s(S_W1)}, {OFF_W1P}
s_lshl_b32 {s(T0)}, {s(S_W)}, 13
s_add_u32 {s(T0+1)}, {s(T0)}, 4096
s_lshl_b32 {s(T0+2)}, {s(S_STILE)}, 4
s_lshl_b32 {s(T0+3)}, {s(S_KH)}, 3
s_add_u32 {s(T0+2)}, {s(T0+2)}, {s(T0+3)}
s_mul_i32 {s(T0+2)}, {s(T0+2)}, 1536
s_add_u32 {s(T0+2)}, {s(T0+2)}, {OFF_PQ}''')
        a(f'''s_mul_i32 {s(E0)}, {s(S_CT)}, 5
s_add_u32 {s(E0)}, {s(E0)}, 1
s_lshr_b32 {s(E0)}, {s(E0)}, 1
s_mul_i32 {s(E1)}, {s(S_STILE)}, 20
s_add_u32 {s(E0)}, {s(E0)}, {s(E1)}
s_cmp_eq_u32 {s(S_ODD)}, 0
s_cselect_b32 {s(E1)}, 2, -1
s_add_u32 {s(E1)}, {s(E1)}, {s(E0)}
s_lshl_b32 {s(E1)}, {s(E1)}, 10
s_lshl_b32 {s(E2)}, {s(S_ODD)}, 9
s_add_u32 {s(E1)}, {s(E1)}, {s(E2)}
s_add_u32 {s(E1)}, {s(E1)}, {OFF_H}
s_cmp_lg_u32 {s(S_KH)}, 0
s_cselect_b32 {s(E1)}, {OOR}, {s(E1)}
s_cselect_b32 {s(E5)}, 0, 1.0
s_add_u32 {s(E0)}, {s(E0)}, {s(S_KH)}
s_lshl_b32 {s(E0)}, {s(E0)}, 10
s_add_u32 {s(E0)}, {s(E0)}, {OFF_H}
s_lshl_b32 {s(E2)}, {s(S_STILE)}, 3
s_add_u32 {s(E2)}, {s(E2)}, {s(S_CT)}
s_lshl_b32 {s(E2)}, {s(E2)}, 8
s_lshl_b32 {s(T0+3)}, {s(S_KH)}, 7
s_add_u32 {s(E2)}, {s(E2)}, {s(T0+3)}
s_add_u32 {s(E2)}, {s(E2)}, {OFF_HST}
s_mul_i32 {s(E3)}, {s(S_CT)}, 5120
s_mul_i32 {s(T0+3)}, {s(S_W)}, 40960
s_add_u32 {s(E3)}, {s(E3)}, {s(T0+3)}
s_add_u32 {s(E3)}, {s(E3)}, {OFF_W2P}
s_mul_i32 {s(E7)}, {s(S_W)}, 5120''')
        a(f'''s_mul_i32 {s(T0+4)}, {s(S_MG)}, 20480
s_sub_u32 {s(T0+4)}, {s(S_RB)}, {s(T0+4)}
s_mul_i32 {s(T0+5)}, {s(S_CT)}, 160
s_sub_u32 {s(T0+5)}, {64*1280}, {s(T0+5)}''')
        srd(a, R_X, P_X, s(T0+4), s(T0+5))
        a(f'''v_and_b32 {v(t2)}, 15, {v(vL)}
v_mul_u32_u24 {v(t2)}, 160, {v(t2)}
v_lshrrev_b32 {v(t3)}, 4, {v(vL)}
v_lshl_add_u32 {v(t2)}, {v(t3)}, 3, {v(t2)}
s_mul_i32 {s(T0+4)}, {s(S_MG)}, 2560
s_add_u32 {s(T0+4)}, {s(T0+4)}, 126976
s_add_u32 {s(T0+5)}, {s(T0+4)}, {s(S_CM)}
v_add_u32 {v(c4)}, {s(T0+5)}, {v(t2)}
s_add_u32 {s(T0+5)}, {s(T0+4)}, {s(S_CS)}
v_add_u32 {v(vD10)}, {s(T0+5)}, {v(t2)}''')
        a(f'''s_lshl_b32 {s(T0+5)}, {s(S_T)}, 3
s_add_u32 {s(T0+5)}, {s(T0+5)}, {s(S_W)}
s_mul_i32 {s(T0+5)}, {s(T0+5)}, 35
v_min_u32 {v(t2)}, 34, {v(vL)}
v_add_u32 {v(t2)}, {s(T0+5)}, {v(t2)}
v_mul_u32_u24 {v(t3)}, 18725, {v(t2)}
v_lshrrev_b32 {v(t3)}, 23, {v(t3)}
v_lshlrev_b32 {v(t2)}, 7, {v(t2)}
s_mov_b32 {s(T0+5)}, {110592-448*128}
v_mad_u32_u24 {v(c4+1)}, {v(t3)}, {s(T0+5)}, {v(t2)}
s_lshr_b32 {s(E4)}, {s(S_HP)}, 3
s_mul_i32 {s(E4)}, {s(E4)}, {52*1024}
s_add_u32 {s(E4)}, {s(E4)}, {OFF_W1P}''')
        assert all((u * 18725) >> 23 == u // 448 for u in range(8960))
        stamp('p2setup')
        a('s_waitcnt vmcnt(0)\ns_barrier')
        stamp('drained1')

        S1M = OPT.get('s1m', 2)
        if S1M == 0:
            signal('s1', 16, lambda r: f's_and_b32 {s(T0+4)}, {s(S_RT1)}, 3\ns_lshl_b32 {s(T0+4)}, {s(T0+4)}, 9\ns_add_u32 {s(T0+4)}, {s(T0+4)}, {OFF_C1}\nv_lshl_add_u32 {v(r)}, {v(vL)}, 11, {s(T0+4)}')
        elif S1M == 1:
            signal('s1', 16, lambda r: f's_lshl_b32 {s(T0+4)}, {s(S_RT1)}, 7\ns_add_u32 {s(T0+4)}, {s(T0+4)}, {OFF_C1}\nv_lshl_add_u32 {v(r)}, {v(vL)}, 11, {s(T0+4)}')
        else:
            wave_block('s1sig', f's_cmp_lg_u32 {s(S_W)}, 7', [f'''s_lshl_b32 {s(T0+4)}, {s(S_RT1)}, 9
s_add_u32 {s(T0+4)}, {s(T0+4)}, {OFF_C1 + 16384}
v_mov_b32 {v(t0)}, {s(T0+4)}
v_mov_b32 {v(t1)}, 1
v_mov_b32 {v(t2)}, 1
s_mov_b64 exec, 1
buffer_atomic_add {v(t1)}, {v(t0)}, {s(R_WS,4)}, 0 offen sc0 sc1
s_mov_b64 exec, -1
v_lshlrev_b32 {v(t0)}, 9, {v(vL)}
s_mov_b32 {s(T0+5)}, {OFF_C1}
s_waitcnt vmcnt(0)
v_readfirstlane_b32 {s(T0+4)}, {v(t1)}
s_cmp_lg_u32 {s(T0+4)}, 15
s_cbranch_scc1 L_s1sig_e
s_mov_b64 exec, 0xff
buffer_atomic_add {v(t2)}, {v(t0)}, {s(R_WS,4)}, {s(T0+5)} offen sc1
s_mov_b64 exec, -1'''])
        assert pq <= 196 and 201 <= pq + 48
        XRL = 126976
        xrd = [f's_add_u32 m0, {s(S_MD)}, {XRL + n*4096}\ns_nop 0\nbuffer_load_dwordx4 {v(vDW+n)}, {s(R_X,4)}, 0 offen lds' for n in range(3)]
        wave_block('wor', f's_cmp_ge_u32 {s(S_W)}, 4', wodma(range(NQ, NR)) + xrd + ['s_waitcnt vmcnt(0)'])
        a('s_barrier')
        stamp('wolanded')
        a(f'ds_read_b64 {v(vXR,2)}, {v(c4)}\nds_read_b64 {v(vXR+2,2)}, {v(c4)} offset:32\nds_read_b64 {v(vXR+4,2)}, {v(vD10)}')
        for k_, j_ in (('m', 0), ('m', 1), ('s', 0), ('s', 1)): a(wread(k_, j_))
        if S1M == 0:
            poll('s1', 4, lambda r: f's_lshl_b32 {s(T0+4)}, {s(S_MEM)}, 11\ns_add_u32 {s(T0+4)}, {s(T0+4)}, {OFF_C1}\nv_lshl_add_u32 {v(r)}, {v(vL)}, 9, {s(T0+4)}',
                 lambda r: f'v_mov_b32 {v(r)}, 64')
        elif S1M == 1:
            poll('s1', 16, lambda r: f's_lshl_b32 {s(T0+4)}, {s(S_MEM)}, 11\ns_add_u32 {s(T0+4)}, {s(T0+4)}, {OFF_C1}\nv_lshl_add_u32 {v(r)}, {v(vL)}, 7, {s(T0+4)}',
                 lambda r: f'v_mov_b32 {v(r)}, 16')
        else:
            poll('s1', 1, lambda r: f's_and_b32 {s(T0+4)}, s2, 7\ns_lshl_b32 {s(T0+4)}, {s(T0+4)}, 9\ns_add_u32 {s(T0+4)}, {s(T0+4)}, {OFF_C1}\nv_mov_b32 {v(r)}, {s(T0+4)}',
                 lambda r: f'v_mov_b32 {v(r)}, 16')
        stamp('sync1')
        for h in range(2):
            for b in (3, 2, 0, 1):
                a(f'buffer_load_dwordx4 {v(kvr+16*h+4*b,4)}, {v(vL16)}, {s(R_WS,4)}, {s(T0+h)} offen offset:{OFF_KV+1024*b} sc1')
        def pqload(j):
            o = (j & 1) * 1536
            return [f'buffer_load_dwordx4 {v(pq+6*j,4)}, {v(vL16)}, {s(R_WS,4)}, {s(T0+2)} offen offset:{o} sc1',
                    f'buffer_load_dwordx2 {v(pq+6*j+4,2)}, {v(vL8)}, {s(R_WS,4)}, {s(T0+2)} offen offset:{o+1024} sc1'
                    + (f'\ns_add_u32 {s(T0+2)}, {s(T0+2)}, 3072' if j & 1 else '')]
        tw1 = f'buffer_load_dword {v(vDUM)}, {v(c4+1)}, {s(R_WS,4)}, {s(E4)} offen sc1'
        TW1 = OPT.get('touchw1', 2)
        for h in range(2):
            k = kvr + 16 * h; f = fr + 12 * h
            M0, M1, EM, XX = k, k + 4, k + 8, k + 12
            em, xx, tx = tt, tt + 2, tt + 4
            for i in range(2): a(f'v_cvt_pk_bf16_f32 {v(xx+i)}, {v(XX+2*i)}, {v(XX+2*i+1)}')
            for i in range(2): a(f'v_cvt_pk_bf16_f32 {v(em+i)}, {v(EM+2*i)}, {v(EM+2*i+1)}')
            a(stamp_txt(f'kv{h}', 'fine2'))
            for i in range(2): a(f'v_permlane32_swap_b32 {v(xx+i)}, {v(tx+i)}')
            for i in range(2):
                a(f'v_cndmask_b32 {v(tx+i)}, 0, {v(tx+i)}, {s(M_C,2)}')
            for i in range(2):
                a(f'v_cndmask_b32 {v(f+8+i)}, {v(tx+i)}, {v(em+i)}, {s(M_D,2)}')
                a(f'v_cndmask_b32 {v(f+10+i)}, {v(em+i)}, {v(tx+i)}, {s(M_D,2)}')
            a(f'ds_write_b128 {v(aKw)}, {v(f+8,4)} offset:{h*3072+2048}')
            for i in range(2):
                a(f'v_cndmask_b32 {v(f+2+i)}, 0, {v(xx+i)}, {s(M_A,2)}')
                a(f'v_cvt_pk_bf16_f32 {v(f+i)}, {v(M0+2*i)}, {v(M0+2*i+1)}')
            a(f'ds_write_b128 {v(aKw)}, {v(f,4)} offset:{h*3072}')
            for i in range(2):
                a(f'v_cndmask_b32 {v(f+4+i)}, 0, {v(xx+i)}, {s(M_B,2)}')
                a(f'v_cvt_pk_bf16_f32 {v(f+6+i)}, {v(M1+2*i)}, {v(M1+2*i+1)}')
            a(f'ds_write_b128 {v(aKw)}, {v(f+4,4)} offset:{h*3072+1024}')
            a(pqload(2*h)); a(pqload(2*h+1))
        a(stamp_txt('cvt', 'fine2'))
        a(stamp_txt('pq5', 'fine2'))
        a('s_waitcnt lgkmcnt(0)\ns_barrier')
        stamp('kvf')
        W1POS = [128000 + 7168 * i for i in range(5)] + [7168 * i for i in range(3)] + [WO + 12800 + 7168 * i for i in range(5)] + [WO + 64000 + 7168 * i for i in range(5)] + [WO, WO + 51200]
        def w1dma(kss):
            return [f's_add_u32 m0, {s(S_M1)}, {W1POS[ks]}\ns_add_u32 {s(T0+4)}, {s(S_W1)}, {ks*110592}\n;@tag w1_{ks}\n'
                    f'buffer_load_dwordx4 {v(vL16)}, {s(R_WS,4)}, {s(T0+4)} offen sc1 lds' for ks in kss]
        Dq = kvr
        def kvread(j): return [f'ds_read_b128 {v(fr+12*(j&1)+4*b,4)}, {v(aK)} offset:{j*3072+b*1024}' for b in (2, 0, 1)]
        def st1_m(j):
            f = fr + 12 * (j & 1); d = Dq + 16 * (j & 1)
            X0 = v(pq + 6 * j, 4); X1 = v(pq + 6 * j + 2, 4)
            return [f'{MF} {v(d+8,4)}, {v(f+8,4)}, {X0}, {v(cden,4)}', f'{MF} {v(d+12,4)}, {v(f+8,4)}, {X1}, {v(cden,4)}',
                    f'{MF} {v(d,4)}, {v(f,4)}, {X0}, 0', f'{MF} {v(d+4,4)}, {v(f+4,4)}, {X1}, 0']
        def st1_v(j):
            d = Dq + 16 * (j & 1); o = O + 4 * (j & 1)
            L = [f'v_rcp_f32 {v(tt)}, {v(d+8)}', f'v_rcp_f32 {v(tt+1)}, {v(d+13)}']
            L += [f'v_mul_f32 {v(d+i)}, {v(tt+i//4)}, {v(d+i)}' for i in range(8)]
            L += [f'v_mul_f32 {v(tt+2)}, {v(tt)}, {v(d+10)}', f'v_mul_f32 {v(tt+3)}, {v(tt+1)}, {v(d+15)}']
            L += [f'v_cvt_pk_bf16_f32 {v(o+i)}, {v(d+2*i)}, {v(d+2*i+1)}' for i in range(4)]
            L += [f'v_cvt_pk_bf16_f32 {v(OS+j)}, {v(tt+2)}, {v(tt+3)}']
            return L
        first = [True]
        def st2_m(buf, X, order=range(5)):
            L = [f'{MF} {v(acc2+4*t,4)}, {v(buf+4*t,4)}, {X}, {v(acc2+4*t,4) if not first[0] else 0}' for t in order]
            first[0] = False
            return L
        a(kvread(0)); a(kvread(1))
        if TW1 == 1: a(tw1)
        a(stamp_txt('pq8', 'fine2'))
        a(st1_m(0))
        for j in range(9):
            a(stamp_txt(f'r{j}', 'fine2'))
            M = []
            if j >= 1: M += st2_m(WP[(j - 1) & 1], v(O + 4 * ((j - 1) & 1), 4))
            n2 = len(M)
            if j + 1 < 8: M += st1_m(j + 1)
            if j == 4: M += st2_m(WP[2], v(OS, 4))
            F = st1_v(j) if j < 8 else []
            R1 = kvread(j + 2) if j + 2 < 8 else []
            R2 = wread('m', j + 1) if 1 <= j <= 6 else []
            seq = []
            fi = iter(F); r1 = iter(R1); r2 = iter(R2)
            for i, m_ in enumerate(M):
                seq.append(m_)
                x = next(r1, None) if i < n2 or not R2 else None
                if x: seq.append(x)
                if i >= 1:
                    for _ in range(2 if i <= n2 + 1 else 1):
                        x = next(r2, None)
                        if x: seq.append(x)
                for _ in range(2):
                    x = next(fi, None)
                    if x: seq.append(x)
            seq += list(r1) + list(r2) + list(fi)
            V = []
            if j < 2: V = pqload(4 + 2*j) + pqload(5 + 2*j)
            if j == 2 and TW1 == 2: V = [tw1]
            if j >= 7 and stop_after >= 3: V = w1dma(range(4*(j-7), 4*(j-7) + 4))
            a(spread(seq, V))
            if j == 6 and stop_after >= 3:
                a('s_barrier')
        a(st2_m(WP[3], v(OS + 4, 4), order=(2, 3, 4, 0, 1)))
        stamp('p2mm')
        rcv = WP[0]; xf = WP[1]
        for i in range(6):
            a(f'v_lshlrev_b32 {v(xf+2*i)}, 16, {v(vXR+i)}\nv_and_b32 {v(xf+2*i+1)}, 0xffff0000, {v(vXR+i)}')
        for i in range(3): a(f'ds_write_b128 {v(axw)}, {v(acc2+8+4*i,4)} offset:{1024*i}')
        own = [acc2, acc2 + 4, acc2 + 16]
        for i in range(3):
            for hh in (0, 2):
                a(f'v_pk_add_f32 {v(xf+4*i+hh,2)}, {v(own[i]+hh,2)}, {v(xf+4*i+hh,2)}')
        a('s_waitcnt lgkmcnt(0)\ns_barrier')
        a(stamp_txt('xch', 'fine2'))
        for i in range(3): a(f'ds_read_b128 {v(rcv+4*i,4)}, {v(axr)} offset:{1024*i}')
        for i in range(3):
            for hh in (0, 2):
                a(f'v_pk_add_f32 {v(xf+4*i+hh,2)}, {v(xf+4*i+hh,2)}, {v(rcv+4*i+hh,2)}')
            for hh in range(2):
                a(f'v_cvt_pk_bf16_f32 {v(vHR+2*i+hh)}, {v(xf+4*i+2*hh)}, {v(xf+4*i+2*hh+1)}')
            if i == 1: a(f'buffer_store_dwordx4 {v(vHR,4)}, {v(vL16)}, {s(R_WS,4)}, {s(E0)} offen sc1')
        a(f'buffer_store_dwordx2 {v(vHR+4,2)}, {v(vL8)}, {s(R_WS,4)}, {s(E1)} offen sc1')
        for i in range(6):
            a(f'v_lshlrev_b32 {v(xf+2*i)}, 16, {v(vHR+i)}\nv_and_b32 {v(xf+2*i+1)}, 0xffff0000, {v(vHR+i)}')
        sm = rcv; sq = rcv + 2; p = rcv + 4; q = rcv + 6
        a(f'v_pk_add_f32 {v(sm,2)}, {v(xf+8,2)}, {v(xf+10,2)}\nv_pk_mul_f32 {v(sq,2)}, {v(xf+8,2)}, {v(xf+8,2)}')
        a(f'v_pk_fma_f32 {v(sq,2)}, {v(xf+10,2)}, {v(xf+10,2)}, {v(sq,2)}')
        for i in range(4): a(f'v_mul_f32 {v(sm+i)}, {s(E5)}, {v(sm+i)}')
        for i in (0, 2, 4, 6):
            a(f'v_pk_add_f32 {v(sm,2)}, {v(sm,2)}, {v(xf+i,2)}\nv_pk_fma_f32 {v(sq,2)}, {v(xf+i,2)}, {v(xf+i,2)}, {v(sq,2)}')
        def xg_reduce(p, q):
            return f'''v_mov_b32 {v(q)}, {v(p)}
v_mov_b32 {v(q+1)}, {v(p+1)}
v_permlane32_swap_b32 {v(p)}, {v(q)}
v_permlane32_swap_b32 {v(p+1)}, {v(q+1)}
v_pk_add_f32 {v(p,2)}, {v(p,2)}, {v(q,2)}
v_mov_b32 {v(q)}, {v(p)}
v_mov_b32 {v(q+1)}, {v(p+1)}
v_permlane16_swap_b32 {v(p)}, {v(q)}
v_permlane16_swap_b32 {v(p+1)}, {v(q+1)}
v_pk_add_f32 {v(p,2)}, {v(p,2)}, {v(q,2)}'''
        a(f'v_add_f32 {v(p)}, {v(sm)}, {v(sm+1)}\nv_add_f32 {v(p+1)}, {v(sq)}, {v(sq+1)}')
        a(xg_reduce(p, q))
        a(f's_mov_b64 exec, 0xffff\nbuffer_store_dwordx2 {v(p,2)}, {v(vL8)}, {s(R_WS,4)}, {s(E2)} offen sc1\ns_mov_b64 exec, -1')
        stamp('p2st')

    if stop_after >= 3:
        va.reset(base_mark)
        NA = 8; NB = NA + OPT.get('nw1b', 4)
        a(w1dma(range(NA, NB)))
        a(';@wait p2out\ns_barrier')
        stamp('drained2')
        signal('s2', 2, lambda r: f's_lshl_b32 {s(T0+4)}, {s(S_GRP)}, 7\ns_add_u32 {s(T0+4)}, {s(T0+4)}, {OFF_C2}\nv_lshl_add_u32 {v(r)}, {v(vL)}, 11, {s(T0+4)}')
        W = va.a(160, 4); cs3 = va.a(8, 4); bt = va.a(8, 4); acc3 = [va.a(8, 4), va.a(8, 4)]
        fX = [va.a(4, 4) for _ in range(4)]; u = va.a(8, 4); gp = va.a(4, 4); rr = va.a(8, 2); kk = va.a(2)
        aP = fX[0]; aXl = vONE
        S_C3 = T0 + 5
        a(f'''s_lshl_b32 {s(S_C3)}, {s(S_O3)}, 5
s_lshl_b32 {s(T0+6)}, {s(S_MG)}, 6
s_add_u32 {s(S_C3)}, {s(S_C3)}, {s(T0+6)}
s_cmp_eq_u32 {s(S_C3)}, 224
s_cselect_b32 {s(S_C3)}, 0, {s(S_C3)}
v_lshrrev_b32 {v(t0)}, 4, {v(vL)}
v_lshlrev_b32 {v(t0)}, 3, {v(t0)}
buffer_load_dwordx2 {v(u,2)}, {v(t0)}, {s(R_B1,4)}, {s(S_C3)} offen
buffer_load_dwordx2 {v(u+2,2)}, {v(t0)}, {s(R_B1,4)}, {s(S_C3)} offen offset:32
s_lshl_b32 {s(T0+6)}, {s(S_C3)}, 5
v_add_u32 {v(aP)}, {s(T0+6)}, {v(vL16)}
v_add_u32 {v(aP+1)}, 56000, {v(aP)}
v_add_u32 {v(aP+2)}, 106496, {v(aP)}''')
        def w1pre(kss):
            R = []; M = []
            for ks in kss:
                pos = W1POS[ks]
                wi, base = (2, 106496) if pos >= 106496 else ((1, 56000) if pos >= 56000 else (0, 0))
                for t in range(2):
                    R.append(f'ds_read_b128 {v(W+8*ks+4*t,4)}, {v(aP+wi)} offset:{pos-base+1024*t}')
                    M.append(f'{MF} {v(cs3+4*t,4)}, {v(W+8*ks+4*t,4)}, {v(vONE,4)}, {v(cs3+4*t,4) if ks else 0}')
            a(R[:6]); k = 6
            for m in M:
                a(m); a(R[k:k+1]); k += 1
        batches = [list(range(NB, 16)), list(range(16, 20))]
        done = list(range(NA)); pend = list(range(NA, NB))
        for bi, bt_ in enumerate(batches):
            a(w1dma(bt_))
            w1pre(done)
            a(f';@wait w1_{pend[-1]}\ns_barrier')
            done = pend; pend = bt_
        w1pre(done)
        a('s_waitcnt vmcnt(0)\ns_barrier')
        w1pre(pend)
        c0 = math.sqrt(2 / math.pi); K1 = -2 * LOG2E * c0; K2 = K1 * 0.044715
        a(f'v_mov_b32 {v(kk)}, {fhex(K2)}\nv_mov_b32 {v(kk+1)}, {fhex(K1)}')
        for i in range(4):
            a(f'v_lshlrev_b32 {v(bt+2*i)}, 16, {v(u+i)}\nv_and_b32 {v(bt+2*i+1)}, 0xffff0000, {v(u+i)}')
        XS = [0, SLOT, 0, SLOT]
        SL4 = {0: 2 * SLOT, 1: 3 * SLOT, 2: 0, 3: SLOT, 4: 2 * SLOT, 5: 3 * SLOT, 6: 0}
        RRB = 3 * SLOT
        S_HX = T0; S_GP = T0 + 1; S_MXl = T0 + 2; S_HS = T0 + 3; S_GS = E0; S_W2 = E3
        a(f'''s_lshl_b32 {s(S_HX)}, {s(S_RT1)}, 3
s_lshl_b32 {s(T0+6)}, {s(S_KH)}, 2
s_add_u32 {s(S_HX)}, {s(S_HX)}, {s(T0+6)}
s_mul_i32 {s(S_GP)}, {s(S_HX)}, 54
s_mul_i32 {s(S_HX)}, {s(S_HX)}, 20
s_add_u32 {s(S_HX)}, {s(S_HX)}, {s(S_MG)}
s_lshl_b32 {s(S_HX)}, {s(S_HX)}, 10
s_add_u32 {s(S_HX)}, {s(S_HX)}, {OFF_H}
s_mul_i32 {s(S_MXl)}, {s(S_KH)}, 20480
v_add_u32 {v(aXl)}, {s(S_MXl)}, {v(vL16)}
v_add_u32 {v(aXl+1)}, {SLOT}, {v(aXl)}
v_add_u32 {v(vD10)}, 3072, {v(vL16)}
v_lshlrev_b32 {v(aXl+3)}, 3, {v(vL)}
v_add_u32 {v(aXl+2)}, {s(S_MXl)}, {v(aXl+3)}
s_lshl_b32 {s(T0+6)}, {s(S_MG)}, 10
s_add_u32 {s(S_MXl)}, {s(S_MXl)}, {s(T0+6)}
s_lshl_b32 {s(T0+6)}, {s(S_T0)}, 5
s_add_u32 {s(T0+6)}, {s(T0+6)}, {s(S_C3)}
s_lshr_b32 {s(T0+7)}, {s(T0+6)}, 6
s_add_u32 {s(S_GP)}, {s(S_GP)}, {s(T0+7)}
s_lshl_b32 {s(S_GP)}, {s(S_GP)}, 10
s_bfe_u32 {s(T0+7)}, {s(T0+6)}, 0x10005
s_lshl_b32 {s(T0+7)}, {s(T0+7)}, 9
s_add_u32 {s(S_GP)}, {s(S_GP)}, {s(T0+7)}
s_add_u32 {s(S_GP)}, {s(S_GP)}, {OFF_G}
s_cmp_ge_u32 {s(S_HP)}, 12
s_cselect_b32 {s(S_GS)}, {OOR}, {s(S_GP)}
s_cmp_eq_u32 {s(S_MG)}, 3
s_cselect_b32 {s(S_GS)}, {s(S_GS)}, {OOR}
s_cselect_b32 {s(S_GP)}, {OOR}, {s(S_GP)}
s_lshl_b32 {s(S_HS)}, {s(S_RT1)}, 3
s_add_u32 {s(S_HS)}, {s(S_HS)}, {s(S_W)}
s_lshl_b32 {s(S_HS)}, {s(S_HS)}, 11
s_add_u32 {s(S_HS)}, {s(S_HS)}, {OFF_HST}
v_and_b32 {v(t0)}, 15, {v(vL)}
s_lshl_b32 {s(T0+6)}, {s(S_W)}, 7
s_add_u32 {s(T0+6)}, {s(T0+6)}, {RRB}
v_lshl_add_u32 {v(t5)}, {v(t0)}, 3, {s(T0+6)}
s_lshl_b32 {s(T0+6)}, {s(S_KH)}, 9
s_add_u32 {s(T0+6)}, {s(T0+6)}, {RRB}
v_lshl_add_u32 {v(t6)}, {v(t0)}, 3, {s(T0+6)}
s_mov_b32 {s(E1)}, {fhex(1/640)}
s_mov_b32 {s(E2)}, {fhex(1e-5)}
s_waitcnt lgkmcnt(0)''')
        stamp('w1pre')
        poll('s2', 1, lambda r: f's_lshr_b32 {s(T0+4)}, {s(S_HP)}, 3\ns_lshl_b32 {s(T0+4)}, {s(T0+4)}, 4\ns_add_u32 {s(T0+4)}, {s(T0+4)}, {s(S_RT1)}\ns_lshl_b32 {s(T0+4)}, {s(T0+4)}, 7\ns_add_u32 {s(T0+4)}, {s(T0+4)}, {OFF_C2}\nv_mov_b32 {v(r)}, {s(T0+4)}',
             lambda r: f'v_mov_b32 {v(r)}, 16')
        stamp('sync2')
        def xdma(j, rounds=range(5)):
            return [f's_add_u32 m0, {s(S_MXl)}, {XS[j] + r*4096}\ns_add_u32 {s(T0+4)}, {s(S_HX)}, {j*20480 + r*4096}\n;@tag x{j}_{r}\n'
                    f'buffer_load_dwordx4 {v(vL16)}, {s(R_WS,4)}, {s(T0+4)} offen sc1 lds' for r in rounds]
        def w2dma(c):
            L = [f's_add_u32 m0, {s(E7)}, {SL4[c]}\ns_add_u32 {s(E5)}, {s(S_W2)}, {c*8*40960}\n'
                 f'buffer_load_dwordx4 {v(vL16)}, {s(R_WS,4)}, {s(E5)} offen sc1 lds']
            L += [f's_add_u32 m0, {s(E7)}, {SL4[c]}\ns_nop 0\nbuffer_load_dwordx4 {v(vL16)}, {s(R_WS,4)}, {s(E5)} offen offset:{1024*t} sc1 lds' for t in (1, 2, 3)]
            L.append(f's_add_u32 m0, {s(E7)}, {SL4[c] + 3072}\ns_nop 0\nbuffer_load_dwordx4 {v(vD10)}, {s(R_WS,4)}, {s(E5)} offen offset:1024 sc1 lds')
            return L
        hs = acc3[1]
        a(xdma(0, [0, 1]))
        for i in range(4):
            a(f'buffer_load_dwordx2 {v(hs+2*i,2)}, {v(aXl+3)}, {s(R_WS,4)}, {s(S_HS)} offen offset:{512*i} sc1')
        a(xdma(0, [2, 3, 4]))
        a(';@wait x0_0\ns_barrier')
        a(stamp_txt('x0'))
        p = hs; q = hs + 2
        stats = (f'''v_pk_add_f32 {v(hs,2)}, {v(hs,2)}, {v(hs+2,2)}
v_pk_add_f32 {v(hs+4,2)}, {v(hs+4,2)}, {v(hs+6,2)}
v_pk_add_f32 {v(p,2)}, {v(hs,2)}, {v(hs+4,2)}
''' + xg_reduce(p, q) + f'''
v_mul_f32 {v(p)}, {s(E1)}, {v(p)}
v_mul_f32 {v(p+1)}, {s(E1)}, {v(p+1)}
v_fma_f32 {v(p+1)}, -{v(p)}, {v(p)}, {v(p+1)}
v_max_f32 {v(p+1)}, 0, {v(p+1)}
v_add_f32 {v(q)}, {s(E2)}, {v(p+1)}
v_rsq_f32 {v(q)}, {v(q)}
v_mul_f32 {v(q+1)}, {v(q)}, {v(q)}
v_fma_f32 {v(q+1)}, {v(q+1)}, {v(p+1)}, {s(E2)}
v_rsq_f32 {v(q+1)}, {v(q+1)}
v_mul_f32 {v(hs+4)}, {v(q)}, {v(q+1)}
v_mul_f32 {v(hs+5)}, -{v(p)}, {v(hs+4)}
;@tag rrw
ds_write_b64 {v(t5)}, {v(hs+4,2)}''').split('\n')
        stats = stats[:-2] + [stats[-2] + '\n' + stats[-1]]
        def xread(n):
            j, ks = divmod(n, 20)
            if ks % 5 == 2:
                o = (XS[j] + ks * 1024) // 512
                return f'ds_read2st64_b64 {v(fX[n&3],4)}, {v(aXl+2)} offset0:{o} offset1:{o+1}'
            return f'ds_read_b128 {v(fX[n&3],4)}, {v(aXl + XS[j]//SLOT)} offset:{ks*1024}'
        def epi(j, packed):
            x = acc3[j & 1]; r0 = rr + 2 * j; L = []
            if packed:
                r = v(r0, 2); P4 = (0, 2, 4, 6)
                L += [f'v_pk_fma_f32 {v(u+i,2)}, {r}, {v(cs3+i,2)}, {v(bt+i,2)} op_sel:[1,0,0] op_sel_hi:[1,1,1]' for i in P4]
                L += [f'v_pk_fma_f32 {v(x+i,2)}, {v(x+i,2)}, {r}, {v(u+i,2)} op_sel_hi:[1,0,1]' for i in P4]
                L += [f'v_pk_mul_f32 {v(u+i,2)}, {v(x+i,2)}, {v(x+i,2)}' for i in P4]
                L += [f'v_pk_fma_f32 {v(u+i,2)}, {v(u+i,2)}, {v(kk,2)}, {v(kk,2)} op_sel:[0,0,1] op_sel_hi:[1,0,1]' for i in P4]
                L += [f'v_pk_mul_f32 {v(u+i,2)}, {v(u+i,2)}, {v(x+i,2)}' for i in P4]
                L += [f'v_exp_f32 {v(u+i)}, {v(u+i)}' for i in range(8)]
                L += [f'v_pk_add_f32 {v(u+i,2)}, {v(u+i,2)}, 1.0 op_sel_hi:[1,0]' for i in P4]
                L += [f'v_rcp_f32 {v(u+i)}, {v(u+i)}' for i in range(8)]
                L += [f'v_pk_mul_f32 {v(x+i,2)}, {v(x+i,2)}, {v(u+i,2)}' for i in P4]
            else:
                R8 = range(8)
                L += [f'v_fma_f32 {v(u+i)}, {v(cs3+i)}, {v(r0+1)}, {v(bt+i)}' for i in R8]
                L += [f'v_fma_f32 {v(x+i)}, {v(x+i)}, {v(r0)}, {v(u+i)}' for i in R8]
                L += [f'v_mul_f32 {v(u+i)}, {v(x+i)}, {v(x+i)}' for i in R8]
                L += [f'v_fma_f32 {v(u+i)}, {v(u+i)}, {v(kk)}, {v(kk+1)}' for i in R8]
                L += [f'v_mul_f32 {v(u+i)}, {v(u+i)}, {v(x+i)}' for i in R8]
                L += [f'v_exp_f32 {v(u+i)}, {v(u+i)}' for i in R8]
                L += [f'v_add_f32 {v(u+i)}, 1.0, {v(u+i)}' for i in R8]
                L += [f'v_rcp_f32 {v(u+i)}, {v(u+i)}' for i in R8]
                L += [f'v_mul_f32 {v(x+i)}, {v(x+i)}, {v(u+i)}' for i in R8]
            L += [f'v_cvt_pk_bf16_f32 {v(gp+i)}, {v(x+2*i)}, {v(x+2*i+1)}' for i in range(4)]
            L.append(f'buffer_store_dwordx4 {v(gp,4)}, {v(vL16)}, {s(R_WS,4)}, {s(S_GP)} offen sc1\ns_add_u32 {s(S_GP)}, {s(S_GP)}, {54*1024}')
            L.append(f'buffer_store_dwordx2 {v(gp,2)}, {v(aXl+3)}, {s(R_WS,4)}, {s(S_GS)} offen sc1\ns_add_u32 {s(S_GS)}, {s(S_GS)}, {54*1024}')
            return L
        for n in range(3): a(xread(n))
        for j in range(4):
            M = []
            for ks in range(20):
                n = 20 * j + ks
                pre = ''
                nx = n + 3
                if nx < 80:
                    jx, kx = divmod(nx, 20)
                    if jx == 0 and kx in (4, 8): pre = stamp_txt(f'x0_{kx}a') + f';@wait x0_{1 if kx == 4 else 4}\ns_barrier\n' + stamp_txt(f'x0_{kx}b')
                    if jx > 0 and kx == 0: pre = stamp_txt(f'x{jx}a') + f';@wait x{jx}_4\n;@lwait rrw\ns_barrier\n' + stamp_txt(f'x{jx}b')
                    if jx == 1 and kx == 0: pre += '\n'.join(f'ds_read_b64 {v(rr+2*i,2)}, {v(t6)} offset:{128*i}' for i in range(4)) + '\n'
                for t in range(2):
                    d = v(acc3[j & 1] + 4 * t, 4)
                    ins = f'{MF} {d}, {v(W+8*ks+4*t,4)}, {v(fX[n&3],4)}, {d if ks else 0}'
                    if t == 1 and nx < 80: ins += '\n' + pre + xread(nx)
                    M.append(ins)
            W4 = stop_after >= 4
            if j == 0:
                a(spread(M, xdma(1) + stats, start=2, end=32))
            else:
                M[3] += '\ns_barrier'
                D_ = (xdma(j + 1) if j < 3 else []) + (w2dma(j - 1) if W4 else [])
                M = spread(M, D_, start=4, end=OPT.get('d3end', 30) if j < 3 else 16)
                a(spread(M, epi(j - 1, OPT.get('pk3', 0)), start=4, end=len(M) - 2))
        stamp('p3mm')
        a(epi(3, 1))
        stamp('p3st')

    if stop_after >= 4:
        va.reset(base_mark)
        b2r = va.a(6, 2); aW = va.a(12); axw = va.a(); axr = va.a(); aSP = vONE
        NX = OPT.get('nx', 12)
        acc4 = va.a(20, 4); X4 = va.a(4 * NX, 4); WB = [va.a(20, 4) for _ in range(6)]
        a(f'''v_lshrrev_b32 {v(t0)}, 4, {v(vL)}
v_lshlrev_b32 {v(t0)}, 3, {v(t0)}
buffer_load_dwordx2 {v(b2r,2)}, {v(t0)}, {s(R_B2,4)}, {s(S_CM)} offen
buffer_load_dwordx2 {v(b2r+2,2)}, {v(t0)}, {s(R_B2,4)}, {s(S_CM)} offen offset:32
buffer_load_dwordx2 {v(b2r+4,2)}, {v(t0)}, {s(R_B2,4)}, {s(S_CS)} offen
s_mul_i32 {s(T0+6)}, {s(S_KH)}, 5120''')
        for i, sc in enumerate((S_CM, S_CO, S_CS)):
            a(f's_lshl_b32 {s(T0+7)}, {s(sc)}, 5\ns_add_u32 {s(T0+7)}, {s(T0+7)}, {s(T0+6)}\nv_add_u32 {v(aW+i)}, {s(T0+7)}, {v(vL16)}')
            for sl in range(1, 4): a(f'v_add_u32 {v(aW+3*sl+i)}, {sl*SLOT}, {v(aW+i)}')
        a(';@wait p3out\ns_barrier')
        stamp('drained3')
        signal('s3', 1, lambda r: f's_lshl_b32 {s(T0+4)}, {s(S_RT1)}, 7\ns_add_u32 {s(T0+4)}, {s(T0+4)}, {OFF_C3}\nv_mov_b32 {v(r)}, {s(T0+4)}')
        tl = [(0, 0), (0, 1024), (1, 0), (1, 1024), (2, 0)]
        wbuf = lambda i: WB[i] if i < 4 else WB[4 + (i & 1)]
        def w2read(i):
            c = i // 4; off = (i % 4) * 10240
            return [f'ds_read_b128 {v(wbuf(i)+4*t,4)}, {v(aW+3*(SL4[c]//SLOT)+ai)} offset:{off+ci}' for t, (ai, ci) in enumerate(tl)]
        a(w2dma(3))
        for i in range(5): a(w2read(i))
        a('s_waitcnt lgkmcnt(0)\ns_barrier')
        if OPT.get('sc4early', 1): a(w2dma(4))
        S_GX = T0
        XCH4 = SLOT
        a(f'''s_mul_i32 {s(S_GX)}, {s(S_STILE)}, 54
s_add_u32 {s(S_GX)}, {s(S_GX)}, {s(S_KH)}
s_lshl_b32 {s(S_GX)}, {s(S_GX)}, 10
s_add_u32 {s(S_GX)}, {s(S_GX)}, {OFF_G}
s_mul_i32 {s(T0+6)}, {s(S_W)}, 3072
v_add_u32 {v(axw)}, {s(T0+6)}, {v(vL16)}
s_xor_b32 {s(T0+6)}, {s(S_W)}, 4
s_mul_i32 {s(T0+6)}, {s(T0+6)}, 3072
v_add_u32 {v(axr)}, {s(T0+6)}, {v(vL16)}
s_add_u32 {s(T0+1)}, {s(S_RB)}, {s(S_CM)}
s_add_u32 {s(T0+2)}, {s(S_RB)}, {s(S_CS)}
s_cmp_lg_u32 {s(S_KH)}, 0
s_cselect_b32 {s(T0+2)}, 0x4000000, {s(T0+2)}
s_cselect_b32 {s(T0+6)}, 4, 3
s_cselect_b32 {s(T0+7)}, 8, 0x200
v_lshlrev_b32 {v(aSP)}, {s(T0+6)}, {v(vL)}
v_add_u32 {v(aSP+1)}, {s(T0+7)}, {v(aSP)}
s_cselect_b32 {s(T0+6)}, 3, 4
s_cselect_b32 {s(T0+7)}, 0x200, 8
v_lshlrev_b32 {v(aSP+2)}, {s(T0+6)}, {v(vL)}
v_add_u32 {v(aSP+3)}, {s(T0+7)}, {v(aSP+2)}''')
        poll('s3', 1, lambda r: f's_lshl_b32 {s(T0+4)}, {s(S_GRP)}, 7\ns_add_u32 {s(T0+4)}, {s(T0+4)}, {OFF_C3}\nv_mov_b32 {v(r)}, {s(T0+4)}',
             lambda r: f'v_mov_b32 {v(r)}, 16')
        stamp('sync3')
        def xload(i):
            x = f'buffer_load_dwordx4 {v(X4+4*(i%NX),4)}, {v(vL16)}, {s(R_WS,4)}, {s(S_GX)} offen offset:{(i&1)*2048} sc1'
            for kh in range(2):
                if (2 * i + kh) % 7 == 3 and 2 * i + kh < 42:
                    x = '\n'.join(f'buffer_load_dwordx2 {v(X4+4*(i%NX)+2*hf,2)}, {v(aSP+2*kh+hf)}, {s(R_WS,4)}, {s(S_GX)} offen offset:{(i&1)*2048} sc1' for hf in range(2))
            if i & 1: x += f'\ns_add_u32 {s(S_GX)}, {s(S_GX)}, 4096'
            return x
        NP = OPT.get('np', 6)
        nxt = [0]
        def xl(k):
            L = []
            for _ in range(k):
                if nxt[0] < 27: L.append(xload(nxt[0])); nxt[0] += 1
            return L
        a(xl(NP))
        for i in range(27):
            F = []
            nx = i + 1
            if nx >= 5 and nx < 27:
                if nx % 4 == 0:
                    c = nx // 4
                    a(stamp_txt(f'sc{c}a') + f';@wait sc{c}\ns_barrier\n' + stamp_txt(f'sc{c}b'))
                    if c == 2 and not OPT.get('sc4early', 1): F += w2dma(4)
                    if c in (3, 4): F += w2dma(c + 2)
                F = w2read(nx) + F
            order = range(5) if i < 26 else (2, 3, 4, 0, 1)
            M = [f'{MF} {v(acc4+4*t,4)}, {v(wbuf(i)+4*t,4)}, {v(X4+4*(i%NX),4)}, {v(acc4+4*t,4) if i else 0}' for t in order]
            a(spread(M, F))
            a(xl(min(2, i + 1 + NX - nxt[0])))
        stamp('p4mm')
        rcv = WB[0]; xf = WB[1]; bf = WB[2]
        for i in range(6):
            a(f'v_lshlrev_b32 {v(xf+2*i)}, 16, {v(vHR+i)}\nv_and_b32 {v(xf+2*i+1)}, 0xffff0000, {v(vHR+i)}')
        for i in range(3): a(f'ds_write_b128 {v(axw)}, {v(acc4+8+4*i,4)} offset:{XCH4+1024*i}')
        for i in range(6):
            a(f'v_lshlrev_b32 {v(bf+2*i)}, 16, {v(b2r+i)}\nv_and_b32 {v(bf+2*i+1)}, 0xffff0000, {v(b2r+i)}')
        own = [acc4, acc4 + 4, acc4 + 16]
        for i in range(3):
            for hh in (0, 2):
                a(f'v_pk_add_f32 {v(xf+4*i+hh,2)}, {v(xf+4*i+hh,2)}, {v(bf+4*i+hh,2)}')
                a(f'v_pk_add_f32 {v(xf+4*i+hh,2)}, {v(own[i]+hh,2)}, {v(xf+4*i+hh,2)}')
        a('s_waitcnt lgkmcnt(0)\ns_barrier')
        for i in range(3): a(f'ds_read_b128 {v(rcv+4*i,4)}, {v(axr)} offset:{XCH4+1024*i}')
        for i in range(3):
            for hh in (0, 2):
                a(f'v_pk_add_f32 {v(xf+4*i+hh,2)}, {v(xf+4*i+hh,2)}, {v(rcv+4*i+hh,2)}')
            for hh in range(2):
                a(f'v_cvt_pk_bf16_f32 {v(bf+2*i+hh)}, {v(xf+4*i+2*hh)}, {v(xf+4*i+2*hh+1)}')
            if i < 2: a(f'buffer_store_dwordx2 {v(bf+2*i,2)}, {v(vRO)}, {s(R_OUT,4)}, {s(T0+1)} offen offset:{32*i}')
        a(f'buffer_store_dwordx2 {v(bf+4,2)}, {v(vRO)}, {s(R_OUT,4)}, {s(T0+2)} offen')
        stamp('end')
    if ts:
        a(f'''s_lshl_b32 {s(S_TS)}, s2, 3
s_add_u32 {s(S_TS)}, {s(S_TS)}, {s(S_W)}
s_lshl_b32 {s(S_TS)}, {s(S_TS)}, 8
s_add_u32 {s(S_TS)}, {s(S_TS)}, {OFF_TS}
v_lshlrev_b32 {v(t7)}, 2, {v(vL)}
buffer_store_dword v0, {v(t7)}, {s(R_WS,4)}, {s(S_TS)} offen''')
    a('L_end:\ns_endpgm\n;@clearv\n;@clearl')
    for blk in ool:
        a(blk); a(';@clearv\n;@clearl')
    body = a.finalize()
    return body, va.hi, names

def wrap(body, listmode=False):
    ref = open('cdna_kernels/%s.s.ref' % NAME).read().split('\n')
    hdr = [l for l in ref if l.startswith(';') and '@launch' not in l]
    kn = NAME + '_kernel'
    nv = 256
    launch = (f'; @launch kernel={kn} grid=(256,1,1) block=(512,1,1) lds=163840' if listmode
              else '; @launch grid=(256,1,1) block=(512,1,1) lds=163840')
    return '\n'.join(hdr) + '\n' + launch + '\n' + f'''.amdgcn_target "amdgcn-amd-amdhsa--gfx950"
.text
.globl {kn}
.p2align 8
.type {kn},@function
{kn}:
{body}.section .rodata,"a"
.p2align 6
.amdhsa_kernel {kn}
  .amdhsa_next_free_vgpr {nv}
  .amdhsa_next_free_sgpr 102
  .amdhsa_accum_offset {nv}
  .amdhsa_group_segment_fixed_size 0
  .amdhsa_kernarg_size 88
  .amdhsa_user_sgpr_count 2
  .amdhsa_user_sgpr_kernarg_segment_ptr 1
  .amdhsa_system_sgpr_workgroup_id_x 1
.end_amdhsa_kernel
'''

if __name__ == '__main__':
    import argparse
    ap = argparse.ArgumentParser()
    ap.add_argument('--stop', type=int, default=4)
    ap.add_argument('--ts', action='store_true')
    ap.add_argument('--list', action='store_true')
    ap.add_argument('--opt', default='')
    ap.add_argument('-o', default='cdna_kernels/%s.s' % NAME)
    args = ap.parse_args()
    for kv in filter(None, args.opt.split(',')):
        k_, v_ = kv.split('='); OPT[k_] = int(v_)
    body, hi, names = gen(args.stop, args.ts)
    import subprocess, re, tempfile, os
    with tempfile.TemporaryDirectory() as td:
        open(td + '/a.s', 'w').write(wrap(body.replace('CODE_BYTES', '0x7000').replace('KERNEL_START', NAME + '_kernel'), args.list))
        subprocess.run(['clang', '-x', 'assembler', '-target', 'amdgcn-amd-amdhsa', '-mcpu=gfx950', '-c', td + '/a.s', '-o', td + '/a.o'], check=True)
        h = subprocess.run(['llvm-objdump', '-h', td + '/a.o'], capture_output=True, text=True).stdout
        size = int(re.search(r'\.text\s+([0-9a-f]+)', h).group(1), 16)
    print('code bytes', size)
    txt = wrap(body.replace('CODE_BYTES', str(size - 64)).replace('KERNEL_START', NAME + '_kernel'), args.list)
    if names: txt += '; stamps: ' + ' '.join(names) + '\n'
    open(args.o, 'w').write(txt)
    print('vgpr hi', hi, 'lines', body.count('\n'), names)
```

```python
import sys, math, struct
sys.path.insert(0, 'gen')
from asmlib import Asm, weave, spread

NAME = 'sequential_preLN__linear_attn_block__mixer_channel_mlp__prompt'

OFF_KV = 23 << 20
OFF_CA = 65536
OFF_CB = 73728
OFF_C2 = 75776
OFF_C3 = 79872
OFF_CP = 81920
ZBYTES = 86016
OFF_O = 1 << 20
OFF_H = 5 << 20
OFF_HST = 8 << 20
OFF_G = 9 << 20
OFF_W2P = 17 << 20
OFF_W1P = OFF_W2P + 540 * 4096
OFF_TS = 24 << 20
WS_REC = 32 << 20

LOG2E = 1.4426950408889634
def f2u(x): return struct.unpack('<I', struct.pack('<f', x))[0]
def fhex(x): return '0x%08x' % f2u(x)

class VA:
    def __init__(self, start, limit=256):
        self.cur = start; self.limit = limit; self.hi = start
    def a(self, n=1, al=1):
        self.cur = (self.cur + al - 1) // al * al
        r = self.cur; self.cur += n
        assert self.cur <= self.limit, 'out of VGPRs'
        self.hi = max(self.hi, self.cur)
        return r
    def mark(self): return self.cur
    def reset(self, m): self.cur = m

def v(r, n=1): return f'v{r}' if n == 1 else f'v[{r}:{r+n-1}]'
def s(r, n=1): return f's{r}' if n == 1 else f's[{r}:{r+n-1}]'

P_X, P_WQKV, P_WO, P_BX, P_W1, P_B1, P_W2, P_B2, P_OUT, P_DBG, P_WS = range(4, 26, 2)
S_W = 26; S_RT1 = 27; S_HP = 28; S_GRP = 29; S_MEM = 30; S_CT = 31
R_X = 32; R_WQ = 36; R_WO = 40; R_W1 = 44; R_W2 = 48; R_WS = 52; R_OUT = 56; R_DBG = 60; R_B1 = 64; R_B2 = 68
T0 = 72
S_MG = 80; S_KH = 81; S_T = 82; S_STILE = 83; S_CM = 84; S_CO = 85; S_CS = 86; S_RB = 87; S_ODD = 88; S_MD = 89
M_A = 90; M_B = 92; M_C = 94; M_D = 96
S_TS = 98
S_U0 = 100; S_U1 = 101

def srd(a, r, ptr, add, nrec):
    if add is None:
        a(f's_mov_b32 {s(r)}, {s(ptr)}\ns_mov_b32 {s(r+1)}, {s(ptr+1)}')
    else:
        a(f's_add_u32 {s(r)}, {s(ptr)}, {add}\ns_addc_u32 {s(r+1)}, {s(ptr+1)}, 0')
    a(f's_mov_b32 {s(r+2)}, {nrec}\ns_mov_b32 {s(r+3)}, 0x20000')

def mask64(a, r, val):
    a(f's_mov_b32 {s(r)}, 0x{val & 0xffffffff:08x}\ns_mov_b32 {s(r+1)}, 0x{val >> 32:08x}')

def lanemask(f):
    m = 0
    for l in range(64):
        if f(l): m |= 1 << l
    return m

MF = 'v_mfma_f32_16x16x32_bf16'
SLOT = 40960
OPT = {}

def gen(stop_after=4, ts=False):
    QXOR = OPT.get('qxor', 1)
    KVS = OPT.get('kvs', 1024)
    a = Asm()
    va = VA(1)
    vL = va.a(); vL16 = va.a(); vRO = va.a(); vONE = va.a(4, 4)
    vHR = va.a(6, 2)
    vDUM = va.a(); vD10 = va.a()
    vTmp = va.a(8, 4)
    base_mark = va.mark()
    vXR = va.a(6, 2)
    xr_mark = va.mark()
    t0, t1, t2, t3, t4, t5, t6, t7 = range(vTmp, vTmp + 8)
    names = []
    RT = ['start', 'p1loop', 'sigA', 'syncB', 'drained2', 'sync2', 'drained3', 'sync3', 'end']
    def stamp_txt(name, key='fine3'):
        if not ts or not OPT.get(key): return ''
        idx = len(names); names.append(name)
        return f';@opt on\ns_memtime {s(S_TS,2)}\ns_waitcnt lgkmcnt(0)\nv_writelane_b32 v0, {s(S_TS)}, {idx}\n'
    def stamp(name, idx=None):
        if not ts: return
        if idx is None:
            idx = len(names); names.append(name)
        a(f''';@opt on
s_memtime {s(S_TS,2)}
s_waitcnt lgkmcnt(0)
v_writelane_b32 v0, {s(S_TS)}, {idx}
;@opt off''')
        if name in RT:
            a(f';@opt on\ns_memrealtime {s(S_TS,2)}\ns_waitcnt lgkmcnt(0)\nv_writelane_b32 v0, {s(S_TS)}, {63 - RT.index(name)}\n;@opt off')
        return idx

    a(f'''s_cmp_ge_u32 s2, 256
s_cbranch_scc1 L_end
s_load_dwordx16 s[4:19], s[0:1], 0
s_load_dwordx4 s[20:23], s[0:1], 64
s_load_dwordx2 s[24:25], s[0:1], 80
s_getpc_b64 {s(T0+6,2)}
s_lshr_b32 {s(S_T)}, s2, 3
v_lshrrev_b32 {v(t0)}, 5, v0
s_lshl_b32 {s(T0+4)}, {s(S_T)}, 11
v_lshl_add_u32 {v(t1)}, {v(t0)}, 7, {s(T0+4)}
v_min_u32 {v(t1)}, CODE_BYTES, {v(t1)}
s_mov_b32 exec_lo, 1
s_mov_b32 exec_hi, 1
global_load_dword {v(vDUM)}, {v(t1)}, {s(T0+6,2)}
s_mov_b64 exec, -1
v_lshrrev_b32 {v(t0)}, 6, v0
v_and_b32 {v(vL)}, 63, v0
v_readfirstlane_b32 {s(S_W)}, {v(t0)}
s_and_b32 {s(T0)}, s2, 7
s_and_b32 {s(S_RT1)}, {s(T0)}, 3
s_lshl_b32 {s(S_RT1)}, {s(S_RT1)}, 2
s_and_b32 {s(T0+2)}, {s(S_T)}, 3
s_add_u32 {s(S_RT1)}, {s(S_RT1)}, {s(T0+2)}
s_lshr_b32 {s(S_HP)}, {s(T0)}, 2
s_lshl_b32 {s(S_HP)}, {s(S_HP)}, 3
s_lshr_b32 {s(T0+3)}, {s(S_T)}, 2
s_add_u32 {s(S_HP)}, {s(S_HP)}, {s(T0+3)}
s_and_b32 {s(S_MG)}, {s(S_W)}, 3
s_lshr_b32 {s(S_KH)}, {s(S_W)}, 2
v_lshlrev_b32 {v(vL16)}, 4, {v(vL)}
s_cmp_ge_u32 {s(S_W)}, 4
;@save p1
s_cbranch_scc1 L_p1c''')

    def late_ids():
        a(f'''s_and_b32 {s(T0)}, s2, 7
s_lshl_b32 {s(S_GRP)}, {s(T0)}, 1
s_and_b32 {s(T0+4)}, {s(S_T)}, 1
s_add_u32 {s(S_GRP)}, {s(S_GRP)}, {s(T0+4)}
s_lshr_b32 {s(S_MEM)}, {s(S_T)}, 1
s_and_b32 {s(S_CT)}, {s(S_MEM)}, 7
s_and_b32 {s(S_ODD)}, {s(S_CT)}, 1
s_lshl_b32 {s(S_STILE)}, {s(S_GRP)}, 3
s_lshr_b32 {s(T0+4)}, {s(S_MEM)}, 3
s_lshl_b32 {s(T0+4)}, {s(T0+4)}, 2
s_add_u32 {s(S_STILE)}, {s(S_STILE)}, {s(T0+4)}
s_add_u32 {s(S_STILE)}, {s(S_STILE)}, {s(S_MG)}
s_lshl_b32 {s(T0+4)}, {s(S_ODD)}, 5
s_lshl_b32 {s(T0+5)}, {s(S_KH)}, 6
s_add_u32 {s(S_CM)}, {s(T0+4)}, {s(T0+5)}
s_xor_b32 {s(T0+5)}, {s(T0+5)}, 64
s_add_u32 {s(S_CO)}, {s(T0+4)}, {s(T0+5)}
s_cmp_eq_u32 {s(S_ODD)}, 0
s_cselect_b32 {s(S_CS)}, 128, 0
s_mul_i32 {s(S_RB)}, {s(S_STILE)}, 20480
s_mul_i32 {s(T0+4)}, {s(S_CT)}, 160
s_add_u32 {s(S_RB)}, {s(S_RB)}, {s(T0+4)}
s_lshl_b32 {s(S_MD)}, {s(S_W)}, 10
s_sub_u32 {s(T0+5)}, 819200, {s(T0+4)}
s_sub_u32 {s(T0+6)}, 1280, {s(T0+4)}''')
        srd(a, R_WO, P_WO, s(T0+4), s(T0+5))
        srd(a, R_B2, P_B2, s(T0+4), s(T0+6))
        srd(a, R_DBG, P_DBG, None, 256)
        srd(a, R_OUT, P_OUT, None, 2621440)
        for i in range(4): a(f'v_mov_b32 {v(vONE+i)}, 0x3f803f80')
        a(f'''v_and_b32 {v(t0)}, 15, {v(vL)}
v_mul_u32_u24 {v(t0)}, 1280, {v(t0)}
v_lshrrev_b32 {v(t1)}, 4, {v(vL)}
v_lshl_add_u32 {v(vRO)}, {v(t1)}, 3, {v(t0)}''')

    SA = 32768; RK, RV = 16384, 24576
    SP = 131072; MISC = 155648; FLG = MISC; ST = MISC + 1024; PKS = 3 * SA + 24576
    WQPOS = [SP + 8192 * q for q in range(3)] + [2 * SA + 8192 * q for q in range(4)] + [3 * SA + 8192 * q for q in range(3)]
    KVR = 0; WO = 0; XRL = 106496
    F_WQ, F_KVR, F_DRA, F_DRB, F_PB, F_PK, F_GA, F_H1 = 0, 12, 16, 20, 24, 28, 32, 36
    OOR = WS_REC
    S_LB = 0
    SLP = OPT.get('sleep', 2)
    ool = []

    def phi4(x, tmp, cL, cE6L, e6v, pk=1):
        if not pk:
            return ([f'v_fma_f32 {v(tmp+i)}, {v(x+i)}, {v(cL)}, {v(cE6L)}' for i in range(4)] + [f'v_exp_f32 {v(tmp+i)}, {v(tmp+i)} clamp' for i in range(4)]
                    + [f'v_max_f32 {v(x+i)}, {v(e6v)}, {v(x+i)}' for i in range(4)] + [f'v_add_f32 {v(x+i)}, {v(x+i)}, {v(tmp+i)}' for i in range(4)])
        L = [f'v_pk_fma_f32 {v(tmp+i,2)}, {v(x+i,2)}, {v(cL,2)}, {v(cE6L,2)} op_sel_hi:[1,0,0]' for i in (0, 2)]
        L += [f'v_exp_f32 {v(tmp+i)}, {v(tmp+i)} clamp' for i in range(4)]
        L += [f'v_max_f32 {v(x+i)}, {v(e6v)}, {v(x+i)}' for i in range(4)]
        L += [f'v_pk_add_f32 {v(x+i,2)}, {v(x+i,2)}, {v(tmp+i,2)}' for i in (0, 2)]
        return L
    mk = lambda r, f: f's_mov_b32 {s(r)}, 0x{lanemask(f) & 0xffffffff:08x}\ns_mov_b32 {s(r+1)}, 0x{lanemask(f) >> 32:08x}'

    def larrive(vFL, off):
        a(f's_mov_b64 exec, 1\nds_add_u32 {v(vFL)}, {v(vFL+1)} offset:{off}\ns_mov_b64 exec, -1')
    def lwait(vFL, off, tag, tmp):
        a(f''';@opt on
s_mov_b32 {s(S_LB)}, 0x1000000
L_lw{tag}:
ds_read_b32 {v(tmp)}, {v(vFL)} offset:{off}
s_sub_u32 {s(S_LB)}, {s(S_LB)}, 1
s_cselect_b32 {s(S_LB+1)}, 0, 4
s_waitcnt lgkmcnt(0)
v_readfirstlane_b32 {s(T0+7)}, {v(tmp)}
s_cmp_lt_u32 {s(T0+7)}, {s(S_LB+1)}
s_cbranch_scc1 L_lw{tag}
;@clearl''')
    def last_signals(vFL, off, tag, tmp, lanes, vaddr, wait='s_waitcnt vmcnt(0)'):
        a(f'''{wait}
s_mov_b64 exec, 1
ds_add_rtn_u32 {v(tmp)}, {v(vFL)}, {v(vFL+1)} offset:{off}
s_mov_b64 exec, 0x{(1<<lanes)-1:x}
s_waitcnt lgkmcnt(0)
v_readfirstlane_b32 {s(T0+7)}, {v(tmp)}
s_cmp_lg_u32 {s(T0+7)}, 3
s_cbranch_scc1 L_ls{tag}
buffer_atomic_add {v(vFL+1)}, {v(vaddr)}, {s(R_WS,4)}, 0 offen sc1
L_ls{tag}:
s_mov_b64 exec, -1''')
    def gpoll(tag, vaddr, tmp, lanes=1):
        return f'''s_mov_b64 exec, {(1<<lanes)-1}
s_mov_b32 {s(T0+7)}, 0x400000
L_{tag}_p:
buffer_load_dword {v(tmp)}, {v(vaddr)}, {s(R_WS,4)}, 0 offen sc1
s_sub_u32 {s(T0+7)}, {s(T0+7)}, 1
s_cmp_eq_u32 {s(T0+7)}, 0
s_cbranch_scc1 L_{tag}_d
s_waitcnt vmcnt(0)
v_cmp_gt_u32 vcc, 16, {v(tmp)}
s_cbranch_vccz L_{tag}_d
s_sleep {SLP}
s_branch L_{tag}_p
L_{tag}_d:
s_mov_b64 exec, -1'''

    def x_addrs(aX):
        a(f"""v_lshrrev_b32 {v(t4)}, 4, {v(vL)}
v_and_b32 {v(t7)}, 15, {v(vL)}
s_lshl_b32 {s(T0+4)}, {s(S_MG)}, 12
v_lshrrev_b32 {v(t0)}, 1, {v(t7)}
v_xor_b32 {v(t0)}, {v(t0)}, {v(t4)}
v_lshlrev_b32 {v(t0)}, 4, {v(t0)}
v_lshl_add_u32 {v(t0)}, {v(t7)}, 7, {v(t0)}
v_add_u32 {v(aX)}, {s(T0+4)}, {v(t0)}
v_xor_b32 {v(aX+1)}, 64, {v(aX)}
v_add_u32 {v(aX+2)}, {2*SA}, {v(aX)}
v_add_u32 {v(aX+3)}, {2*SA}, {v(aX+1)}""")
    def w_addrs(rA, rB, rC, xor, base):
        g_, r_, c_, s_ = t4, t5, t6, t7
        a(f"""v_lshrrev_b32 {v(g_)}, 4, {v(vL)}
v_bfe_u32 {v(r_)}, {v(vL)}, 2, 2
v_and_b32 {v(c_)}, 3, {v(vL)}
v_lshl_add_u32 {v(t0)}, {v(g_)}, 3, {v(r_)}
v_lshlrev_b32 {v(t0)}, 7, {v(t0)}
v_and_b32 {v(t1)}, 1, {v(g_)}
v_lshlrev_b32 {v(t1)}, 1, {v(t1)}
v_lshrrev_b32 {v(t2)}, 1, {v(r_)}
v_or_b32 {v(t1)}, {v(t1)}, {v(t2)}
v_lshlrev_b32 {v(t1)}, 5, {v(t1)}
v_and_b32 {v(s_)}, 1, {v(c_)}
v_mul_u32_u24 {v(s_)}, 40, {v(s_)}
s_xor_b32 {s(T0+4)}, {s(S_HP)}, {xor}
s_and_b32 {s(T0+4)}, {s(T0+4)}, 3
s_lshl_b32 {s(T0+4)}, {s(T0+4)}, 4
s_mov_b32 {s(T0+5)}, {base}
v_lshl_add_u32 {v(t2)}, {v(c_)}, 3, {s(T0+4)}
v_xor_b32 {v(t3)}, {v(t2)}, {v(t1)}
v_add3_u32 {v(rA)}, {v(t3)}, {v(t0)}, {s(T0+5)}
v_add_u32 {v(t2)}, 40, {v(t2)}
v_xor_b32 {v(t3)}, {v(t2)}, {v(t1)}
v_add3_u32 {v(rB)}, {v(t3)}, {v(t0)}, {s(T0+5)}
v_add3_u32 {v(t2)}, {v(s_)}, {s(T0+4)}, 32
v_xor_b32 {v(t3)}, {v(t2)}, {v(t1)}
v_add3_u32 {v(rC)}, {v(t3)}, {v(t0)}, {s(T0+5)}""")

    va.reset(xr_mark)
    acc2 = va.a(20, 4); O2 = va.a(32, 4); OS2 = va.a(8, 4)
    WP = [va.a(20, 4) for _ in range(8)]
    aM = va.a(3); vL8 = va.a()
    aS = O2; axr_ = O2 + 3
    axw = vHR; axr = vHR + 1; vL4b = vHR + 2
    XC0 = WO + 38400
    def p2_setup():
        g_, r_, c_ = t4, t5, t6
        a(f'''v_lshrrev_b32 {v(g_)}, 4, {v(vL)}
v_bfe_u32 {v(r_)}, {v(vL)}, 2, 2
v_and_b32 {v(c_)}, 3, {v(vL)}
v_lshl_add_u32 {v(t0)}, {v(g_)}, 2, {v(r_)}
v_mul_u32_u24 {v(t0)}, 160, {v(t0)}
v_lshl_add_u32 {v(t0)}, {v(c_)}, 3, {v(t0)}
v_mul_u32_u24 {v(t1)}, 20, {v(r_)}
v_add3_u32 {v(t1)}, {v(t1)}, {v(g_)}, 16
v_mul_u32_u24 {v(t1)}, 160, {v(t1)}
v_lshl_add_u32 {v(t1)}, {v(c_)}, 3, {v(t1)}
s_xor_b32 {s(T0+4)}, {s(S_KH)}, 1
s_mul_i32 {s(T0+4)}, {s(T0+4)}, 51200''')
        for i, sc in enumerate((S_CM, S_CO, S_CS)):
            a(f's_add_u32 {s(T0+5)}, {s(T0+4)}, {s(sc)}\nv_add_u32 {v(aM+i)}, {s(T0+5)}, {v(t0)}\nv_add_u32 {v(aS+i)}, {s(T0+5)}, {v(t1)}')
        a(f'''s_mul_i32 {s(T0+5)}, {s(S_MG)}, 3072
s_add_u32 {s(T0+5)}, {s(T0+5)}, {XC0}
s_add_u32 {s(T0+6)}, {s(T0+5)}, {s(T0+4)}
v_add_u32 {v(axw)}, {s(T0+6)}, {v(vL16)}
s_sub_u32 {s(T0+6)}, 51200, {s(T0+4)}
s_add_u32 {s(T0+6)}, {s(T0+6)}, {s(T0+5)}
v_add_u32 {v(axr)}, {s(T0+6)}, {v(vL16)}
v_lshlrev_b32 {v(vL8)}, 3, {v(vL)}
v_lshlrev_b32 {v(vL4b)}, 2, {v(vL)}
v_and_b32 {v(t2)}, 15, {v(vL)}
v_mul_u32_u24 {v(t2)}, 160, {v(t2)}
v_lshl_add_u32 {v(t2)}, {v(g_)}, 3, {v(t2)}
s_mul_i32 {s(T0+4)}, {s(S_MG)}, 2560
s_add_u32 {s(T0+4)}, {s(T0+4)}, {XRL}
s_add_u32 {s(T0+5)}, {s(T0+4)}, {s(S_CM)}
v_add_u32 {v(axr_)}, {s(T0+5)}, {v(t2)}
s_add_u32 {s(T0+5)}, {s(T0+4)}, {s(S_CS)}
v_add_u32 {v(axr_+1)}, {s(T0+5)}, {v(t2)}''')
    tl = [(0, 0), (0, 32), (1, 0), (1, 32), (2, 0)]
    WB_ = lambda kind, j: WP[j % 6] if kind == 'm' else WP[6 + j]
    def wread(kind, j):
        buf = WB_(kind, j); L = []
        for t, (ai, ci) in enumerate(tl):
            for jh in range(2):
                if kind == 'm': ad_, off = aM + ai, j * 6400 + jh * 3200 + ci
                else: ad_, off = aS + ai, j * 25600 + jh * 12800 + ci
                L.append(f'ds_read_b64_tr_b16 {v(buf+4*t+2*jh,2)}, {v(ad_)} offset:{off}')
        return L
    def preread(): return [x for j in range(2) for x in wread('s', j)] + [x for j in range(6) for x in wread('m', j)]

    p1_mark = base_mark
    va.reset(base_mark)
    vX = va.a(4); vW = va.a(6); aX = vHR; vFL = vHR + 4
    a(f"""v_lshrrev_b32 {v(t0)}, 3, {v(vL)}
v_and_b32 {v(t1)}, 7, {v(vL)}
v_lshrrev_b32 {v(t2)}, 4, {v(vL)}
s_lshl_b32 {s(T0+4)}, {s(S_MG)}, 5
v_add_u32 {v(t3)}, {s(T0+4)}, {v(t0)}
v_mul_u32_u24 {v(t3)}, 1280, {v(t3)}
v_xor_b32 {v(vX)}, {v(t1)}, {v(t2)}
v_lshl_add_u32 {v(vX)}, {v(vX)}, 4, {v(t3)}
v_xor_b32 {v(vX+1)}, 64, {v(vX)}
v_add_u32 {v(vX+1)}, {8*1280-1024}, {v(vX+1)}
v_add_u32 {v(vX+2)}, {16*1280-2048}, {v(vX)}
v_add_u32 {v(vX+3)}, {16*1280-2048}, {v(vX+1)}
s_mul_i32 {s(T0+6)}, {s(S_RT1)}, 163840""")
    S_MX = M_C; S_MW = M_C + 1; S_SX = M_D; S_SW = M_D + 1; S_CH = S_U1
    a(f's_lshl_b32 {s(S_MX)}, {s(S_MG)}, 12\ns_lshl_b32 {s(S_MW)}, {s(S_MG)}, 11')
    a(f"""s_mul_i32 {s(S_CH)}, {s(T0+2)}, 3
s_add_u32 {s(S_CH)}, {s(S_CH)}, {s(T0+3)}
s_and_b32 {s(T0+7)}, {s(T0)}, 3
s_add_u32 {s(S_CH)}, {s(S_CH)}, {s(T0+7)}
s_lshr_b32 {s(T0+7)}, {s(T0)}, 2
s_lshl_b32 {s(T0+7)}, {s(T0+7)}, 1
s_add_u32 {s(S_CH)}, {s(S_CH)}, {s(T0+7)}
s_cmp_ge_u32 {s(S_CH)}, 10
s_cselect_b32 {s(T0+7)}, 10, 0
s_sub_u32 {s(S_CH)}, {s(S_CH)}, {s(T0+7)}
s_cmp_ge_u32 {s(S_CH)}, 10
s_cselect_b32 {s(T0+7)}, 10, 0
s_sub_u32 {s(S_CH)}, {s(S_CH)}, {s(T0+7)}
s_lshl_b32 {s(T0+4)}, {s(S_MG)}, 4
v_add_u32 {v(t3)}, {s(T0+4)}, {v(t0)}
v_mul_u32_u24 {v(t3)}, 3840, {v(t3)}
v_and_b32 {v(t2)}, 1, {v(t2)}
v_lshlrev_b32 {v(t2)}, 1, {v(t2)}
v_xor_b32 {v(t1)}, {v(t1)}, {v(t2)}
v_lshl_add_u32 {v(t3)}, {v(t1)}, 4, {v(t3)}
v_xor_b32 {v(t0)}, 64, {v(t3)}
v_add_u32 {v(t0)}, {8*3840-1024}, {v(t0)}
s_mul_i32 {s(T0+5)}, {s(S_HP)}, 80
s_and_b32 {s(T0+5)}, {s(T0+5)}, 0xffffffc0
s_add_u32 {s(T0+5)}, {s(T0+5)}, 1280
v_add_u32 {v(vW)}, {s(T0+5)}, {v(t3)}
v_add_u32 {v(vW+1)}, {s(T0+5)}, {v(t0)}
s_add_u32 {s(T0+5)}, {s(T0+5)}, 1280
v_xor_b32 {v(t1)}, 16, {v(t3)}
v_xor_b32 {v(t2)}, 16, {v(t0)}
v_add_u32 {v(vW+2)}, {s(T0+5)}, {v(t1)}
v_add_u32 {v(vW+3)}, {s(T0+5)}, {v(t2)}
s_waitcnt lgkmcnt(0)""")
    srd(a, R_X, P_X, s(T0+6), 163840)
    srd(a, R_WQ, P_WQKV, None, 2457600)
    adv = f's_add_u32 {s(S_CH)}, {s(S_CH)}, 1\ns_cmp_eq_u32 {s(S_CH)}, 10\ns_cselect_b32 {s(S_CH)}, 0, {s(S_CH)}'
    def p1_dma(c):
        sl = c % 4
        L = [f's_lshl_b32 {s(S_SX)}, {s(S_CH)}, 7\ns_mul_i32 {s(S_SW)}, {s(S_CH)}, 245760\ns_add_u32 m0, {s(S_MX)}, {sl*SA}\n{adv}\n'
             f'buffer_load_dwordx4 {v(vX)}, {s(R_X,4)}, {s(S_SX)} offen lds']
        for i in range(1, 4):
            L.append(f'buffer_load_dwordx4 {v(vX+i)}, {s(R_X,4)}, {s(S_SX)} offen offset:{1024*i} lds')
        for sec in range(2):
            L[-1] += f'\ns_add_u32 m0, {s(S_MW)}, {RK + 8192*sec + sl*SA}'
            for b in range(2):
                tg = f';@tag c{c}\n' if (sec == 1 and b == 1) else ''
                L.append(f'{tg}buffer_load_dwordx4 {v(vW+2*sec+b)}, {s(R_WQ,4)}, {s(S_SW)} offen offset:{1024*b} lds')
        return L
    def wq_dma(qs):
        L = []
        for q in qs:
            L.append(f's_mul_i32 {s(S_SW)}, {s(S_CH)}, 245760\ns_add_u32 m0, {s(S_MW)}, {WQPOS[q]}\n{adv}\n'
                     f'buffer_load_dwordx4 {v(vW+4)}, {s(R_WQ,4)}, {s(S_SW)} offen lds')
            L.append(f';@tag q{q}\nbuffer_load_dwordx4 {v(vW+5)}, {s(R_WQ,4)}, {s(S_SW)} offen offset:1024 lds')
        return L
    stamp('start')
    a(p1_dma(0))
    a(f"""s_xor_b32 {s(T0+5)}, {s(S_HP)}, {QXOR}
s_mul_i32 {s(T0+5)}, {s(T0+5)}, 80
s_and_b32 {s(T0+5)}, {s(T0+5)}, 0xffffffc0
v_add_u32 {v(vW+4)}, {s(T0+5)}, {v(t3)}
v_add_u32 {v(vW+5)}, {s(T0+5)}, {v(t0)}""")
    x_addrs(aX)
    for i in range(4): a(f'v_mov_b32 {v(vONE+i)}, 0x3f803f80')
    aQ = va.a(6); aST = va.a(); zp = va.a(2); aTW = zp + 1
    XR = va.a(160, 4); gram = va.a(8, 4); rsum = va.a(8, 4)
    lmark = va.mark()
    i_ls = stamp('loopstart')
    NQ8 = OPT.get('nq8', 0); NQ1 = OPT.get('nq1', 2)
    a(p1_dma(1))
    for i in range(10):
        a(f';@wait c{i}\ns_barrier')
        sl = i % 4
        for j in range(2):
            for m in range(2): a(f'ds_read_b128 {v(XR+16*i+8*j+4*m,4)}, {v(aX+2*(sl>>1)+j)} offset:{(sl&1)*SA + 2048*m}')
        M = []
        for j in range(2):
            z = (i == 0 and j == 0)
            for m in range(2):
                x = v(XR + 16 * i + 8 * j + 4 * m, 4)
                M.append(f'{MF} {v(gram+4*m,4)}, {x}, {x}, {0 if z else v(gram+4*m,4)}')
                M.append(f'{MF} {v(rsum+4*m,4)}, {v(vONE,4)}, {x}, {0 if z else v(rsum+4*m,4)}')
        D_ = p1_dma(i + 2) if i <= 7 else []
        if i == 6: a(f'buffer_load_dword {v(vD10)}, {v(zp)}, {s(R_DBG,4)}, 0 offen sc1')
        a(D_[:2]); a(weave(M, D_[2:]))
        if i == 0:
            srd(a, R_WS, P_WS, None, WS_REC)
            late_ids()
        if i == 1:
            w_addrs(aQ + 1, aQ + 2, aQ, QXOR, 2 * SA)
            for k in range(3): a(f'v_add_u32 {v(aQ+3+k)}, {SP-2*SA}, {v(aQ+k)}')
            a(mk(M_A, lambda l: (l & 3) == 1)); a(mk(M_B, lambda l: (l & 3) == 2)); a(mk(T0+2, lambda l: (l & 3) == 3))
            a(mk(T0, lambda l: ((l & 15) >> 2) == (l >> 4)))
            a(f"""v_and_b32 {v(t0)}, 15, {v(vL)}
v_lshlrev_b32 {v(t0)}, 2, {v(t0)}
s_lshl_b32 {s(T0+4)}, {s(S_MG)}, 7
s_add_u32 {s(T0+4)}, {s(T0+4)}, {ST}
v_add_u32 {v(aST)}, {s(T0+4)}, {v(t0)}
v_mov_b32 {v(zp)}, 0
v_mov_b32 {v(vFL)}, {FLG}
v_mov_b32 {v(vFL+1)}, 1
""")
        if i == 2:
            a(f'''s_lshl_b32 {s(T0+5)}, {s(S_T)}, 2
s_add_u32 {s(T0+5)}, {s(T0+5)}, {s(S_MG)}
s_lshl_b32 {s(P_BX)}, {s(T0+5)}, 13
s_lshl_b32 {s(T0+6)}, s2, 2
s_add_u32 {s(T0+6)}, {s(T0+6)}, {s(S_MG)}
s_movk_i32 {s(S_U0)}, 3456
s_movk_i32 {s(P_BX+1)}, {(1<<16)//27+1}
s_cmp_lt_u32 {s(T0+6)}, 540
s_cselect_b32 {s(R_W2)}, {s(P_W2)}, {s(P_W1)}
s_cselect_b32 {s(R_W2+1)}, {s(P_W2+1)}, {s(P_W1+1)}
s_mov_b32 {s(R_W2+2)}, 2211840
s_mov_b32 {s(R_W2+3)}, 0x20000
s_cselect_b32 {s(S_U0)}, 1280, {s(S_U0)}
s_cselect_b32 {s(T0+5)}, 0, 540
s_cselect_b32 {s(P_BX+1)}, {(1<<16)//10+1}, {s(P_BX+1)}
s_sub_u32 {s(T0+5)}, {s(T0+6)}, {s(T0+5)}
s_mul_i32 {s(P_BX+1)}, {s(P_BX+1)}, {s(T0+5)}
s_lshr_b32 {s(P_BX+1)}, {s(P_BX+1)}, 16
s_mul_i32 {s(P_BX+1)}, {s(P_BX+1)}, {s(S_U0)}
s_mul_i32 {s(P_BX+1)}, {s(P_BX+1)}, 31
s_lshl_b32 {s(T0+5)}, {s(T0+5)}, 7
s_add_u32 {s(P_BX+1)}, {s(P_BX+1)}, {s(T0+5)}''')
            srd(a, R_B1, P_WO, None, 819200)
        if i == OPT.get('wq0at', 7): a(wq_dma(range(3)))
        if i == 8: a(wq_dma(range(3, 3 + NQ8)))
    tmp = vTmp
    a(f's_mov_b32 {s(T0+4)}, {fhex(1/640)}\ns_mov_b32 {s(T0+5)}, {fhex(1e-5)}')
    SS = []
    for m in range(2):
        G = gram + 4 * m; sm = rsum + 4 * m; sq = tmp + 4 * m + 1; o = tmp + 4 * m + 2
        SS.append(f"""v_cndmask_b32 {v(sq)}, {v(G)}, {v(G+1)}, {s(M_A,2)}
v_cndmask_b32 {v(sq)}, {v(sq)}, {v(G+2)}, {s(M_B,2)}
v_cndmask_b32 {v(sq)}, {v(sq)}, {v(G+3)}, {s(T0+2,2)}
v_mul_f32 {v(sm)}, {s(T0+4)}, {v(sm)}
v_mul_f32 {v(sq)}, {s(T0+4)}, {v(sq)}
v_fma_f32 {v(sq)}, -{v(sm)}, {v(sm)}, {v(sq)}
v_max_f32 {v(sq)}, 0, {v(sq)}
v_add_f32 {v(sq)}, {s(T0+5)}, {v(sq)}
v_rsq_f32 {v(o)}, {v(sq)}
v_mul_f32 {v(o+1)}, -{v(sm)}, {v(o)}""".split('\n'))
    for x, y in zip(*SS): a(x); a(y)
    a(f's_mov_b64 exec, {s(T0,2)}')
    for m in range(2):
        a(f'ds_write2_b32 {v(aST)}, {v(tmp+4*m+2)}, {v(tmp+4*m+3)} offset0:{16*m} offset1:{128+16*m}')
    a('s_mov_b64 exec, -1')
    a(f"""v_readfirstlane_b32 {s(T0+4)}, {v(vD10)}
s_cmp_ge_u32 {s(T0+4)}, {ZBYTES//1024}
s_cbranch_scc1 L_zok
s_mov_b32 {s(T0+5)}, 0x400000
L_zpoll:
buffer_load_dword {v(vD10)}, {v(zp)}, {s(R_DBG,4)}, 0 offen sc1
s_waitcnt vmcnt(0)
v_readfirstlane_b32 {s(T0+4)}, {v(vD10)}
s_sub_u32 {s(T0+5)}, {s(T0+5)}, 1
s_cmp_eq_u32 {s(T0+5)}, 0
s_cbranch_scc1 L_zok
s_cmp_lt_u32 {s(T0+4)}, {ZBYTES//1024}
s_cbranch_scc1 L_zpoll
L_zok:""")
    a(wq_dma(range(3 + NQ8, 3 + NQ8 + NQ1)))
    a('s_waitcnt lgkmcnt(0)')
    i_le = stamp('p1loop')
    a('s_barrier')
    QD = wq_dma(range(3 + NQ8 + NQ1, 10))
    va.reset(gram)
    stt = vX
    for m in range(2):
        a(f'ds_read2_b32 {v(stt+2*m,2)}, {v(aST)} offset0:{16*m} offset1:{128+16*m}')
    acc = va.a(24, 4); csq = va.a(12, 4); fq = [va.a(12, 4), vTmp - 0]
    fq[1] = None
    fq1 = [vTmp, vTmp + 4, vW + 0]
    assert vW % 2 == 0
    FQ = lambda b, t: (fq[0] + 4 * t) if b == 0 else fq1[t]
    def qreads(n):
        q = n >> 1; pos = WQPOS[q]; st_ = 3 if pos >= SP else 0; off = pos - (SP if pos >= SP else 2 * SA) + 4096 * (n & 1)
        return [f'ds_read_b64_tr_b16 {v(FQ(n&1,t)+2*jh,2)}, {v(aQ+st_+t)} offset:{off + 512*jh}' for t in range(3) for jh in range(2)]
    groups = {0: (2, 0), 6: (6, 4), 14: (9, 8)}
    def qsync(n):
        ql, fo = groups[n]
        if OPT.get('fine'): stamp(f'q{n}a')
        a(f';@wait q{ql}'); larrive(vFL, F_WQ + fo); lwait(vFL, F_WQ + fo, f'q{n}', vD10)
        if OPT.get('fine'): stamp(f'q{n}b')
    ltouch = f'''v_min_u32 {v(t0)}, 31, {v(vL)}
v_mul_lo_u32 {v(t0)}, {v(t0)}, {s(S_U0)}
v_lshlrev_b32 {v(t1)}, 7, {v(vL)}
buffer_load_dword {v(vDUM)}, {v(t1)}, {s(R_B1,4)}, {s(P_BX)} offen
buffer_load_dword {v(vDUM)}, {v(t0)}, {s(R_W2,4)}, {s(P_BX+1)} offen'''
    LT = OPT.get('lt', 1)
    if LT == 2: a(ltouch)
    if LT: a(QD); QD = []
    if LT == 1: a(ltouch)
    if LT == 3: a(ltouch.split('\n')[2:4])
    if OPT.get('holdb', 0): lwait(vFL, F_KVR, 'hb', vD10)
    qsync(0)
    a(qreads(0))
    for n in range(20):
        M = []
        for t in range(3):
            for m in range(2):
                d = v(acc + (2 * t + m) * 4, 4)
                M.append(f'{MF} {d}, {v(FQ(n&1,t),4)}, {v(XR+8*n+4*m,4)}, {d if n else 0}')
            M.append(f'{MF} {v(csq+4*t,4)}, {v(FQ(n&1,t),4)}, {v(vONE,4)}, {v(csq+4*t,4) if n else 0}')
        if n + 1 in groups:
            a(QD); QD = []
            a(M[:3]); qsync(n + 1); a(weave(M[3:], qreads(n + 1)))
        elif n < 19:
            k = OPT.get('qdper', 3); a(weave(M, qreads(n + 1) + QD[:k])); QD = QD[k:]
        else: a(M)
    larrive(vFL, F_PB)
    stamp('passB')
    va.reset(XR)
    kc = va.a(6, 2); cL, cE6L, e6v = kc, kc + 2, kc + 4
    tmp = va.a(16, 4); pk = va.a(12, 4); kvr = va.a(16, 4); fr = va.a(12, 4); Dq = va.a(32, 4); O = va.a(8, 4); tt = va.a(8, 2); cden = va.a(4, 4)
    aPA = va.a(); aSB = va.a(); vL4 = va.a(); OS = va.a(2)
    a(f"""v_mov_b32 {v(cL)}, {fhex(LOG2E)}
v_mov_b32 {v(cE6L)}, {fhex(-1e-6*LOG2E)}
v_mov_b32 {v(e6v)}, {fhex(1e-6)}
v_mov_b32 {v(cden)}, {fhex(1e-6)}
v_mov_b32 {v(cden+1)}, {fhex(1e-6)}
v_mov_b32 {v(cden+2)}, 0
v_mov_b32 {v(cden+3)}, 0
v_lshlrev_b32 {v(vL4)}, 2, {v(vL)}
s_xor_b32 {s(T0+2)}, {s(S_HP)}, {QXOR}
s_lshl_b32 {s(T0)}, {s(S_MG)}, 1
s_lshl_b32 {s(T0+1)}, {s(S_RT1)}, 3
s_add_u32 {s(T0)}, {s(T0)}, {s(T0+1)}
s_lshl_b32 {s(T0)}, {s(T0)}, 4
s_add_u32 {s(T0)}, {s(T0)}, {s(T0+2)}
s_mul_i32 {s(T0)}, {s(T0)}, 1280
s_add_u32 {s(T0)}, {s(T0)}, {OFF_O}
s_add_u32 {s(T0+1)}, {s(T0)}, {16*1280}
s_and_b32 {s(T0+4)}, s2, 3
s_lshl_b32 {s(T0+4)}, {s(T0+4)}, 4
s_add_u32 {s(T0+4)}, {s(T0+4)}, {s(T0+2)}
s_lshl_b32 {s(T0+4)}, {s(T0+4)}, 7
s_add_u32 {s(T0+4)}, {s(T0+4)}, {OFF_CA}
v_mov_b32 {v(aPA)}, {s(T0+4)}
s_lshl_b32 {s(T0+4)}, {s(S_RT1)}, 7
s_add_u32 {s(T0+4)}, {s(T0+4)}, {OFF_CB}
v_mov_b32 {v(aSB)}, {s(T0+4)}
s_lshl_b32 {s(T0+2)}, {s(T0+2)}, 12
s_add_u32 {s(T0+2)}, {s(T0+2)}, {OFF_KV}""")
    a(mk(M_A, lambda l: (l >> 4) == 0)); a(mk(M_B, lambda l: (l >> 4) == 1))
    a(mk(M_C, lambda l: ((l >> 4) == 0 and (l & 1) == 0) or ((l >> 4) == 1 and (l & 1) == 1)))
    a(mk(M_D, lambda l: (l & 1) == 0))
    dst = {1: 0, 0: 2, 2: 4}
    for t in range(3):
        c = csq + 4 * t
        for m in range(2):
            for i in (0, 2):
                a(f'v_pk_fma_f32 {v(tmp+8*m+i,2)}, {v(stt+2*m,2)}, {v(c+i,2)}, {v(e6v,2)} op_sel:[1,0,0] op_sel_hi:[1,1,0]')
        for m in range(2):
            x = acc + (2 * t + m) * 4
            for i in (0, 2):
                a(f'v_pk_fma_f32 {v(x+i,2)}, {v(x+i,2)}, {v(stt+2*m,2)}, {v(tmp+8*m+i,2)} op_sel_hi:[1,0,1]')
        P = [phi4(acc + (2 * t + m) * 4, tmp + 8 * m + 4, cL, cE6L, e6v) for m in range(2)]
        for x, y in zip(*P): a(x); a(y)
        for m in range(2):
            x = acc + (2 * t + m) * 4; o = pk + 6 * m + dst[t]
            a(f'v_cvt_pk_bf16_f32 {v(o)}, {v(x)}, {v(x+1)}\nv_cvt_pk_bf16_f32 {v(o+1)}, {v(x+2)}, {v(x+3)}')
    stamp('qepi')
    a(f's_cmp_lg_u32 {s(S_W)}, 0\ns_cbranch_scc1 L_sA_o\n;@opt on'); a(gpoll('sA', aPA, tmp))
    a(f'v_mov_b32 {v(tmp)}, 4\nds_write_b32 {v(vFL)}, {v(tmp)} offset:{F_GA}\ns_branch L_sA_j\nL_sA_o:')
    lwait(vFL, F_GA, 'ga', tmp)
    a('L_sA_j:')
    stamp('syncA')
    for b in (3, 2, 0, 1):
        a(f'buffer_load_dwordx4 {v(kvr+4*b,4)}, {v(vL16)}, {s(R_WS,4)}, {s(T0+2)} offen offset:{1024*b} sc1')
    M0, M1, EM, XX = kvr, kvr + 4, kvr + 8, kvr + 12
    em, xx, tx = tt, tt + 2, tt + 4; f = fr
    for i in range(2): a(f'v_cvt_pk_bf16_f32 {v(xx+i)}, {v(XX+2*i)}, {v(XX+2*i+1)}')
    for i in range(2): a(f'v_cvt_pk_bf16_f32 {v(em+i)}, {v(EM+2*i)}, {v(EM+2*i+1)}')
    for i in range(2): a(f'v_permlane32_swap_b32 {v(xx+i)}, {v(tx+i)}')
    for i in range(2): a(f'v_cndmask_b32 {v(tx+i)}, 0, {v(tx+i)}, {s(M_C,2)}')
    for i in range(2):
        a(f'v_cndmask_b32 {v(f+8+i)}, {v(tx+i)}, {v(em+i)}, {s(M_D,2)}')
        a(f'v_cndmask_b32 {v(f+10+i)}, {v(em+i)}, {v(tx+i)}, {s(M_D,2)}')
    for i in range(2):
        a(f'v_cndmask_b32 {v(f+2+i)}, 0, {v(xx+i)}, {s(M_A,2)}')
        a(f'v_cndmask_b32 {v(f+4+i)}, 0, {v(xx+i)}, {s(M_B,2)}')
    X0 = lambda m: v(pk + 6 * m, 4); X1 = lambda m: v(pk + 6 * m + 2, 4)
    for m in range(2):
        a(f'{MF} {v(Dq+16*m+8,4)}, {v(f+8,4)}, {X0(m)}, {v(cden,4)}\n{MF} {v(Dq+16*m+12,4)}, {v(f+8,4)}, {X1(m)}, {v(cden,4)}')
    for i in range(2): a(f'v_cvt_pk_bf16_f32 {v(f+i)}, {v(M0+2*i)}, {v(M0+2*i+1)}')
    for i in range(2): a(f'v_cvt_pk_bf16_f32 {v(f+6+i)}, {v(M1+2*i)}, {v(M1+2*i+1)}')
    for m in range(2):
        a(f'{MF} {v(Dq+16*m,4)}, {v(f,4)}, {X0(m)}, 0\n{MF} {v(Dq+16*m+4,4)}, {v(f+4,4)}, {X1(m)}, 0')
    for m in range(2):
        d = Dq + 16 * m
        a(f'v_rcp_f32 {v(tt+4*m)}, {v(d+8)}\nv_rcp_f32 {v(tt+4*m+1)}, {v(d+13)}')
    for m in range(2):
        d = Dq + 16 * m
        a(f'v_mul_f32 {v(tt+4*m+2)}, {v(tt+4*m)}, {v(d+10)}\nv_mul_f32 {v(tt+4*m+3)}, {v(tt+4*m+1)}, {v(d+15)}')
        a(f'v_cvt_pk_bf16_f32 {v(OS+m)}, {v(tt+4*m+2)}, {v(tt+4*m+3)}')
        a(f'buffer_store_dword {v(OS+m)}, {v(vL4)}, {s(R_WS,4)}, {s(T0+m)} offen offset:1024 sc1')
    for m in range(2):
        d = Dq + 16 * m
        for i in (0, 2): a(f'v_pk_mul_f32 {v(d+i,2)}, {v(d+i,2)}, {v(tt+4*m,2)} op_sel_hi:[1,0]')
        for i in (4, 6): a(f'v_pk_mul_f32 {v(d+i,2)}, {v(tt+4*m,2)}, {v(d+i,2)} op_sel:[1,0] op_sel_hi:[1,1]')
        for i in range(4): a(f'v_cvt_pk_bf16_f32 {v(O+4*m+i)}, {v(d+2*i)}, {v(d+2*i+1)}')
        a(f'buffer_store_dwordx4 {v(O+4*m,4)}, {v(vL16)}, {s(R_WS,4)}, {s(T0+m)} offen sc1')
    stamp('ost')
    a(f'v_mov_b32 {v(vHR+3)}, {v(aSB)}')
    p2_setup()
    last_signals(vFL, F_DRB, 'B', vD10, 1, vHR + 3)
    stamp('sigB')
    a('s_branch L_p1join')

    va.reset(base_mark)
    a('L_p1c:\n;@restore p1')
    stamp('start', 0)
    aX = vHR; vFL = vHR + 4
    a(f'v_mov_b32 {v(t0)}, 0\nv_mov_b32 {v(t1)}, 0\nv_mov_b32 {v(t2)}, 0\nv_mov_b32 {v(t3)}, 0\nv_mov_b32 {v(vFL)}, {FLG}\nv_mov_b32 {v(vFL+1)}, 1')
    a(f'ds_write_b128 {v(vFL)}, {v(t0,4)}\nds_write_b128 {v(vFL)}, {v(t0,4)} offset:16\nds_write_b128 {v(vFL)}, {v(t0,4)} offset:32')
    for i in range(4): a(f'v_mov_b32 {v(vONE+i)}, 0x3f803f80')
    x_addrs(aX)
    aT = va.a(10)
    w_addrs(aT, aT + 1, aT + 4, 0, RK)
    a(f"""v_xor_b32 {v(aT+2)}, 16, {v(aT)}
v_xor_b32 {v(aT+3)}, 16, {v(aT+1)}
v_xor_b32 {v(t0)}, 16, {v(aT+4)}
v_add_u32 {v(aT+2)}, {RV-RK}, {v(aT+2)}
v_add_u32 {v(aT+3)}, {RV-RK}, {v(aT+3)}
v_add_u32 {v(t0)}, {RV-RK}, {v(t0)}
v_cmp_lt_u32 vcc, 1, {v(t6)}
v_cndmask_b32 {v(aT+4)}, {v(aT+4)}, {v(t0)}, vcc""")
    for i in range(5): a(f'v_add_u32 {v(aT+5+i)}, {2*SA}, {v(aT+i)}')
    raw = va.a(32, 4); vPK = va.a(4); PKO = P_BX; PKI = P_BX + 1; S_GW = S_U1; S_PK2 = M_D
    kc = va.a(6, 2); cL, cE6L, e6v, zv = kc, kc + 2, kc + 4, kc + 5
    aST = va.a(); aW1 = va.a(); aW2 = va.a(); aRD = va.a(); aAT = va.a(); aSA = va.a(); vDW = va.a(5); aTW = va.a(3)
    def rawloads():
        for r in range(4):
            a(f'buffer_load_dwordx4 {v(raw+4*r,4)}, {v(vPK)}, {s(R_W2,4)}, {s(PKO)} offen')
            if r < 3: a(f's_add_u32 {s(PKO)}, {s(PKO)}, {s(PKI)}')
        a(f'''s_lshl_b32 {s(S_PK2)}, {s(S_MG)}, 8
s_xor_b32 {s(T0+5)}, s2, 0xe0
s_add_u32 {s(S_PK2)}, {s(S_PK2)}, {s(T0+5)}
s_add_u32 {s(T0+5)}, {s(S_PK2)}, 484
s_mul_i32 {s(PKO)}, {s(T0+5)}, {(1<<16)//27+1}
s_lshr_b32 {s(PKO)}, {s(PKO)}, 16
s_mul_i32 {s(PKO)}, {s(PKO)}, {31*3456}
s_lshl_b32 {s(T0+5)}, {s(T0+5)}, 7
s_add_u32 {s(PKO)}, {s(PKO)}, {s(T0+5)}
s_cmp_ge_u32 {s(S_PK2)}, 56
s_cselect_b32 {s(PKO)}, 0x1000000, {s(PKO)}''')
        for r in range(4):
            a(f'buffer_load_dwordx4 {v(raw+16+4*r,4)}, {v(vPK+1)}, {s(R_W1,4)}, {s(PKO)} offen')
            if r < 3: a(f's_add_u32 {s(PKO)}, {s(PKO)}, {8*3456}')
    def setupA():
        a('s_waitcnt lgkmcnt(0)')
        srd(a, R_WS, P_WS, None, WS_REC)
        a(f"""s_lshl_b32 {s(S_GW)}, s2, 2
s_add_u32 {s(S_GW)}, {s(S_GW)}, {s(S_MG)}
s_lshl_b32 {s(T0+4)}, {s(S_GW)}, 10
s_add_u32 {s(T0+5)}, {s(T0+4)}, {OFF_KV}
s_cmp_lt_u32 {s(S_GW)}, 64
s_cselect_b32 {s(T0+4)}, {s(T0+5)}, {s(T0+4)}
s_cmp_ge_u32 {s(S_GW)}, {ZBYTES//1024}
s_cselect_b32 {s(T0+4)}, {OOR}, {s(T0+4)}
v_mov_b32 {v(t0)}, 0
v_mov_b32 {v(t1)}, 0
v_mov_b32 {v(t2)}, 0
v_mov_b32 {v(t3)}, 0
buffer_store_dwordx4 {v(t0,4)}, {v(vL16)}, {s(R_WS,4)}, {s(T0+4)} offen sc1""")
        a(f'''v_lshrrev_b32 {v(t4)}, 3, {v(vL)}
v_and_b32 {v(t5)}, 7, {v(vL)}
v_lshlrev_b32 {v(t5)}, 4, {v(t5)}
s_movk_i32 {s(T0+4)}, 3456
s_movk_i32 {s(PKO)}, {(1<<16)//27+1}
s_cmp_lt_u32 {s(S_GW)}, 540
s_cselect_b32 {s(R_W2)}, {s(P_W2)}, {s(P_W1)}
s_cselect_b32 {s(R_W2+1)}, {s(P_W2+1)}, {s(P_W1+1)}
s_mov_b32 {s(R_W2+2)}, 2211840
s_mov_b32 {s(R_W2+3)}, 0x20000
s_cselect_b32 {s(T0+4)}, 1280, {s(T0+4)}
s_cselect_b32 {s(T0+5)}, 0, 540
s_cselect_b32 {s(PKO)}, {(1<<16)//10+1}, {s(PKO)}
v_mad_u32_u24 {v(vPK)}, {v(t4)}, {s(T0+4)}, {v(t5)}
s_lshl_b32 {s(PKI)}, {s(T0+4)}, 3
s_sub_u32 {s(T0+5)}, {s(S_GW)}, {s(T0+5)}
s_mul_i32 {s(PKO)}, {s(PKO)}, {s(T0+5)}
s_lshr_b32 {s(PKO)}, {s(PKO)}, 16
s_mul_i32 {s(PKO)}, {s(PKO)}, {s(T0+4)}
s_mul_i32 {s(PKO)}, {s(PKO)}, 31
s_lshl_b32 {s(T0+5)}, {s(T0+5)}, 7
s_add_u32 {s(PKO)}, {s(PKO)}, {s(T0+5)}
s_movk_i32 {s(T0+4)}, 3456
v_mad_u32_u24 {v(vPK+1)}, {v(t4)}, {s(T0+4)}, {v(t5)}''')
        assert all((j * ((1<<16)//10+1)) >> 16 == j // 10 for j in range(540)) and all((j * ((1<<16)//27+1)) >> 16 == j // 27 for j in range(540))
        srd(a, R_W1, P_W1, None, 2211840)
        srd(a, R_B1, P_B1, None, 3456)
        srd(a, R_X, P_B2, None, 1280)
        a(f'''v_lshlrev_b32 {v(t4)}, 7, {v(vL)}
s_cmp_lg_u32 {s(S_W)}, 4
s_cbranch_scc1 L_ntb
buffer_load_dword {v(vDUM)}, {v(t4)}, {s(R_B1,4)}, 0 offen
buffer_load_dword {v(vDUM)}, {v(t4)}, {s(R_X,4)}, 0 offen
L_ntb:''')
    def setupC():
        late_ids()
        a(mk(M_A, lambda l: (l & 15) >= 8)); a(mk(M_B, lambda l: (l >> 4) == 1)); a(mk(M_C, lambda l: ((l & 15) >> 2) & 1))
        a(f"""v_mov_b32 {v(cL)}, {fhex(LOG2E)}
v_mov_b32 {v(cE6L)}, {fhex(-1e-6*LOG2E)}
v_mov_b32 {v(e6v)}, {fhex(1e-6)}
v_cndmask_b32 {v(zv)}, {v(e6v)}, 0, {s(M_A,2)}
s_lshl_b32 {s(T0+4)}, {s(S_MG)}, 7
s_add_u32 {s(T0+4)}, {s(T0+4)}, {ST}
v_and_b32 {v(t0)}, 48, {v(vL)}
v_add_u32 {v(aST)}, {s(T0+4)}, {v(t0)}
s_mul_i32 {s(T0+4)}, {s(S_MG)}, 5120
s_add_u32 {s(T0+4)}, {s(T0+4)}, {KVR}
v_add_u32 {v(aW1)}, {s(T0+4)}, {v(vL16)}
v_and_b32 {v(t1)}, 3, {v(vL)}
v_bfe_u32 {v(t2)}, {v(vL)}, 2, 2
v_lshl_add_u32 {v(t1)}, {v(t1)}, 2, {v(t2)}
v_add_u32 {v(t1)}, {v(t1)}, {v(t0)}
v_lshl_add_u32 {v(aW2)}, {v(t1)}, 4, {s(T0+4)}
s_lshl_b32 {s(T0+4)}, {s(S_MG)}, 10
v_lshl_add_u32 {v(aRD)}, {v(vL)}, 2, {s(T0+4)}
s_lshl_b32 {s(T0+5)}, {s(S_HP)}, 12
s_add_u32 {s(T0+5)}, {s(T0+5)}, {OFF_KV}
v_add_u32 {v(aAT)}, {s(T0+5)}, {v(aRD)}
s_lshl_b32 {s(T0+5)}, {s(S_HP)}, 7
s_add_u32 {s(T0+5)}, {s(T0+5)}, {OFF_CA}
v_lshl_add_u32 {v(aSA)}, {v(vL)}, 11, {s(T0+5)}
s_lshl_b32 {s(T0+4)}, {s(S_MG)}, 11
s_add_u32 {s(T0+4)}, {s(T0+4)}, {PKS}
v_add_u32 {v(vPK+2)}, {s(T0+4)}, {v(vL16)}
v_lshrrev_b32 {v(t0)}, 2, {v(vL)}
v_lshlrev_b32 {v(t0)}, 7, {v(t0)}
v_and_b32 {v(t1)}, 3, {v(vL)}
v_lshl_add_u32 {v(t0)}, {v(t1)}, 3, {v(t0)}
v_add_u32 {v(vPK+3)}, {s(T0+4)}, {v(t0)}
s_lshl_b32 {s(S_U0)}, {s(S_GW)}, 12
s_add_u32 {s(S_U0)}, {s(S_U0)}, {OFF_W2P}
s_lshl_b32 {s(T0+4)}, {s(S_MG)}, 6
v_add_u32 {v(t0)}, {s(T0+4)}, {v(vL)}
s_movk_i32 {s(T0+4)}, 1120""")
        for j in range(5):
            a(f'''v_mul_u32_u24 {v(t1)}, 6554, {v(t0)}
v_lshrrev_b32 {v(t1)}, 16, {v(t1)}
v_lshlrev_b32 {v(t2)}, 4, {v(t0)}
v_mad_u32_u24 {v(vDW+j)}, {v(t1)}, {s(T0+4)}, {v(t2)}
v_add_u32 {v(t0)}, 256, {v(t0)}''')
        srd(a, R_B1, P_WO, None, 819200)
        srd(a, R_X, P_W2, None, 2211840)
        srd(a, R_WQ, P_WQKV, None, 2457600)
        a(f'''s_lshl_b32 {s(T0+4)}, {s(S_RT1)}, 3
s_lshr_b32 {s(T0+5)}, {s(S_HP)}, 1
s_add_u32 {s(T0+4)}, {s(T0+4)}, {s(T0+5)}
s_mul_i32 {s(T0+5)}, {s(T0+4)}, 43
s_lshr_b32 {s(T0+5)}, {s(T0+5)}, 8
s_mul_i32 {s(T0+5)}, {s(T0+5)}, 6
s_sub_u32 {s(T0+3)}, {s(T0+4)}, {s(T0+5)}
s_and_b32 {s(T0+5)}, {s(S_HP)}, 7
s_bitcmp1_b32 0xa5, {s(T0+5)}
s_cselect_b32 {s(T0+3)}, {s(T0+3)}, 63
s_lshl_b32 {s(T0+4)}, {s(T0+4)}, 2
s_add_u32 {s(T0+4)}, {s(T0+4)}, {s(S_MG)}
s_mul_i32 {s(T0)}, {s(T0+4)}, {34*128}
s_mul_i32 {s(T0+1)}, {s(T0+4)}, {13*128}
v_min_u32 {v(aTW)}, 33, {v(vL)}
v_lshlrev_b32 {v(aTW)}, 7, {v(aTW)}
v_min_u32 {v(aTW+1)}, 12, {v(vL)}
s_mul_i32 {s(T0+5)}, {s(T0+4)}, 13
v_add_u32 {v(t0)}, {s(T0+5)}, {v(aTW+1)}
v_lshlrev_b32 {v(aTW+1)}, 7, {v(aTW+1)}
v_mul_u32_u24 {v(t1)}, 6554, {v(t0)}
v_lshrrev_b32 {v(t1)}, 16, {v(t1)}
v_lshlrev_b32 {v(t0)}, 7, {v(t0)}
s_movk_i32 {s(T0+5)}, 2560
v_mad_u32_u24 {v(aTW+2)}, {v(t1)}, {s(T0+5)}, {v(t0)}''')
        assert all((u * 43) >> 8 == u // 6 for u in range(128)) and all((u * 6554) >> 16 == u // 10 for u in range(6700))
    acc = va.a(40, 4); csa = va.a(20, 4); pkf = va.a(16, 4)
    fX = [va.a(8, 4), va.a(8, 4)]; fW = [va.a(20, 4), va.a(20, 4)]
    A_ = lambda t, m: acc + (t * 2 + m) * 4
    zsig = f"""s_cmp_ge_u32 {s(S_GW)}, {ZBYTES//1024}
s_cbranch_scc1 L_nozsig
v_mov_b32 {v(t0)}, 0
s_mov_b64 exec, 1
buffer_atomic_add {v(vFL+1)}, {v(t0)}, {s(R_DBG,4)}, 0 offen sc1
s_mov_b64 exec, -1
L_nozsig:"""
    def packjob(rw, dst):
        for hf in range(2):
            for r in range(2): a(f'ds_write_b128 {v(vPK+2)}, {v(rw+8*hf+4*r,4)} offset:{1024*r}')
            for t in range(4): a(f'ds_read_b64_tr_b16 {v(pkf+4*t+2*hf,2)}, {v(vPK+3)} offset:{32*t}')
        for t in range(4):
            a(f'buffer_store_dwordx4 {v(pkf+4*t,4)}, {v(vL16)}, {s(R_WS,4)}, {dst} offen offset:{1024*t} sc1')
    if OPT.get('sa', 0) < 0: setupA()
    if OPT.get('sc', 1) < 0: setupC()
    stamp('loopstart', i_ls)
    def reads(n):
        sl = (n // 2) % 4; j = n & 1; b = n & 1
        L = [f'ds_read_b128 {v(fX[b]+4*m,4)}, {v(aX+2*(sl>>1)+j)} offset:{(sl&1)*SA + 2048*m}' for m in range(2)]
        for t in range(5):
            for jh in range(2):
                L.append(f'ds_read_b64_tr_b16 {v(fW[b]+4*t+2*jh,2)}, {v(aT+5*(sl>>1)+t)} offset:{(sl&1)*SA + 4096*j + 512*jh}')
        return L
    def mfmas(n):
        b = n & 1; L = []
        for t in ((0, 1, 2, 3, 4) if n < 19 else (0, 4, 2, 1, 3)):
            L.append(f'{MF} {v(csa+4*t,4)}, {v(vONE,4)}, {v(fW[b]+4*t,4)}, {v(csa+4*t,4) if n else 0}')
            for m in range(2):
                d = v(A_(t, m), 4)
                L.append(f'{MF} {d}, {v(fX[b]+4*m,4)}, {v(fW[b]+4*t,4)}, {d if n else 0}')
        return L
    a('s_waitcnt lgkmcnt(0)\ns_barrier')
    if OPT.get('fine'): stamp('b0')
    a(reads(0))
    PJ = OPT.get('pjat', 6)
    for n in range(20):
        if n & 1 and n < 19:
            if OPT.get('fine'): stamp(f'b{(n+1)//2}pre')
            a('s_barrier')
            if OPT.get('fine'): stamp(f'b{(n+1)//2}')
        a('s_waitcnt lgkmcnt(0)')
        a(weave(mfmas(n), reads(n + 1) if n < 19 else []))
        if n == OPT.get('sa', 0): setupA()
        if n == OPT.get('sc', 1): setupC()
        W0_ = OPT.get('wm0', 4)
        if OPT.get('warm', 0) and W0_ <= n < W0_ + 12 and (n - W0_) % 2 == 0:
            a(f'''s_cmp_lg_u32 {s(T0+3)}, {(n-W0_)//2}
s_cbranch_scc1 L_wm{n}
buffer_load_dword {v(vDUM)}, {v(aTW+2)}, {s(R_WQ,4)}, 0 offen
buffer_load_dword {v(vDUM)}, {v(aTW+1)}, {s(R_B1,4)}, {s(T0+1)} offen
buffer_load_dword {v(vDUM)}, {v(aTW)}, {s(R_W1,4)}, {s(T0)} offen
buffer_load_dword {v(vDUM)}, {v(aTW)}, {s(R_X,4)}, {s(T0)} offen
L_wm{n}:''')
        if n == OPT.get('zs', 3):
            a('s_waitcnt vmcnt(0)')
            a(zsig)
    stamp('p1loop', i_le)
    a('s_setprio 1\ns_barrier')
    if OPT.get('fine'): stamp('B2')
    RAW = OPT.get('raw', 3)
    def cold():
        rawloads()
    stt = pkf; tmp = va.a(16, 4); op = fW[0] - 16; D = fW[0] + 8
    assert op == fX[0] and fW[1] == fW[0] + 20
    for m in range(2):
        a(f'ds_read_b128 {v(stt+8*m+4,4)}, {v(aST)} offset:{512+64*m}')
        a(f'ds_read_b128 {v(stt+8*m,4)}, {v(aST)} offset:{64*m}')
    if RAW == 1: cold()
    KA, KB, VA_, VB, KVC, KVCp = [v(op + 4 * i, 4) for i in range(6)]
    prods = [(KA, VA_), (KB, VB), (KVC, VA_), (KVC, VB), (KA, KVCp), (KB, KVCp), (KVC, KVCp)]
    PM = lambda i: f'{MF} {v(D+4*i,4)}, {prods[i][0]}, {prods[i][1]}, 0'
    for t in (0, 4, 2, 1, 3):
        cp = v(csa + 4 * t, 2)
        PKE = OPT.get('pke', 0)
        for m in range(2):
            tt_ = tmp + 8 * m
            if PKE:
                for i in (0, 2):
                    if t in (2, 3):
                        a(f'v_pk_mul_f32 {v(tt_+i,2)}, {cp}, {v(stt+8*m+4+i,2)}')
                    else:
                        zs = 1 if t == 4 else 0
                        a(f'v_pk_fma_f32 {v(tt_+i,2)}, {cp}, {v(stt+8*m+4+i,2)}, {v(e6v,2)} op_sel:[0,0,{zs}] op_sel_hi:[1,1,{zs}]')
            else:
                for i in range(4):
                    if t in (2, 3): a(f'v_mul_f32 {v(tt_+i)}, {v(csa+4*t)}, {v(stt+8*m+4+i)}')
                    else: a(f'v_fma_f32 {v(tt_+i)}, {v(csa+4*t)}, {v(stt+8*m+4+i)}, {v(zv if t == 4 else e6v)}')
        if t == 2: a(PM(4)); a(PM(6))
        if t == 1: a(PM(0)); a(PM(2))
        if t == 3: a(PM(5))
        for m in range(2):
            x = A_(t, m); tt_ = tmp + 8 * m
            if PKE:
                for i in (0, 2): a(f'v_pk_fma_f32 {v(x+i,2)}, {v(x+i,2)}, {v(stt+8*m+i,2)}, {v(tt_+i,2)}')
            else:
                for i in range(4): a(f'v_fma_f32 {v(x+i)}, {v(x+i)}, {v(stt+8*m+i)}, {v(tt_+i)}')
        if t == 4:
            for m in range(2):
                x = A_(t, m)
                a(f'v_cvt_pk_bf16_f32 {v(op+20+2*m)}, {v(x)}, {v(x+1)}\nv_cvt_pk_bf16_f32 {v(op+20+2*m+1)}, {v(x+2)}, {v(x+3)}')
        if t in (0, 1, 4):
            P = [phi4(A_(t, m), tmp + 8 * m + 4, cL, cE6L, e6v, PKE) for m in range(2)]
            for x, y in zip(*P): a(x); a(y)
        if t == 1: a(f'ds_write_b128 {v(aW1)}, {v(D,4)}')
        for m in range(2):
            x = A_(t, m)
            a(f'v_cvt_pk_bf16_f32 {v(op+4*t+2*m)}, {v(x)}, {v(x+1)}\nv_cvt_pk_bf16_f32 {v(op+4*t+2*m+1)}, {v(x+2)}, {v(x+3)}')
        if t == 4:
            for i in range(4): a(f'v_cndmask_b32 {v(op+20+i)}, {v(vONE)}, {v(op+20+i)}, {s(M_A,2)}')
    a(PM(3)); a(PM(1))
    for r in range(4): a(f'v_cndmask_b32 {v(D+16+r)}, {v(D+16+r)}, {v(D+20+r)}, {s(M_C,2)}')
    a(f'ds_write_b128 {v(aW2)}, {v(D+16,4)} offset:2048')
    for r in range(4): a(f'v_cndmask_b32 {v(D+8+r)}, {v(D+8+r)}, {v(D+12+r)}, {s(M_B,2)}')
    a(f"""ds_write_b128 {v(aW1)}, {v(D+8,4)} offset:3072
ds_write_b128 {v(aW2)}, {v(D+24,4)} offset:3584
ds_write_b128 {v(aW1)}, {v(D+4,4)} offset:1024""")
    if OPT.get('fine'): stamp('kvepi')
    larrive(vFL, F_KVR); lwait(vFL, F_KVR, 'kvr', vD10)
    if OPT.get('fine'): stamp('kvr')
    rd = acc
    for p in range(4):
        for hh in range(2): a(f'ds_read2st64_b32 {v(rd+4*p+2*hh,2)}, {v(aRD)} offset0:{p*20+2*hh} offset1:{p*20+2*hh+1}')
    for hh in (0, 2):
        a(f'v_pk_add_f32 {v(rd+hh,2)}, {v(rd+hh,2)}, {v(rd+4+hh,2)}\nv_pk_add_f32 {v(rd+8+hh,2)}, {v(rd+8+hh,2)}, {v(rd+12+hh,2)}')
    for hh in (0, 2):
        a(f'v_pk_add_f32 {v(rd+hh,2)}, {v(rd+hh,2)}, {v(rd+8+hh,2)}')
        for k in range(2): a(f'buffer_atomic_add_f32 {v(rd+hh+k)}, {v(aAT)}, {s(R_WS,4)}, 0 offen offset:{(hh+k)*256}')
    stamp('atomics')
    if RAW == 2: cold()
    a(f'''s_lshl_b32 {s(T0+6)}, {s(S_MG)}, 10
s_mul_i32 {s(T0+4)}, {s(S_MG)}, 20480
s_sub_u32 {s(T0+4)}, {s(S_RB)}, {s(T0+4)}
s_mul_i32 {s(T0+5)}, {s(S_CT)}, 160
s_sub_u32 {s(T0+5)}, {64*1280}, {s(T0+5)}''')
    srd(a, R_X, P_X, s(T0+4), s(T0+5))
    last_signals(vFL, F_DRA, 'A', vD10, 4, aSA, ';@wait at')
    a('s_setprio 0')
    stamp('sigA')
    if RAW == 3: cold()
    THR = OPT.get('thr', 6)
    def wodma(H, ns):
        for n in ns:
            a(f's_add_u32 m0, {s(T0+6)}, {WO + (1-H)*51200 + n*4096}\ns_mov_b32 {s(T0+4)}, {H*320*1280 + (n//5)*128*1280}\n;@tag h{H}\n'
              f'buffer_load_dwordx4 {v(vDW + n%5)}, {s(R_WO,4)}, {s(T0+4)} offen lds\ns_waitcnt vmcnt({THR})')
    wodma(1, [12] + list(range(5, 12)))
    larrive(vFL, F_PK)
    lwait(vFL, F_DRA, 'dra', vD10)
    wodma(1, range(5))
    lwait(vFL, F_PK, 'z12', vD10)
    lwait(vFL, F_PB, 'pb', vD10)
    wodma(0, range(13))
    larrive(vFL, F_H1)
    for n in range(3): a(f's_add_u32 m0, {s(T0+6)}, {XRL + n*4096}\ns_nop 0\nbuffer_load_dwordx4 {v(vDW+n)}, {s(R_X,4)}, 0 offen lds')
    packjob(raw, s(S_U0))
    a(f's_cmp_ge_u32 {s(S_PK2)}, 56\ns_cbranch_scc1 L_pk2b\ns_lshl_b32 {s(T0+4)}, {s(S_PK2)}, 12\ns_add_u32 {s(T0+4)}, {s(T0+4)}, {OFF_W2P + 1024*4096}')
    packjob(raw + 16, s(T0+4))
    a(';@opt off\nL_pk2b:')
    if OPT.get('fine'): stamp('packed')
    assert THR <= 7
    lwait(vFL, F_H1, 'h1', vD10)
    p2_setup()
    a(preread())

    va.reset(xr_mark)
    a('L_p1join:\n;@clearv\n;@clearl')
    E0, E1, E2, E3, E4, E5, E6, E7 = 36, 37, 38, 39, 6, 7, 10, 11

    def wave_block(tag, cmp, body, other=None):
        a(f'{cmp}\ns_cbranch_scc1 L_{tag}_e\n;@opt on')
        a(body)
        if other is not None:
            a(f's_branch L_{tag}_j\nL_{tag}_e:'); a(other); a(f';@opt off\nL_{tag}_j:')
        else:
            a(f';@opt off\nL_{tag}_e:')
    def signal(tag, lanes, addr_code):
        wave_block(tag + 'sig', f's_cmp_lg_u32 {s(S_W)}, 7', [addr_code(t0), f'''v_mov_b32 {v(t1)}, 1
s_mov_b64 exec, 0x{(1<<lanes)-1:x}
buffer_atomic_add {v(t1)}, {v(t0)}, {s(R_WS,4)}, 0 offen sc1
s_mov_b64 exec, -1'''])
    def poll(tag, lanes, addr_code, tgt_code=None):
        wave_block(tag + 'pol', f's_cmp_lg_u32 {s(S_W)}, 7', [addr_code(t2), gpoll(tag, t2, t3, lanes)])
        a('s_waitcnt lgkmcnt(0)\ns_barrier')

    if stop_after < 2:
        a('s_waitcnt vmcnt(0)\ns_barrier')
    if stop_after >= 2:
        O = O2; OS = OS2; vL4 = vL4b
        a('s_waitcnt vmcnt(0)\ns_barrier')
        stamp('wolanded')
        wave_block('pks', f's_cmp_lg_u32 {s(S_W)}, 6', [f'''s_lshl_b32 {s(T0+4)}, {s(S_RT1)}, 7
s_add_u32 {s(T0+4)}, {s(T0+4)}, {OFF_CP}
v_mov_b32 {v(t0)}, {s(T0+4)}
v_mov_b32 {v(t1)}, 1
s_mov_b64 exec, 1
buffer_atomic_add {v(t1)}, {v(t0)}, {s(R_WS,4)}, 0 offen sc0 sc1
s_mov_b64 exec, -1'''])
        a(f'ds_read_b64 {v(vXR,2)}, {v(axr_)}\nds_read_b64 {v(vXR+2,2)}, {v(axr_)} offset:32\nds_read_b64 {v(vXR+4,2)}, {v(axr_+1)}')
        wave_block('lpre', f's_cmp_ge_u32 {s(S_W)}, 4', preread())
        S_T0 = S_U0; S_O3 = S_U1; S_W1 = E6
        RRB = 3 * SLOT
        S_HX, S_GP, S_MXl, S_HS, S_C3, S_R0, S_R1, S_P0 = range(R_W1, R_W1 + 8); S_W2 = E3
        a(f'''s_lshl_b32 {s(T0+2)}, {s(S_STILE)}, 4
s_lshl_b32 {s(T0+3)}, {s(S_KH)}, 3
s_add_u32 {s(T0+2)}, {s(T0+2)}, {s(T0+3)}
s_mul_i32 {s(T0+2)}, {s(T0+2)}, 1280
s_add_u32 {s(T0+2)}, {s(T0+2)}, {OFF_O}
s_mul_i32 {s(S_T0)}, {s(S_HP)}, 7
s_mul_i32 {s(T0+4)}, {s(S_HP)}, 6
s_add_u32 {s(T0+4)}, {s(T0+4)}, 12
s_cmp_lt_u32 {s(S_HP)}, 12
s_cselect_b32 {s(S_T0)}, {s(S_T0)}, {s(T0+4)}
s_add_u32 {s(S_W1)}, {s(S_T0)}, {s(S_W)}
s_lshl_b32 {s(S_W1)}, {s(S_W1)}, 10
s_add_u32 {s(S_W1)}, {s(S_W1)}, {OFF_W1P}''')
        wave_block('pkt', f's_cmp_lg_u32 {s(S_W)}, 6', [f'''v_lshlrev_b32 {v(t0)}, 7, {v(vL)}
v_mov_b32 {v(t2)}, 1
s_mov_b32 {s(T0+5)}, {OFF_CP + 2048}
s_waitcnt vmcnt(0)
v_readfirstlane_b32 {s(T0+7)}, {v(t1)}
s_cmp_lg_u32 {s(T0+7)}, 15
s_cbranch_scc1 L_pkt_e
s_mov_b64 exec, 0xff
buffer_atomic_add {v(t2)}, {v(t0)}, {s(R_WS,4)}, {s(T0+5)} offen sc1
s_mov_b64 exec, -1'''])
        poll('sB', 1, lambda r: f's_lshl_b32 {s(T0+4)}, {s(S_GRP)}, 7\ns_add_u32 {s(T0+4)}, {s(T0+4)}, {OFF_CB}\nv_mov_b32 {v(r)}, {s(T0+4)}\ns_and_b32 {s(T0+4)}, s2, 7\ns_lshl_b32 {s(T0+4)}, {s(T0+4)}, 7\ns_add_u32 {s(T0+4)}, {s(T0+4)}, {OFF_CP+2048}\nv_writelane_b32 {v(r)}, {s(T0+4)}, 1')
        stamp('syncB')
        for j in range(8):
            o = (j % 3) * 1280
            a(f'buffer_load_dwordx4 {v(O+4*j,4)}, {v(vL16)}, {s(R_WS,4)}, {s(T0+2)} offen offset:{o} sc1')
            a(f'buffer_load_dword {v(OS+j)}, {v(vL4)}, {s(R_WS,4)}, {s(T0+2)} offen offset:{o+1024} sc1')
            if j % 3 == 2: a(f's_add_u32 {s(T0+2)}, {s(T0+2)}, 3840')
        a(f's_and_b32 {s(T0+4)}, s2, 7\ns_lshl_b32 {s(T0+4)}, {s(T0+4)}, 7\ns_add_u32 {s(T0+4)}, {s(T0+4)}, {OFF_CP+2048}\nv_mov_b32 {v(t2)}, {s(T0+4)}')
        a(f'buffer_load_dword {v(t3)}, {v(t2)}, {s(R_WS,4)}, 0 offen sc1')
        W1POS = [106496 + 7168 * i for i in range(8)] + [7168 * i for i in range(5)] + [51200 + 7168 * i for i in range(5)] + [XC0, XC0 + 51200]
        def w1dma(kss, group=False):
            L = [f's_add_u32 m0, {s(S_MD)}, {W1POS[ks]}\ns_add_u32 {s(T0+4)}, {s(S_W1)}, {ks*110592}\n;@tag w1_{ks}\n'
                 f'buffer_load_dwordx4 {v(vL16)}, {s(R_WS,4)}, {s(T0+4)} offen sc1 lds' for ks in kss]
            if group: return L
            return [f's_cbranch_vccz L_w1s{ks}\n{x}\nL_w1s{ks}:' for ks, x in zip(kss, L)]
        a(f'''s_and_b32 {s(S_O3)}, {s(S_T0)}, 1
s_lshl_b32 {s(T0+4)}, {s(S_T0)}, 5
s_sub_u32 {s(T0+6)}, 3456, {s(T0+4)}''')
        srd(a, R_B1, P_B1, s(T0+4), s(T0+6))
        a(f'''s_mul_i32 {s(E0)}, {s(S_CT)}, 5
s_add_u32 {s(E0)}, {s(E0)}, 1
s_lshr_b32 {s(E0)}, {s(E0)}, 1
s_mul_i32 {s(E1)}, {s(S_STILE)}, 20
s_add_u32 {s(E0)}, {s(E0)}, {s(E1)}
s_cmp_eq_u32 {s(S_ODD)}, 0
s_cselect_b32 {s(E1)}, 2, -1
s_add_u32 {s(E1)}, {s(E1)}, {s(E0)}
s_lshl_b32 {s(E1)}, {s(E1)}, 10
s_lshl_b32 {s(E2)}, {s(S_ODD)}, 9
s_add_u32 {s(E1)}, {s(E1)}, {s(E2)}
s_add_u32 {s(E1)}, {s(E1)}, {OFF_H}
s_cmp_lg_u32 {s(S_KH)}, 0
s_cselect_b32 {s(E1)}, {OOR}, {s(E1)}
s_cselect_b32 {s(E5)}, 0, 1.0
s_add_u32 {s(E0)}, {s(E0)}, {s(S_KH)}
s_lshl_b32 {s(E0)}, {s(E0)}, 10
s_add_u32 {s(E0)}, {s(E0)}, {OFF_H}
s_lshl_b32 {s(E2)}, {s(S_STILE)}, 3
s_add_u32 {s(E2)}, {s(E2)}, {s(S_CT)}
s_lshl_b32 {s(E2)}, {s(E2)}, 8
s_lshl_b32 {s(T0+3)}, {s(S_KH)}, 7
s_add_u32 {s(E2)}, {s(E2)}, {s(T0+3)}
s_add_u32 {s(E2)}, {s(E2)}, {OFF_HST}
s_mul_i32 {s(E3)}, {s(S_CT)}, 5120
s_mul_i32 {s(T0+3)}, {s(S_W)}, 40960
s_add_u32 {s(E3)}, {s(E3)}, {s(T0+3)}
s_add_u32 {s(E3)}, {s(E3)}, {OFF_W2P}
s_mul_i32 {s(E7)}, {s(S_W)}, 5120
s_lshl_b32 {s(S_C3)}, {s(S_O3)}, 5
s_lshl_b32 {s(T0+6)}, {s(S_MG)}, 6
s_add_u32 {s(S_C3)}, {s(S_C3)}, {s(T0+6)}
s_cmp_eq_u32 {s(S_C3)}, 224
s_cselect_b32 {s(S_C3)}, 0, {s(S_C3)}
s_lshl_b32 {s(S_P0)}, {s(S_C3)}, 5
s_lshl_b32 {s(S_HX)}, {s(S_RT1)}, 3
s_lshl_b32 {s(T0+6)}, {s(S_KH)}, 2
s_add_u32 {s(S_HX)}, {s(S_HX)}, {s(T0+6)}
s_mul_i32 {s(S_GP)}, {s(S_HX)}, 54
s_mul_i32 {s(S_HX)}, {s(S_HX)}, 20
s_add_u32 {s(S_HX)}, {s(S_HX)}, {s(S_MG)}
s_lshl_b32 {s(S_HX)}, {s(S_HX)}, 10
s_add_u32 {s(S_HX)}, {s(S_HX)}, {OFF_H}
s_mul_i32 {s(S_MXl)}, {s(S_KH)}, 20480
s_lshl_b32 {s(T0+6)}, {s(S_MG)}, 10
s_add_u32 {s(S_MXl)}, {s(S_MXl)}, {s(T0+6)}
s_lshl_b32 {s(T0+6)}, {s(S_T0)}, 5
s_add_u32 {s(T0+6)}, {s(T0+6)}, {s(S_C3)}
s_lshr_b32 {s(T0+7)}, {s(T0+6)}, 6
s_add_u32 {s(S_GP)}, {s(S_GP)}, {s(T0+7)}
s_lshl_b32 {s(S_GP)}, {s(S_GP)}, 10
s_bfe_u32 {s(T0+7)}, {s(T0+6)}, 0x10005
s_lshl_b32 {s(T0+7)}, {s(T0+7)}, 9
s_add_u32 {s(S_GP)}, {s(S_GP)}, {s(T0+7)}
s_add_u32 {s(S_GP)}, {s(S_GP)}, {OFF_G}
s_cmp_ge_u32 {s(S_HP)}, 12
s_cselect_b32 {s(T0+6)}, {OOR}, {s(S_GP)}
s_cmp_eq_u32 {s(S_MG)}, 3
s_cselect_b32 {s(S_GP)}, {s(T0+6)}, {s(S_GP)}
s_lshl_b32 {s(S_HS)}, {s(S_RT1)}, 3
s_add_u32 {s(S_HS)}, {s(S_HS)}, {s(S_W)}
s_lshl_b32 {s(S_HS)}, {s(S_HS)}, 11
s_add_u32 {s(S_HS)}, {s(S_HS)}, {OFF_HST}
s_lshl_b32 {s(S_R0)}, {s(S_W)}, 7
s_add_u32 {s(S_R0)}, {s(S_R0)}, {RRB}
s_lshl_b32 {s(S_R1)}, {s(S_KH)}, 9
s_add_u32 {s(S_R1)}, {s(S_R1)}, {RRB}''')
        NA = OPT.get('nw1a', 12)
        steps = [('m', 0), ('m', 1), ('m', 2), ('m', 3), ('s', 0), ('m', 4), ('m', 5), ('m', 6), ('m', 7), ('s', 1)]
        WD = w1dma(range(NA)) if stop_after >= 3 else []
        W0 = OPT.get('w1from', 7)
        for n, (kind, j) in enumerate(steps):
            X = v(O + 4 * j, 4) if kind == 'm' else v(OS + 4 * j, 4)
            order = range(5) if n < 9 else (2, 3, 4, 0, 1)
            M = [f'{MF} {v(acc2+4*t,4)}, {v(WB_(kind,j)+4*t,4)}, {X}, {v(acc2+4*t,4) if n else 0}' for t in order]
            F = wread('m', 5 + n) if n in (1, 2) else []
            if n >= W0:
                k = -(-len(WD) // (10 - n)); F = F + WD[:k]; WD = WD[k:]
            if n == W0:
                a(f'v_readfirstlane_b32 {s(T0+7)}, {v(t3)}\ns_cmp_ge_u32 {s(T0+7)}, 16\ns_cbranch_scc1 L_sP_ok\n;@opt on')
                a(gpoll('sP', t2, t3))
                a(f';@opt off\nL_sP_ok:\ns_cmp_lg_u32 {s(S_W)}, 7\ns_cselect_b64 vcc, -1, 0\ns_waitcnt lgkmcnt(0)\ns_barrier')
            a(spread(M, F))
        stamp('p2mm')
        rcv = WP[0]; xf = WP[1]
        for i in range(3): a(f'ds_write_b128 {v(axw)}, {v(acc2+8+4*i,4)} offset:{1024*i}')
        for i in range(6):
            a(f'v_lshlrev_b32 {v(xf+2*i)}, 16, {v(vXR+i)}\nv_and_b32 {v(xf+2*i+1)}, 0xffff0000, {v(vXR+i)}')
        own = [acc2, acc2 + 4, acc2 + 16]
        for i in range(3):
            for hh in (0, 2):
                a(f'v_pk_add_f32 {v(xf+4*i+hh,2)}, {v(own[i]+hh,2)}, {v(xf+4*i+hh,2)}')
        a('s_waitcnt lgkmcnt(0)\ns_barrier')
        for i in range(3): a(f'ds_read_b128 {v(rcv+4*i,4)}, {v(axr)} offset:{1024*i}')
        for i in range(3):
            for hh in (0, 2):
                a(f'v_pk_add_f32 {v(xf+4*i+hh,2)}, {v(xf+4*i+hh,2)}, {v(rcv+4*i+hh,2)}')
            for hh in range(2):
                a(f'v_cvt_pk_bf16_f32 {v(vHR+2*i+hh)}, {v(xf+4*i+2*hh)}, {v(xf+4*i+2*hh+1)}')
            if i == 1: a(f'buffer_store_dwordx4 {v(vHR,4)}, {v(vL16)}, {s(R_WS,4)}, {s(E0)} offen sc1')
        a(f'buffer_store_dwordx2 {v(vHR+4,2)}, {v(vL8)}, {s(R_WS,4)}, {s(E1)} offen sc1')
        for i in range(6):
            a(f'v_lshlrev_b32 {v(xf+2*i)}, 16, {v(vHR+i)}\nv_and_b32 {v(xf+2*i+1)}, 0xffff0000, {v(vHR+i)}')
        sm = rcv; sq = rcv + 2; p = rcv + 4; q = rcv + 6
        a(f'v_pk_add_f32 {v(sm,2)}, {v(xf+8,2)}, {v(xf+10,2)}\nv_pk_mul_f32 {v(sq,2)}, {v(xf+8,2)}, {v(xf+8,2)}')
        a(f'v_pk_fma_f32 {v(sq,2)}, {v(xf+10,2)}, {v(xf+10,2)}, {v(sq,2)}')
        for i in range(4): a(f'v_mul_f32 {v(sm+i)}, {s(E5)}, {v(sm+i)}')
        for i in (0, 2, 4, 6):
            a(f'v_pk_add_f32 {v(sm,2)}, {v(sm,2)}, {v(xf+i,2)}\nv_pk_fma_f32 {v(sq,2)}, {v(xf+i,2)}, {v(xf+i,2)}, {v(sq,2)}')
        def xg_reduce(p, q):
            return f'''v_mov_b32 {v(q)}, {v(p)}
v_mov_b32 {v(q+1)}, {v(p+1)}
v_permlane32_swap_b32 {v(p)}, {v(q)}
v_permlane32_swap_b32 {v(p+1)}, {v(q+1)}
v_pk_add_f32 {v(p,2)}, {v(p,2)}, {v(q,2)}
v_mov_b32 {v(q)}, {v(p)}
v_mov_b32 {v(q+1)}, {v(p+1)}
v_permlane16_swap_b32 {v(p)}, {v(q)}
v_permlane16_swap_b32 {v(p+1)}, {v(q+1)}
v_pk_add_f32 {v(p,2)}, {v(p,2)}, {v(q,2)}'''
        a(f'v_add_f32 {v(p)}, {v(sm)}, {v(sm+1)}\nv_add_f32 {v(p+1)}, {v(sq)}, {v(sq+1)}')
        a(xg_reduce(p, q))
        a(f's_mov_b64 exec, 0xffff\nbuffer_store_dwordx2 {v(p,2)}, {v(vL8)}, {s(R_WS,4)}, {s(E2)} offen sc1\ns_mov_b64 exec, -1')
        stamp('p2st')

    if stop_after >= 3:
        va.reset(base_mark)
        W = va.a(160, 4); cs3 = va.a(8, 4); bt = va.a(8, 4); acc3 = [va.a(8, 4), va.a(8, 4)]
        fX = [va.a(4, 4) for _ in range(4)]; u = va.a(8, 4); gp = va.a(4, 4); rr = va.a(8, 2); kk = va.a(2)
        aP = fX[0]; aXl = vONE
        a(f'''v_lshrrev_b32 {v(t0)}, 4, {v(vL)}
v_lshlrev_b32 {v(t0)}, 3, {v(t0)}
buffer_load_dwordx2 {v(u,2)}, {v(t0)}, {s(R_B1,4)}, {s(S_C3)} offen
buffer_load_dwordx2 {v(u+2,2)}, {v(t0)}, {s(R_B1,4)}, {s(S_C3)} offen offset:32''')
        def w1pre(kss):
            R = []; M = []
            for ks in kss:
                pos = W1POS[ks]
                wi, base = (2, 106496) if pos >= 106496 else ((1, 56000) if pos >= 56000 else (0, 0))
                for t in range(2):
                    R.append(f'ds_read_b128 {v(W+8*ks+4*t,4)}, {v(aP+wi)} offset:{pos-base+1024*t}')
                    M.append(f'{MF} {v(cs3+4*t,4)}, {v(W+8*ks+4*t,4)}, {v(vONE,4)}, {v(cs3+4*t,4) if ks else 0}')
            a(R[:6]); k = 6
            for m in M:
                a(m); a(R[k:k+1]); k += 1
        NB = min(18, NA + OPT.get('nw1b', 4)); NPA = OPT.get('npa', 10)
        a(f'v_add_u32 {v(aP)}, {s(S_P0)}, {v(vL16)}\nv_add_u32 {v(aP+1)}, 56000, {v(aP)}\nv_add_u32 {v(aP+2)}, 106496, {v(aP)}')
        a(';@opt on\ns_waitcnt vmcnt(5)\ns_barrier')
        wave_block('w1b', f's_cmp_eq_u32 {s(S_W)}, 7', w1dma(range(NA, 20), True))
        w1pre(range(NPA))
        wave_block('w1d', f's_cmp_eq_u32 {s(S_W)}, 7', [f's_waitcnt vmcnt({20-NA})'], ['s_waitcnt vmcnt(0)'])
        a('s_barrier\n;@clearv')
        stamp('drained2')
        signal('s2', 2, lambda r: f's_lshl_b32 {s(T0+4)}, {s(S_GRP)}, 7\ns_add_u32 {s(T0+4)}, {s(T0+4)}, {OFF_C2}\nv_lshl_add_u32 {v(r)}, {v(vL)}, 11, {s(T0+4)}')
        w1pre(range(NPA, NA))
        wave_block('w1e', f's_cmp_eq_u32 {s(S_W)}, 7', ['s_waitcnt vmcnt(0)'])
        a('s_barrier')
        w1pre(range(NA, 20))
        c0 = math.sqrt(2 / math.pi); K1 = -2 * LOG2E * c0; K2 = K1 * 0.044715
        a(f'v_mov_b32 {v(kk)}, {fhex(K2)}\nv_mov_b32 {v(kk+1)}, {fhex(K1)}')
        for i in range(4):
            a(f'v_lshlrev_b32 {v(bt+2*i)}, 16, {v(u+i)}\nv_and_b32 {v(bt+2*i+1)}, 0xffff0000, {v(u+i)}')
        XS = [0, SLOT, 0, SLOT]
        SL4 = {0: 2 * SLOT, 1: 3 * SLOT, 2: 0, 3: SLOT, 4: 2 * SLOT, 5: 3 * SLOT, 6: 0}
        a(f'''s_mul_i32 {s(T0+6)}, {s(S_KH)}, 20480
v_add_u32 {v(aXl)}, {s(T0+6)}, {v(vL16)}
v_add_u32 {v(aXl+1)}, {SLOT}, {v(aXl)}
v_add_u32 {v(vD10)}, 3072, {v(vL16)}
v_lshlrev_b32 {v(aXl+3)}, 3, {v(vL)}
v_add_u32 {v(aXl+2)}, {s(T0+6)}, {v(aXl+3)}
v_and_b32 {v(t0)}, 15, {v(vL)}
v_lshl_add_u32 {v(t5)}, {v(t0)}, 3, {s(S_R0)}
v_lshl_add_u32 {v(t6)}, {v(t0)}, 3, {s(S_R1)}
s_mov_b32 {s(E1)}, {fhex(1/640)}
s_mov_b32 {s(E2)}, {fhex(1e-5)}''')
        stamp('w1pre')
        poll('s2', 1, lambda r: f's_lshr_b32 {s(T0+4)}, {s(S_HP)}, 3\ns_lshl_b32 {s(T0+4)}, {s(T0+4)}, 4\ns_add_u32 {s(T0+4)}, {s(T0+4)}, {s(S_RT1)}\ns_lshl_b32 {s(T0+4)}, {s(T0+4)}, 7\ns_add_u32 {s(T0+4)}, {s(T0+4)}, {OFF_C2}\nv_mov_b32 {v(r)}, {s(T0+4)}',
             lambda r: f'v_mov_b32 {v(r)}, 16')
        stamp('sync2')
        def xdma(j, rounds=range(5)):
            return [f's_add_u32 m0, {s(S_MXl)}, {XS[j] + r*4096}\ns_add_u32 {s(T0+4)}, {s(S_HX)}, {j*20480 + r*4096}\n;@tag x{j}_{r}\n'
                    f'buffer_load_dwordx4 {v(vL16)}, {s(R_WS,4)}, {s(T0+4)} offen sc1 lds' for r in rounds]
        def w2dma(c):
            L = [f's_add_u32 m0, {s(E7)}, {SL4[c]}\ns_add_u32 {s(E5)}, {s(S_W2)}, {c*8*40960}\n'
                 f'buffer_load_dwordx4 {v(vL16)}, {s(R_WS,4)}, {s(E5)} offen sc1 lds']
            L += [f's_add_u32 m0, {s(E7)}, {SL4[c]}\ns_nop 0\nbuffer_load_dwordx4 {v(vL16)}, {s(R_WS,4)}, {s(E5)} offen offset:{1024*t} sc1 lds' for t in (1, 2, 3)]
            L.append(f's_add_u32 m0, {s(E7)}, {SL4[c] + 3072}\ns_nop 0\n;@tag sc{c}\nbuffer_load_dwordx4 {v(vD10)}, {s(R_WS,4)}, {s(E5)} offen offset:1024 sc1 lds')
            return L
        hs = acc3[1]
        a(xdma(0, [0, 1]))
        for i in range(4):
            a(f'buffer_load_dwordx2 {v(hs+2*i,2)}, {v(aXl+3)}, {s(R_WS,4)}, {s(S_HS)} offen offset:{512*i} sc1')
        a(xdma(0, [2, 3, 4]))
        a(';@wait x0_0\ns_barrier')
        a(stamp_txt('x0'))
        p = hs; q = hs + 2
        stats = (f'''v_pk_add_f32 {v(hs,2)}, {v(hs,2)}, {v(hs+2,2)}
v_pk_add_f32 {v(hs+4,2)}, {v(hs+4,2)}, {v(hs+6,2)}
v_pk_add_f32 {v(p,2)}, {v(hs,2)}, {v(hs+4,2)}
''' + xg_reduce(p, q) + f'''
v_mul_f32 {v(p)}, {s(E1)}, {v(p)}
v_mul_f32 {v(p+1)}, {s(E1)}, {v(p+1)}
v_fma_f32 {v(p+1)}, -{v(p)}, {v(p)}, {v(p+1)}
v_max_f32 {v(p+1)}, 0, {v(p+1)}
v_add_f32 {v(q)}, {s(E2)}, {v(p+1)}
v_rsq_f32 {v(q)}, {v(q)}
v_mul_f32 {v(q+1)}, {v(q)}, {v(q)}
v_fma_f32 {v(q+1)}, {v(q+1)}, {v(p+1)}, {s(E2)}
v_rsq_f32 {v(q+1)}, {v(q+1)}
v_mul_f32 {v(hs+4)}, {v(q)}, {v(q+1)}
v_mul_f32 {v(hs+5)}, -{v(p)}, {v(hs+4)}
;@tag rrw
ds_write_b64 {v(t5)}, {v(hs+4,2)}''').split('\n')
        stats = stats[:-2] + [stats[-2] + '\n' + stats[-1]]
        def xread(n):
            j, ks = divmod(n, 20)
            if ks % 5 == 2:
                o = (XS[j] + ks * 1024) // 512
                return f'ds_read2st64_b64 {v(fX[n&3],4)}, {v(aXl+2)} offset0:{o} offset1:{o+1}'
            return f'ds_read_b128 {v(fX[n&3],4)}, {v(aXl + XS[j]//SLOT)} offset:{ks*1024}'
        def epi(j, packed):
            x = acc3[j & 1]; r0 = rr + 2 * j; L = []
            if packed:
                r = v(r0, 2); P4 = (0, 2, 4, 6)
                L += [f'v_pk_fma_f32 {v(u+i,2)}, {r}, {v(cs3+i,2)}, {v(bt+i,2)} op_sel:[1,0,0] op_sel_hi:[1,1,1]' for i in P4]
                L += [f'v_pk_fma_f32 {v(x+i,2)}, {v(x+i,2)}, {r}, {v(u+i,2)} op_sel_hi:[1,0,1]' for i in P4]
                L += [f'v_pk_mul_f32 {v(u+i,2)}, {v(x+i,2)}, {v(x+i,2)}' for i in P4]
                L += [f'v_pk_fma_f32 {v(u+i,2)}, {v(u+i,2)}, {v(kk,2)}, {v(kk,2)} op_sel:[0,0,1] op_sel_hi:[1,0,1]' for i in P4]
                L += [f'v_pk_mul_f32 {v(u+i,2)}, {v(u+i,2)}, {v(x+i,2)}' for i in P4]
                L += [f'v_exp_f32 {v(u+i)}, {v(u+i)}' for i in range(8)]
                L += [f'v_pk_add_f32 {v(u+i,2)}, {v(u+i,2)}, 1.0 op_sel_hi:[1,0]' for i in P4]
                L += [f'v_rcp_f32 {v(u+i)}, {v(u+i)}' for i in range(8)]
                L += [f'v_pk_mul_f32 {v(x+i,2)}, {v(x+i,2)}, {v(u+i,2)}' for i in P4]
            else:
                R8 = range(8)
                L += [f'v_fma_f32 {v(u+i)}, {v(cs3+i)}, {v(r0+1)}, {v(bt+i)}' for i in R8]
                L += [f'v_fma_f32 {v(x+i)}, {v(x+i)}, {v(r0)}, {v(u+i)}' for i in R8]
                L += [f'v_mul_f32 {v(u+i)}, {v(x+i)}, {v(x+i)}' for i in R8]
                L += [f'v_fma_f32 {v(u+i)}, {v(u+i)}, {v(kk)}, {v(kk+1)}' for i in R8]
                L += [f'v_mul_f32 {v(u+i)}, {v(u+i)}, {v(x+i)}' for i in R8]
                L += [f'v_exp_f32 {v(u+i)}, {v(u+i)}' for i in R8]
                L += [f'v_add_f32 {v(u+i)}, 1.0, {v(u+i)}' for i in R8]
                L += [f'v_rcp_f32 {v(u+i)}, {v(u+i)}' for i in R8]
                L += [f'v_mul_f32 {v(x+i)}, {v(x+i)}, {v(u+i)}' for i in R8]
            L += [f'v_cvt_pk_bf16_f32 {v(gp+i)}, {v(x+2*i)}, {v(x+2*i+1)}' for i in range(4)]
            L.append(f'''s_cmp_eq_u32 {s(S_MG)}, 3
s_cbranch_scc1 L_g{j}s
buffer_store_dwordx4 {v(gp,4)}, {v(vL16)}, {s(R_WS,4)}, {s(S_GP)} offen sc1
s_branch L_g{j}b
L_g{j}s:
buffer_store_dwordx2 {v(gp,2)}, {v(aXl+3)}, {s(R_WS,4)}, {s(S_GP)} offen sc1
L_g{j}b:
s_add_u32 {s(S_GP)}, {s(S_GP)}, {54*1024}''')
            return L
        if OPT.get('prio3'): a(f's_cmp_lt_u32 {s(S_W)}, 4\ns_cbranch_scc1 L_pr3\ns_setprio 1\nL_pr3:')
        for n in range(3): a(xread(n))
        for j in range(4):
            M = []
            for ks in range(20):
                n = 20 * j + ks
                pre = ''
                nx = n + 3
                if nx < 80:
                    jx, kx = divmod(nx, 20)
                    if jx == 0 and kx in (4, 8): pre = stamp_txt(f'x0_{kx}a') + f';@wait x0_{1 if kx == 4 else 4}\ns_barrier\n' + stamp_txt(f'x0_{kx}b')
                    if jx > 0 and kx == 0: pre = stamp_txt(f'x{jx}a') + f';@wait x{jx}_4\n;@lwait rrw\ns_barrier\n' + stamp_txt(f'x{jx}b')
                    if jx == 1 and kx == 0: pre += '\n'.join(f'ds_read_b64 {v(rr+2*i,2)}, {v(t6)} offset:{128*i}' for i in range(4)) + '\n'
                for t in range(2):
                    d = v(acc3[j & 1] + 4 * t, 4)
                    ins = f'{MF} {d}, {v(W+8*ks+4*t,4)}, {v(fX[n&3],4)}, {d if ks else 0}'
                    if t == 1 and nx < 80: ins += '\n' + pre + xread(nx)
                    M.append(ins)
            W4 = stop_after >= 4
            TW = []
            if j == 0:
                M = spread(M, xdma(1) + TW, start=2, end=14)
                a(spread(M, stats, start=10, end=36))
            else:
                M[3] += '\ns_barrier'
                D_ = (xdma(j + 1) if j < 3 else []) + TW + (w2dma(j - 1) if W4 else [])
                M = spread(M, D_, start=4, end=OPT.get('d3end', 26) if j < 3 else 14)
                a(spread(M, epi(j - 1, OPT.get('pk3', 0)) if not OPT.get('noepi') else [], start=4, end=len(M) - OPT.get('e3end', 8)))
        stamp('p3mm')
        a(epi(3, 1))
        stamp('p3st')

    if stop_after >= 4:
        va.reset(base_mark)
        b2r = va.a(6, 2); aW = va.a(12); axw = va.a(); axr = va.a(); aSP = vONE
        NX = OPT.get('nx', 12)
        acc4 = va.a(20, 4); X4 = va.a(4 * NX, 4); WB = [va.a(20, 4) for _ in range(6)]
        a(f'''v_lshrrev_b32 {v(t0)}, 4, {v(vL)}
v_lshlrev_b32 {v(t0)}, 3, {v(t0)}
buffer_load_dwordx2 {v(b2r,2)}, {v(t0)}, {s(R_B2,4)}, {s(S_CM)} offen
buffer_load_dwordx2 {v(b2r+2,2)}, {v(t0)}, {s(R_B2,4)}, {s(S_CM)} offen offset:32
buffer_load_dwordx2 {v(b2r+4,2)}, {v(t0)}, {s(R_B2,4)}, {s(S_CS)} offen
s_mul_i32 {s(T0+6)}, {s(S_KH)}, 5120''')
        for i, sc in enumerate((S_CM, S_CO, S_CS)):
            a(f's_lshl_b32 {s(T0+7)}, {s(sc)}, 5\ns_add_u32 {s(T0+7)}, {s(T0+7)}, {s(T0+6)}\nv_add_u32 {v(aW+i)}, {s(T0+7)}, {v(vL16)}')
            for sl in range(1, 4): a(f'v_add_u32 {v(aW+3*sl+i)}, {sl*SLOT}, {v(aW+i)}')
        a(';@wait p3out\ns_barrier')
        stamp('drained3')
        signal('s3', 1, lambda r: f's_lshl_b32 {s(T0+4)}, {s(S_RT1)}, 7\ns_add_u32 {s(T0+4)}, {s(T0+4)}, {OFF_C3}\nv_mov_b32 {v(r)}, {s(T0+4)}')
        tl = [(0, 0), (0, 1024), (1, 0), (1, 1024), (2, 0)]
        wbuf = lambda i: WB[i] if i < 4 else WB[4 + (i & 1)]
        def w2read(i):
            c = i // 4; off = (i % 4) * 10240
            return [f'ds_read_b128 {v(wbuf(i)+4*t,4)}, {v(aW+3*(SL4[c]//SLOT)+ai)} offset:{off+ci}' for t, (ai, ci) in enumerate(tl)]
        a(w2dma(3))
        for i in range(5): a(w2read(i))
        a('s_waitcnt lgkmcnt(0)\ns_barrier')
        if OPT.get('sc4early', 1): a(w2dma(4))
        S_GX = T0
        XCH4 = SLOT
        a(f'''s_mul_i32 {s(S_GX)}, {s(S_STILE)}, 54
s_add_u32 {s(S_GX)}, {s(S_GX)}, {s(S_KH)}
s_lshl_b32 {s(S_GX)}, {s(S_GX)}, 10
s_add_u32 {s(S_GX)}, {s(S_GX)}, {OFF_G}
s_mul_i32 {s(T0+6)}, {s(S_W)}, 3072
v_add_u32 {v(axw)}, {s(T0+6)}, {v(vL16)}
s_xor_b32 {s(T0+6)}, {s(S_W)}, 4
s_mul_i32 {s(T0+6)}, {s(T0+6)}, 3072
v_add_u32 {v(axr)}, {s(T0+6)}, {v(vL16)}
s_add_u32 {s(T0+1)}, {s(S_RB)}, {s(S_CM)}
s_add_u32 {s(T0+2)}, {s(S_RB)}, {s(S_CS)}
s_lshl_b32 {s(T0+3)}, {s(S_CT)}, 1
s_add_u32 {s(T0+3)}, {s(T0+3)}, {s(S_KH)}
s_mul_i32 {s(T0+3)}, {s(T0+3)}, {27*128}
s_mul_i32 {s(T0+6)}, {s(S_STILE)}, {54*1024}
s_add_u32 {s(T0+3)}, {s(T0+3)}, {s(T0+6)}
s_add_u32 {s(T0+3)}, {s(T0+3)}, {OFF_G}
v_min_u32 {v(t7)}, 26, {v(vL)}
v_lshlrev_b32 {v(t7)}, 7, {v(t7)}
s_cmp_lg_u32 {s(S_KH)}, 0
s_cselect_b32 {s(T0+2)}, 0x4000000, {s(T0+2)}
s_cselect_b32 {s(T0+6)}, 4, 3
s_cselect_b32 {s(T0+7)}, 8, 0x200
v_lshlrev_b32 {v(aSP)}, {s(T0+6)}, {v(vL)}
v_add_u32 {v(aSP+1)}, {s(T0+7)}, {v(aSP)}
s_cselect_b32 {s(T0+6)}, 3, 4
s_cselect_b32 {s(T0+7)}, 0x200, 8
v_lshlrev_b32 {v(aSP+2)}, {s(T0+6)}, {v(vL)}
v_add_u32 {v(aSP+3)}, {s(T0+7)}, {v(aSP+2)}''')
        poll('s3', 1, lambda r: f's_lshl_b32 {s(T0+4)}, {s(S_GRP)}, 7\ns_add_u32 {s(T0+4)}, {s(T0+4)}, {OFF_C3}\nv_mov_b32 {v(r)}, {s(T0+4)}',
             lambda r: f'v_mov_b32 {v(r)}, 16')
        stamp('sync3')
        def xload(i):
            x = f'buffer_load_dwordx4 {v(X4+4*(i%NX),4)}, {v(vL16)}, {s(R_WS,4)}, {s(S_GX)} offen offset:{(i&1)*2048} sc1'
            for kh in range(2):
                if (2 * i + kh) % 7 == 3 and 2 * i + kh < 42:
                    x = '\n'.join(f'buffer_load_dwordx2 {v(X4+4*(i%NX)+2*hf,2)}, {v(aSP+2*kh+hf)}, {s(R_WS,4)}, {s(S_GX)} offen offset:{(i&1)*2048} sc1' for hf in range(2))
            if i & 1: x += f'\ns_add_u32 {s(S_GX)}, {s(S_GX)}, 4096'
            return x
        NP = OPT.get('np', 6)
        nxt = [0]
        def xl(k):
            L = []
            for _ in range(k):
                if nxt[0] < 27: L.append(xload(nxt[0])); nxt[0] += 1
            return L
        if OPT.get('touchg', 0):
            a(xl(1))
            a(f'buffer_load_dword {v(vDUM)}, {v(t7)}, {s(R_WS,4)}, {s(T0+3)} offen sc1')
            a(xl(NP - 1))
        else:
            a(xl(NP))
        for i in range(27):
            F = []
            nx = i + 1
            if nx >= 5 and nx < 27:
                if nx % 4 == 0:
                    c = nx // 4
                    a(stamp_txt(f'sc{c}a') + f';@wait sc{c}\ns_barrier\n' + stamp_txt(f'sc{c}b'))
                    if c == 2 and not OPT.get('sc4early', 1): F += w2dma(4)
                    if c in (3, 4): F += w2dma(c + 2)
                F = w2read(nx) + F
            order = range(5) if i < 26 else (2, 3, 4, 0, 1)
            M = [f'{MF} {v(acc4+4*t,4)}, {v(wbuf(i)+4*t,4)}, {v(X4+4*(i%NX),4)}, {v(acc4+4*t,4) if i else 0}' for t in order]
            a(spread(M, F))
            a(xl(min(2, i + 1 + NX - nxt[0])))
        stamp('p4mm')
        rcv = WB[0]; xf = WB[1]; bf = WB[2]
        for i in range(6):
            a(f'v_lshlrev_b32 {v(xf+2*i)}, 16, {v(vHR+i)}\nv_and_b32 {v(xf+2*i+1)}, 0xffff0000, {v(vHR+i)}')
        for i in range(3): a(f'ds_write_b128 {v(axw)}, {v(acc4+8+4*i,4)} offset:{XCH4+1024*i}')
        for i in range(6):
            a(f'v_lshlrev_b32 {v(bf+2*i)}, 16, {v(b2r+i)}\nv_and_b32 {v(bf+2*i+1)}, 0xffff0000, {v(b2r+i)}')
        own = [acc4, acc4 + 4, acc4 + 16]
        for i in range(3):
            for hh in (0, 2):
                a(f'v_pk_add_f32 {v(xf+4*i+hh,2)}, {v(xf+4*i+hh,2)}, {v(bf+4*i+hh,2)}')
                a(f'v_pk_add_f32 {v(xf+4*i+hh,2)}, {v(own[i]+hh,2)}, {v(xf+4*i+hh,2)}')
        a('s_waitcnt lgkmcnt(0)\ns_barrier')
        for i in range(3): a(f'ds_read_b128 {v(rcv+4*i,4)}, {v(axr)} offset:{XCH4+1024*i}')
        for i in range(3):
            for hh in (0, 2):
                a(f'v_pk_add_f32 {v(xf+4*i+hh,2)}, {v(xf+4*i+hh,2)}, {v(rcv+4*i+hh,2)}')
            for hh in range(2):
                a(f'v_cvt_pk_bf16_f32 {v(bf+2*i+hh)}, {v(xf+4*i+2*hh)}, {v(xf+4*i+2*hh+1)}')
            if i < 2: a(f'buffer_store_dwordx2 {v(bf+2*i,2)}, {v(vRO)}, {s(R_OUT,4)}, {s(T0+1)} offen offset:{32*i}')
        a(f'buffer_store_dwordx2 {v(bf+4,2)}, {v(vRO)}, {s(R_OUT,4)}, {s(T0+2)} offen')
        stamp('end')
    if ts:
        a(f'''s_lshl_b32 {s(S_TS)}, s2, 3
s_add_u32 {s(S_TS)}, {s(S_TS)}, {s(S_W)}
s_lshl_b32 {s(S_TS)}, {s(S_TS)}, 8
s_add_u32 {s(S_TS)}, {s(S_TS)}, {OFF_TS}
v_lshlrev_b32 {v(t7)}, 2, {v(vL)}
buffer_store_dword v0, {v(t7)}, {s(R_WS,4)}, {s(S_TS)} offen''')
    a('L_end:\ns_endpgm\n;@clearv\n;@clearl')
    for blk in ool:
        a(blk); a(';@clearv\n;@clearl')
    body = a.finalize()
    return body, va.hi, names

def wrap(body, listmode=False):
    ref = open('cdna_kernels/%s.s.ref' % NAME).read().split('\n')
    hdr = [l for l in ref if l.startswith(';') and '@launch' not in l]
    kn = NAME + '_kernel'
    nv = 256
    launch = (f'; @launch kernel={kn} grid=(256,1,1) block=(512,1,1) lds=163840' if listmode
              else '; @launch grid=(256,1,1) block=(512,1,1) lds=163840')
    return '\n'.join(hdr) + '\n' + launch + '\n' + f'''.amdgcn_target "amdgcn-amd-amdhsa--gfx950"
.text
.globl {kn}
.p2align 8
.type {kn},@function
{kn}:
{body}.section .rodata,"a"
.p2align 6
.amdhsa_kernel {kn}
  .amdhsa_next_free_vgpr {nv}
  .amdhsa_next_free_sgpr 102
  .amdhsa_accum_offset {nv}
  .amdhsa_group_segment_fixed_size 0
  .amdhsa_kernarg_size 88
  .amdhsa_user_sgpr_count 2
  .amdhsa_user_sgpr_kernarg_segment_ptr 1
  .amdhsa_system_sgpr_workgroup_id_x 1
.end_amdhsa_kernel
'''

if __name__ == '__main__':
    import argparse
    ap = argparse.ArgumentParser()
    ap.add_argument('--stop', type=int, default=4)
    ap.add_argument('--ts', action='store_true')
    ap.add_argument('--list', action='store_true')
    ap.add_argument('--opt', default='')
    ap.add_argument('-o', default='cdna_kernels/%s.s' % NAME)
    args = ap.parse_args()
    for kv in filter(None, args.opt.split(',')):
        k_, v_ = kv.split('='); OPT[k_] = int(v_)
    body, hi, names = gen(args.stop, args.ts)
    import subprocess, re, tempfile, os
    with tempfile.TemporaryDirectory() as td:
        open(td + '/a.s', 'w').write(wrap(body.replace('CODE_BYTES', '0x7000').replace('KERNEL_START', NAME + '_kernel'), args.list))
        subprocess.run(['clang', '-x', 'assembler', '-target', 'amdgcn-amd-amdhsa', '-mcpu=gfx950', '-c', td + '/a.s', '-o', td + '/a.o'], check=True)
        h = subprocess.run(['llvm-objdump', '-h', td + '/a.o'], capture_output=True, text=True).stdout
        size = int(re.search(r'\.text\s+([0-9a-f]+)', h).group(1), 16)
    print('code bytes', size)
    txt = wrap(body.replace('CODE_BYTES', str(size - 64)).replace('KERNEL_START', NAME + '_kernel'), args.list)
    if names: txt += '; stamps: ' + ' '.join(names) + '\n'
    open(args.o, 'w').write(txt)
    print('vgpr hi', hi, 'lines', body.count('\n'), names)
```

```python
import re

REG_RE = re.compile(r'(?<![\w.])([vas])(?:(\d+)(?![\w\[])|\[(\d+):(\d+)\])')

def regs_of(op):
    out = set()
    op = op.strip()
    neg = op
    for m in REG_RE.finditer(op):
        k = m.group(1)
        if m.group(2) is not None:
            out.add((k, int(m.group(2))))
        else:
            for i in range(int(m.group(3)), int(m.group(4)) + 1):
                out.add((k, i))
    if re.search(r'\bvcc\b', op): out |= {('s', 'vcc')}
    if re.search(r'\bexec\b', op): out |= {('s', 'exec')}
    if re.search(r'\bm0\b', op): out |= {('s', 'm0')}
    return out

TRANS = ('v_exp_f32', 'v_log_f32', 'v_rcp_f32', 'v_rsq_f32', 'v_sqrt_f32', 'v_sin_f32', 'v_cos_f32')

class Ins:
    __slots__ = ('text', 'mn', 'ops', 'kind', 'defs', 'uses', 'A', 'B', 'C', 'data', 'label', 'target', 'states', 'passes', 'dpp', 'skip')
    def __init__(self, text):
        self.text = text
        t = text.split(';')[0].strip()
        self.label = None; self.target = None
        self.defs = set(); self.uses = set(); self.A = self.B = self.C = set(); self.data = set()
        self.states = 1; self.passes = 0; self.dpp = False; self.skip = False
        if t.endswith(':'):
            self.kind = 'label'; self.label = t[:-1]; self.mn = ''; self.ops = []; self.states = 0
            return
        if t == '' or t.startswith('.'):
            self.kind = 'dir'; self.mn = ''; self.ops = []; self.states = 0
            return
        parts = t.split(None, 1)
        mn = parts[0]; self.mn = mn
        rest = parts[1] if len(parts) > 1 else ''
        ops = []; cur = ''; d = 0
        for ch in rest:
            if ch == '[': d += 1
            if ch == ']': d -= 1
            if ch == ',' and d == 0:
                ops.append(cur.strip()); cur = ''
            else:
                cur += ch
        if cur.strip(): ops.append(cur.strip())
        mods = ''
        if ops:
            sp = ops[-1].split(None, 1)
            if len(sp) > 1:
                ops[-1] = sp[0]; mods = sp[1]
        self.ops = ops
        R = [regs_of(o) for o in ops]
        U = lambda l: set().union(*l) if l else set()
        if mn.startswith('v_mfma'):
            self.kind = 'mfma'
            self.defs = R[0]; self.A = R[1]; self.B = R[2]; self.C = R[3]; self.uses = U(R[1:])
            self.passes = 8 if '32x32x16' in mn else (4 if '16x16x32' in mn else None)
            assert self.passes, mn
        elif mn.startswith('v_'):
            self.kind = 'valu'
            assert not re.search(r'op_sel:\[\d,1', t), 'op_sel on src1 is unsafe: ' + t
            self.dpp = ('dpp' in mn) or ('row_' in mods) or ('quad_perm' in mods)
            if mn.startswith('v_cmp'):
                self.defs = R[0]; self.uses = U(R[1:])
                if mn.startswith('v_cmpx'): self.defs |= {('s', 'exec')}
            elif 'permlane' in mn and 'swap' in mn:
                self.defs = R[0] | R[1]; self.uses = R[0] | R[1]
            elif re.match(r'v_(add|sub|subrev|addc|subb)_co_', mn):
                self.defs = R[0] | R[1]; self.uses = U(R[2:])
            else:
                self.defs = R[0]; self.uses = U(R[1:])
                if mn.startswith(('v_fmac', 'v_dot2c', 'v_pk_fmac')) or self.dpp or 'sdwa' in mn:
                    self.uses |= R[0]
                if mn.startswith('v_cndmask') and len(ops) == 3:
                    self.uses |= {('s', 'vcc')}
        elif mn.startswith('ds_'):
            self.kind = 'ds'
            if mn.startswith(('ds_read', 'ds_bpermute', 'ds_permute', 'ds_swizzle')) or '_rtn' in mn:
                self.defs = R[0]; self.uses = U(R[1:])
            else:
                self.uses = U(R); self.data = U(R[1:])
        elif mn.startswith(('buffer_', 'global_')):
            self.kind = 'vmem'
            if mn in ('buffer_wbl2', 'buffer_inv'):
                pass
            elif ' lds' in (' ' + mods) or 'load_lds' in mn:
                self.uses = U(R) | {('s', 'm0')}
            elif 'load' in mn:
                self.defs = R[0]; self.uses = U(R[1:])
            elif mn.startswith('buffer_'):
                self.uses = U(R); self.data = R[0]
                if 'atomic' in mn and 'sc0' in mods: self.defs = R[0]
            else:
                if 'atomic' in mn and 'sc0' in mods:
                    self.defs = R[0]; self.uses = U(R[1:]); self.data = R[2]
                else:
                    self.uses = U(R); self.data = R[1]
        elif mn.startswith('s_'):
            self.kind = 'salu'
            if mn == 's_nop':
                self.states = int(ops[0], 0) + 1
            elif mn in ('s_branch',) or mn.startswith('s_cbranch'):
                self.kind = 'branch'; self.target = ops[0]
            elif mn.startswith(('s_cmp', 's_bitcmp', 's_waitcnt', 's_barrier', 's_setprio', 's_sleep', 's_endpgm', 's_setreg')):
                self.uses = U(R)
            elif mn.startswith(('s_load', 's_memtime', 's_memrealtime', 's_getpc', 's_getreg')):
                self.kind = 'smem' if not mn.startswith(('s_getpc', 's_getreg')) else 'salu'
                self.defs = R[0]; self.uses = U(R[1:])
            else:
                self.defs = R[0]; self.uses = U(R[1:])
                if 'saveexec' in mn: self.defs = self.defs | {('s', 'exec')}
        else:
            raise ValueError('unknown instruction ' + text)

def isv(r): return r[0] in 'va'

def need(p, c):
    n = 0
    pv = {r for r in p.defs if isv(r)}
    ps = {r for r in p.defs if not isv(r)}
    if p.kind == 'valu':
        if c.kind == 'mfma' and pv & c.uses: n = max(n, 2)
        if c.kind == 'mfma' and ('s', 'exec') in ps: n = max(n, 4)
        if c.kind == 'vmem' and ps & c.uses: n = max(n, 5)
        if c.kind == 'valu':
            if ps & c.uses:
                n = max(n, 4 if c.mn.startswith(('v_readlane', 'v_writelane')) else 2)
            if c.mn.startswith(('v_readfirstlane', 'v_readlane')) and pv & c.uses: n = max(n, 1)
            if 'permlane' in c.mn and pv & c.uses: n = max(n, 2)
            if c.dpp and pv & c.uses: n = max(n, 2)
            if c.dpp and ('s', 'exec') in ps: n = max(n, 5)
            if p.mn.startswith(TRANS) and pv & (c.uses | c.defs) and not c.mn.startswith(TRANS): n = max(n, 1)
            if ('sdwa' in p.mn or 'op_sel' in p.text and not p.mn.startswith('v_pk')) and pv & (c.uses | c.defs): n = max(n, 1)
        if c.kind in ('salu', 'branch', 'smem') and ps & c.uses: n = max(n, 1)
        if p.mn.startswith(TRANS) and c.kind in ('vmem', 'ds', 'mfma') and pv & c.uses: n = max(n, 2 if c.kind == 'mfma' else 1)
    if p.kind == 'salu' and ('s', 'm0') in ps and c.kind == 'vmem' and ('s', 'm0') in c.uses: n = max(n, 1)
    if p.kind == 'mfma':
        big = {4: 8, 8: 12}[p.passes]; ovl = {4: 6, 8: 10}[p.passes]; war = {4: 3, 8: 7}[p.passes]
        if c.kind == 'mfma':
            if pv & (c.A | c.B): n = max(n, big)
            if pv & c.C and not (c.C == pv and c.passes == p.passes): n = max(n, ovl)
            if pv & c.defs and not (c.C == pv): n = max(n, ovl)
        elif c.kind in ('valu', 'vmem', 'ds'):
            if pv & (c.uses | c.defs): n = max(n, big)
            if p.C & c.defs: n = max(n, war)
    if p.kind == 'vmem' and len(p.data) >= 3 and p.data & c.defs:
        n = max(n, 2 if c.kind == 'valu' else 1)
    return n

WIN = 14

class Asm:
    def __init__(self):
        self.ins = []
    def __call__(self, text):
        if isinstance(text, (list, tuple)):
            for t in text: self(t)
            return
        for line in text.split('\n'):
            line = line.strip()
            if not line: continue
            if line.startswith(';'):
                i = Ins('.x'); i.text = line; self.ins.append(i)
                continue
            self.ins.append(Ins(line))
    def label(self, name): self(name + ':')

    def _req(self, before, c):
        dist = 0; req = 0
        for p in reversed(before):
            if dist >= WIN: break
            if p.states:
                k = need(p, c)
                if k > dist: req = max(req, k - dist)
                if not p.skip: dist += p.states
        return req

    def _autowait(self):
        out = []
        Q = {'v': [], 'l': []}
        saved = {}
        opt = False; tag = None; dummy = set()
        LIM = {'v': 63, 'l': 15}; NM = {'v': 'vmcnt', 'l': 'lgkmcnt'}
        def younger(q, idx): return sum(1 for e in q[idx + 1:] if not e[2] and not e[3])
        def dowait(k, idx):
            q = Q[k]
            n = min(younger(q, idx), LIM[k])
            apply(k, n)
            return f'{NM[k]}({n})'
        def apply(k, n):
            q = Q[k]
            keep = [i for i in range(len(q)) if younger(q, i) < n]
            Q[k] = [q[i] for i in keep]
        for c in self.ins:
            t = c.text
            if t.startswith(';@'):
                w = t[2:].split()
                if w[0] == 'tag': tag = w[1]
                elif w[0] == 'opt': opt = (w[1] == 'on')
                elif w[0] == 'mark': Q['v'].append([set(), w[1], False, True])
                elif w[0] in ('wait', 'lwait'):
                    k = 'v' if w[0] == 'wait' else 'l'
                    idx = [i for i, e in enumerate(Q[k]) if e[1] == w[1]]
                    if idx: out.append(Ins('s_waitcnt ' + dowait(k, idx[-1])))
                elif w[0] == 'save': saved[w[1]] = {k: [list(e) for e in q] for k, q in Q.items()}
                elif w[0] == 'restore': Q = {k: [list(e) for e in q] for k, q in saved[w[1]].items()}
                elif w[0] == 'dummy': dummy.add(('v', int(w[1][1:])))
                elif w[0] == 'clearv': Q['v'] = []
                elif w[0] == 'clearl': Q['l'] = []
                else: raise ValueError(t)
                continue
            if c.states:
                touched = {r for r in (c.uses | c.defs) if isv(r)} - dummy
                ws = []
                for k in ('v', 'l'):
                    idx = [i for i, e in enumerate(Q[k]) if e[0] & touched]
                    if idx:
                        if opt:
                            keep = [list(e) for e in Q[k]]
                            ws.append(dowait(k, idx[-1]))
                            Q[k] = [e for e in keep if not (e[2] and e[0] & touched)]
                        else:
                            ws.append(dowait(k, idx[-1]))
                if ws: out.append(Ins('s_waitcnt ' + ' '.join(ws)))
                if c.mn == 's_waitcnt' and not opt:
                    m = re.search(r'vmcnt\((\d+)\)', t)
                    if m: apply('v', int(m.group(1)))
                    m = re.search(r'lgkmcnt\((\d+)\)', t)
                    if m: apply('l', int(m.group(1)))
                if c.mn == 's_waitcnt' and opt:
                    if 'vmcnt(0)' in t: Q['v'] = [e for e in Q['v'] if not e[2]]
                    if 'lgkmcnt(0)' in t: Q['l'] = [e for e in Q['l'] if not e[2]]
                if c.kind == 'vmem' and c.mn not in ('buffer_wbl2', 'buffer_inv'):
                    Q['v'].append([{r for r in c.defs if isv(r)}, tag, opt, False]); tag = None
                elif c.kind == 'ds':
                    Q['l'].append([{r for r in c.defs if isv(r)}, tag, opt, False]); tag = None
            out.append(c)
        return out

    def finalize(self):
        src = self._autowait()
        out = []
        pend = {}
        for c in src:
            if c.kind == 'label' and c.label in pend:
                b = pend.pop(c.label)
                if len(out) - b < 200:
                    for p in out[b + 1:]: p.skip = True
            if c.kind == 'branch': pend.setdefault(c.target, len(out))
            if c.states:
                win = []
                for p in reversed(out):
                    if p.mn in ('s_branch', 's_endpgm') and not p.skip: break
                    win.append(p)
                    if len(win) > 300: break
                win.reverse()
                r = self._req(win, c)
                while r > 0:
                    k = min(r, 16)
                    out.append(Ins(f's_nop {k-1}')); r -= k
            out.append(c)
        lab = {c.label: i for i, c in enumerate(out) if c.kind == 'label'}
        for i, c in enumerate(out):
            if c.kind == 'branch':
                j = lab[c.target]
                pre = []
                for p in reversed(out[:i + 1]):
                    if p is not c and p.mn in ('s_branch', 's_endpgm'): break
                    pre.append(p)
                    if len(pre) > 3 * WIN: break
                pre.reverse()
                post = []
                for q in out[j:j + 3 * WIN]:
                    if q.states:
                        sv = [(x, x.skip) for x in pre + post]
                        for x in pre + post: x.skip = False
                        r = self._req(pre + post, q)
                        for x, f in sv: x.skip = f
                        assert r == 0, f'hazard across branch {c.text} -> {q.text} needs {r} more'
                    post.append(q)
                    if q.mn in ('s_branch', 's_endpgm'): break
        self.out = out
        return '\n'.join((c.text if c.kind in ('label', 'dir') else '  ' + c.text) for c in out) + '\n'

def weave(main, fill, start=0, per=1):
    out = []; k = 0
    for i, m in enumerate(main):
        out.append(m)
        if i >= start:
            for _ in range(per):
                if k < len(fill): out.append(fill[k]); k += 1
    out += fill[k:]
    return out

def spread(main, fill, start=0, end=None):
    end = len(main) if end is None else end
    n = max(1, end - start)
    out = []; k = 0
    for i, m in enumerate(main):
        out.append(m)
        if start <= i < end:
            tgt = (len(fill) * (i - start + 1) + n - 1) // n
            while k < tgt: out.append(fill[k]); k += 1
    out += fill[k:]
    return out
```

```python
import sys, math, struct
sys.path.insert(0, 'gen')
from asmlib import Asm, weave, spread

NAME = 'sequential_preLN__linear_attn_block__mixer_channel_mlp__prompt'

OFF_KV = 23 << 20
OFF_CA = 65536
OFF_CB = 73728
OFF_C2 = 75776
OFF_C3 = 79872
OFF_CP = 81920
ZBYTES = 86016
OFF_O = 1 << 20
OFF_H = 5 << 20
OFF_HST = 8 << 20
OFF_G = 9 << 20
OFF_W2P = 17 << 20
OFF_W1P = OFF_W2P + 540 * 4096
OFF_TS = 24 << 20
WS_REC = 32 << 20

LOG2E = 1.4426950408889634
def f2u(x): return struct.unpack('<I', struct.pack('<f', x))[0]
def fhex(x): return '0x%08x' % f2u(x)

class VA:
    def __init__(self, start, limit=256):
        self.cur = start; self.limit = limit; self.hi = start
    def a(self, n=1, al=1):
        self.cur = (self.cur + al - 1) // al * al
        r = self.cur; self.cur += n
        assert self.cur <= self.limit, 'out of VGPRs'
        self.hi = max(self.hi, self.cur)
        return r
    def mark(self): return self.cur
    def reset(self, m): self.cur = m

def v(r, n=1): return f'v{r}' if n == 1 else f'v[{r}:{r+n-1}]'
def s(r, n=1): return f's{r}' if n == 1 else f's[{r}:{r+n-1}]'

P_X, P_WQKV, P_WO, P_BX, P_W1, P_B1, P_W2, P_B2, P_OUT, P_DBG, P_WS = range(4, 26, 2)
S_W = 26; S_RT1 = 27; S_HP = 28; S_GRP = 29; S_MEM = 30; S_CT = 31
R_X = 32; R_WQ = 36; R_WO = 40; R_W1 = 44; R_W2 = 48; R_WS = 52; R_OUT = 56; R_DBG = 60; R_B1 = 64; R_B2 = 68
T0 = 72
S_MG = 80; S_KH = 81; S_T = 82; S_STILE = 83; S_CM = 84; S_CO = 85; S_CS = 86; S_RB = 87; S_ODD = 88; S_MD = 89
M_A = 90; M_B = 92; M_C = 94; M_D = 96
S_TS = 98
S_U0 = 100; S_U1 = 101

def srd(a, r, ptr, add, nrec):
    if add is None:
        a(f's_mov_b32 {s(r)}, {s(ptr)}\ns_mov_b32 {s(r+1)}, {s(ptr+1)}')
    else:
        a(f's_add_u32 {s(r)}, {s(ptr)}, {add}\ns_addc_u32 {s(r+1)}, {s(ptr+1)}, 0')
    a(f's_mov_b32 {s(r+2)}, {nrec}\ns_mov_b32 {s(r+3)}, 0x20000')

def mask64(a, r, val):
    a(f's_mov_b32 {s(r)}, 0x{val & 0xffffffff:08x}\ns_mov_b32 {s(r+1)}, 0x{val >> 32:08x}')

def lanemask(f):
    m = 0
    for l in range(64):
        if f(l): m |= 1 << l
    return m

MF = 'v_mfma_f32_16x16x32_bf16'
SLOT = 40960
OPT = {}

def gen(stop_after=4, ts=False):
    QXOR = OPT.get('qxor', 1)
    KVS = OPT.get('kvs', 1024)
    a = Asm()
    va = VA(1)
    vL = va.a(); vL16 = va.a(); vRO = va.a(); vONE = va.a(4, 4)
    vHR = va.a(6, 2)
    vDUM = va.a(); vD10 = va.a()
    vTmp = va.a(8, 4)
    base_mark = va.mark()
    vXR = va.a(6, 2)
    xr_mark = va.mark()
    t0, t1, t2, t3, t4, t5, t6, t7 = range(vTmp, vTmp + 8)
    names = []
    RT = ['start', 'p1loop', 'sigA', 'syncB', 'drained2', 'sync2', 'drained3', 'sync3', 'end']
    def stamp_txt(name, key='fine3'):
        if not ts or not OPT.get(key): return ''
        idx = len(names); names.append(name)
        return f';@opt on\ns_memtime {s(S_TS,2)}\ns_waitcnt lgkmcnt(0)\nv_writelane_b32 v0, {s(S_TS)}, {idx}\n'
    def stamp(name, idx=None):
        if not ts: return
        if idx is None:
            idx = len(names); names.append(name)
        a(f''';@opt on
s_memtime {s(S_TS,2)}
s_waitcnt lgkmcnt(0)
v_writelane_b32 v0, {s(S_TS)}, {idx}
;@opt off''')
        if name in RT:
            a(f';@opt on\ns_memrealtime {s(S_TS,2)}\ns_waitcnt lgkmcnt(0)\nv_writelane_b32 v0, {s(S_TS)}, {63 - RT.index(name)}\n;@opt off')
        return idx

    a(f'''s_cmp_ge_u32 s2, 256
s_cbranch_scc1 L_end
s_load_dwordx16 s[4:19], s[0:1], 0
s_load_dwordx4 s[20:23], s[0:1], 64
s_load_dwordx2 s[24:25], s[0:1], 80
s_getpc_b64 {s(T0+6,2)}
s_lshr_b32 {s(S_T)}, s2, 3
v_lshrrev_b32 {v(t0)}, 5, v0
s_lshl_b32 {s(T0+4)}, {s(S_T)}, 11
v_lshl_add_u32 {v(t1)}, {v(t0)}, 7, {s(T0+4)}
v_min_u32 {v(t1)}, CODE_BYTES, {v(t1)}
s_mov_b32 exec_lo, 1
s_mov_b32 exec_hi, 1
global_load_dword {v(vDUM)}, {v(t1)}, {s(T0+6,2)}
s_mov_b64 exec, -1
v_lshrrev_b32 {v(t0)}, 6, v0
v_and_b32 {v(vL)}, 63, v0
v_readfirstlane_b32 {s(S_W)}, {v(t0)}
s_and_b32 {s(T0)}, s2, 7
s_and_b32 {s(S_RT1)}, {s(T0)}, 3
s_lshl_b32 {s(S_RT1)}, {s(S_RT1)}, 2
s_and_b32 {s(T0+2)}, {s(S_T)}, 3
s_add_u32 {s(S_RT1)}, {s(S_RT1)}, {s(T0+2)}
s_lshr_b32 {s(S_HP)}, {s(T0)}, 2
s_lshl_b32 {s(S_HP)}, {s(S_HP)}, 3
s_lshr_b32 {s(T0+3)}, {s(S_T)}, 2
s_add_u32 {s(S_HP)}, {s(S_HP)}, {s(T0+3)}
s_and_b32 {s(S_MG)}, {s(S_W)}, 3
s_lshr_b32 {s(S_KH)}, {s(S_W)}, 2
v_lshlrev_b32 {v(vL16)}, 4, {v(vL)}
s_mov_b32 s3, 1
s_cmp_ge_u32 {s(S_W)}, 4
;@save p1
s_cbranch_scc1 L_p1c''')

    def late_ids():
        a(f'''s_and_b32 {s(T0)}, s2, 7
s_lshl_b32 {s(S_GRP)}, {s(T0)}, 1
s_and_b32 {s(T0+4)}, {s(S_T)}, 1
s_add_u32 {s(S_GRP)}, {s(S_GRP)}, {s(T0+4)}
s_lshr_b32 {s(S_MEM)}, {s(S_T)}, 1
s_and_b32 {s(S_CT)}, {s(S_MEM)}, 7
s_and_b32 {s(S_ODD)}, {s(S_CT)}, 1
s_lshl_b32 {s(S_STILE)}, {s(S_GRP)}, 3
s_lshr_b32 {s(T0+4)}, {s(S_MEM)}, 3
s_lshl_b32 {s(T0+4)}, {s(T0+4)}, 2
s_add_u32 {s(S_STILE)}, {s(S_STILE)}, {s(T0+4)}
s_add_u32 {s(S_STILE)}, {s(S_STILE)}, {s(S_MG)}
s_lshl_b32 {s(T0+4)}, {s(S_ODD)}, 5
s_lshl_b32 {s(T0+5)}, {s(S_KH)}, 6
s_add_u32 {s(S_CM)}, {s(T0+4)}, {s(T0+5)}
s_xor_b32 {s(T0+5)}, {s(T0+5)}, 64
s_add_u32 {s(S_CO)}, {s(T0+4)}, {s(T0+5)}
s_cmp_eq_u32 {s(S_ODD)}, 0
s_cselect_b32 {s(S_CS)}, 128, 0
s_mul_i32 {s(S_RB)}, {s(S_STILE)}, 20480
s_mul_i32 {s(T0+4)}, {s(S_CT)}, 160
s_add_u32 {s(S_RB)}, {s(S_RB)}, {s(T0+4)}
s_lshl_b32 {s(S_MD)}, {s(S_W)}, 10
s_sub_u32 {s(T0+5)}, 819200, {s(T0+4)}
s_sub_u32 {s(T0+6)}, 1280, {s(T0+4)}''')
        srd(a, R_WO, P_WO, s(T0+4), s(T0+5))
        srd(a, R_B2, P_B2, s(T0+4), s(T0+6))
        srd(a, R_DBG, P_DBG, None, 256)
        srd(a, R_OUT, P_OUT, None, 2621440)
        for i in range(4): a(f'v_mov_b32 {v(vONE+i)}, 0x3f803f80')
        a(f'''v_and_b32 {v(t0)}, 15, {v(vL)}
v_mul_u32_u24 {v(t0)}, 1280, {v(t0)}
v_lshrrev_b32 {v(t1)}, 4, {v(vL)}
v_lshl_add_u32 {v(vRO)}, {v(t1)}, 3, {v(t0)}''')

    SA = 32768; RK, RV = 16384, 24576
    SP = 131072; MISC = 155648; FLG = MISC; ST = MISC + 1024; PKS = 3 * SA + 24576
    WQPOS = [SP + 8192 * q for q in range(3)] + [2 * SA + 8192 * q for q in range(4)] + [3 * SA + 8192 * q for q in range(3)]
    KVR = 0; WO = 0; XRL = 106496
    F_WQ, F_KVR, F_DRA, F_DRB, F_PB, F_PK, F_GA, F_H1 = 0, 12, 16, 20, 24, 28, 32, 36
    OOR = WS_REC
    S_LB = 0
    SLP = OPT.get('sleep', 2)
    ool = []

    def phi4(x, tmp, cL, cE6L, e6v, pk=1):
        if not pk:
            return ([f'v_fma_f32 {v(tmp+i)}, {v(x+i)}, {v(cL)}, {v(cE6L)}' for i in range(4)] + [f'v_exp_f32 {v(tmp+i)}, {v(tmp+i)} clamp' for i in range(4)]
                    + [f'v_max_f32 {v(x+i)}, {v(e6v)}, {v(x+i)}' for i in range(4)] + [f'v_add_f32 {v(x+i)}, {v(x+i)}, {v(tmp+i)}' for i in range(4)])
        L = [f'v_pk_fma_f32 {v(tmp+i,2)}, {v(x+i,2)}, {v(cL,2)}, {v(cE6L,2)} op_sel_hi:[1,0,0]' for i in (0, 2)]
        L += [f'v_exp_f32 {v(tmp+i)}, {v(tmp+i)} clamp' for i in range(4)]
        L += [f'v_max_f32 {v(x+i)}, {v(e6v)}, {v(x+i)}' for i in range(4)]
        L += [f'v_pk_add_f32 {v(x+i,2)}, {v(x+i,2)}, {v(tmp+i,2)}' for i in (0, 2)]
        return L
    mk = lambda r, f: f's_mov_b32 {s(r)}, 0x{lanemask(f) & 0xffffffff:08x}\ns_mov_b32 {s(r+1)}, 0x{lanemask(f) >> 32:08x}'

    def larrive(vFL, off):
        a(f's_mov_b64 exec, 1\nds_add_u32 {v(vFL)}, {v(vFL+1)} offset:{off}\ns_mov_b64 exec, -1')
    def lwait(vFL, off, tag, tmp):
        a(f''';@opt on
s_waitcnt lgkmcnt(0)
s_mov_b32 {s(S_LB)}, 0x1000000
L_lw{tag}:
ds_read_b32 {v(tmp)}, {v(vFL)} offset:{off}
s_sub_u32 {s(S_LB)}, {s(S_LB)}, 1
s_cselect_b32 {s(S_LB+1)}, 0, 4
s_waitcnt lgkmcnt(0)
v_readfirstlane_b32 {s(T0+7)}, {v(tmp)}
s_cmp_lt_u32 {s(T0+7)}, {s(S_LB+1)}
s_cbranch_scc1 L_lw{tag}
;@clearl''')
    caddr = lambda dst, idx, base: f's_lshl_b32 {s(dst)}, {s(idx)}, 7\ns_add_u32 {s(dst)}, {s(dst)}, {base}'
    ssig = lambda off: f's_atomic_add s3, {s(P_WS,2)}, {s(off)}'
    def last_signals(vFL, off, tag, tmp, idx, base, wait='s_waitcnt vmcnt(0)'):
        a(f'''{caddr(S_LB+1, idx, base)}
s_mov_b64 exec, 1
{wait}
ds_add_rtn_u32 {v(tmp)}, {v(vFL)}, {v(vFL+1)} offset:{off}
s_mov_b64 exec, -1
s_waitcnt lgkmcnt(0)
v_readfirstlane_b32 {s(T0+7)}, {v(tmp)}
s_cmp_lg_u32 {s(T0+7)}, 3
s_cbranch_scc1 L_ls{tag}
{ssig(S_LB+1)}
L_ls{tag}:''')
    def gpoll(tag, off):
        return f'''s_waitcnt lgkmcnt(0)
s_mov_b32 {s(T0+7)}, 0x400000
L_{tag}_p:
s_mov_b32 {s(S_LB)}, 0
s_atomic_add {s(S_LB)}, {s(P_WS,2)}, {s(off)} glc
s_sub_u32 {s(T0+7)}, {s(T0+7)}, 1
s_cselect_b32 {s(S_LB+1)}, 0, 16
s_waitcnt lgkmcnt(0)
s_cmp_ge_u32 {s(S_LB)}, {s(S_LB+1)}
s_cbranch_scc1 L_{tag}_d
s_sleep {SLP}
s_branch L_{tag}_p
L_{tag}_d:'''

    def x_addrs(aX):
        a(f"""v_lshrrev_b32 {v(t4)}, 4, {v(vL)}
v_and_b32 {v(t7)}, 15, {v(vL)}
s_lshl_b32 {s(T0+4)}, {s(S_MG)}, 12
v_lshrrev_b32 {v(t0)}, 1, {v(t7)}
v_xor_b32 {v(t0)}, {v(t0)}, {v(t4)}
v_lshlrev_b32 {v(t0)}, 4, {v(t0)}
v_lshl_add_u32 {v(t0)}, {v(t7)}, 7, {v(t0)}
v_add_u32 {v(aX)}, {s(T0+4)}, {v(t0)}
v_xor_b32 {v(aX+1)}, 64, {v(aX)}
v_add_u32 {v(aX+2)}, {2*SA}, {v(aX)}
v_add_u32 {v(aX+3)}, {2*SA}, {v(aX+1)}""")
    def w_addrs(rA, rB, rC, xor, base):
        g_, r_, c_, s_ = t4, t5, t6, t7
        a(f"""v_lshrrev_b32 {v(g_)}, 4, {v(vL)}
v_bfe_u32 {v(r_)}, {v(vL)}, 2, 2
v_and_b32 {v(c_)}, 3, {v(vL)}
v_lshl_add_u32 {v(t0)}, {v(g_)}, 3, {v(r_)}
v_lshlrev_b32 {v(t0)}, 7, {v(t0)}
v_and_b32 {v(t1)}, 1, {v(g_)}
v_lshlrev_b32 {v(t1)}, 1, {v(t1)}
v_lshrrev_b32 {v(t2)}, 1, {v(r_)}
v_or_b32 {v(t1)}, {v(t1)}, {v(t2)}
v_lshlrev_b32 {v(t1)}, 5, {v(t1)}
v_and_b32 {v(s_)}, 1, {v(c_)}
v_mul_u32_u24 {v(s_)}, 40, {v(s_)}
s_xor_b32 {s(T0+4)}, {s(S_HP)}, {xor}
s_and_b32 {s(T0+4)}, {s(T0+4)}, 3
s_lshl_b32 {s(T0+4)}, {s(T0+4)}, 4
s_mov_b32 {s(T0+5)}, {base}
v_lshl_add_u32 {v(t2)}, {v(c_)}, 3, {s(T0+4)}
v_xor_b32 {v(t3)}, {v(t2)}, {v(t1)}
v_add3_u32 {v(rA)}, {v(t3)}, {v(t0)}, {s(T0+5)}
v_add_u32 {v(t2)}, 40, {v(t2)}
v_xor_b32 {v(t3)}, {v(t2)}, {v(t1)}
v_add3_u32 {v(rB)}, {v(t3)}, {v(t0)}, {s(T0+5)}
v_add3_u32 {v(t2)}, {v(s_)}, {s(T0+4)}, 32
v_xor_b32 {v(t3)}, {v(t2)}, {v(t1)}
v_add3_u32 {v(rC)}, {v(t3)}, {v(t0)}, {s(T0+5)}""")

    va.reset(xr_mark)
    acc2 = va.a(20, 4); O2 = va.a(32, 4); OS2 = va.a(8, 4)
    WP = [va.a(20, 4) for _ in range(8)]
    aM = va.a(3); vL8 = va.a()
    aS = O2; axr_ = O2 + 3
    axw = vHR; axr = vHR + 1; vL4b = vHR + 2
    XC0 = WO + 38400
    E0, E1, E2, E3, E4, E5, E6, E7 = 36, 37, 38, 39, 6, 7, 10, 11
    S_T0 = S_U0; S_O3 = S_U1; S_W1 = E6
    RRB = 3 * SLOT
    S_HX, S_GP, S_MXl, S_HS, S_C3, S_R0, S_R1, S_P0 = range(R_W1, R_W1 + 8); S_W2 = E3
    def p2_scalars():
        a(f'''s_lshl_b32 {s(T0+2)}, {s(S_STILE)}, 4
s_lshl_b32 {s(T0+3)}, {s(S_KH)}, 3
s_add_u32 {s(T0+2)}, {s(T0+2)}, {s(T0+3)}
s_mul_i32 {s(T0+2)}, {s(T0+2)}, 1280
s_add_u32 {s(T0+2)}, {s(T0+2)}, {OFF_O}
s_mul_i32 {s(S_T0)}, {s(S_HP)}, 7
s_mul_i32 {s(T0+4)}, {s(S_HP)}, 6
s_add_u32 {s(T0+4)}, {s(T0+4)}, 12
s_cmp_lt_u32 {s(S_HP)}, 12
s_cselect_b32 {s(S_T0)}, {s(S_T0)}, {s(T0+4)}
s_add_u32 {s(S_W1)}, {s(S_T0)}, {s(S_W)}
s_lshl_b32 {s(S_W1)}, {s(S_W1)}, 10
s_add_u32 {s(S_W1)}, {s(S_W1)}, {OFF_W1P}''')
        a(f'''s_and_b32 {s(S_O3)}, {s(S_T0)}, 1
s_lshl_b32 {s(T0+4)}, {s(S_T0)}, 5
s_sub_u32 {s(T0+6)}, 3456, {s(T0+4)}''')
        srd(a, R_B1, P_B1, s(T0+4), s(T0+6))
        a(f'''s_mul_i32 {s(E0)}, {s(S_CT)}, 5
s_add_u32 {s(E0)}, {s(E0)}, 1
s_lshr_b32 {s(E0)}, {s(E0)}, 1
s_mul_i32 {s(E1)}, {s(S_STILE)}, 20
s_add_u32 {s(E0)}, {s(E0)}, {s(E1)}
s_cmp_eq_u32 {s(S_ODD)}, 0
s_cselect_b32 {s(E1)}, 2, -1
s_add_u32 {s(E1)}, {s(E1)}, {s(E0)}
s_lshl_b32 {s(E1)}, {s(E1)}, 10
s_lshl_b32 {s(E2)}, {s(S_ODD)}, 9
s_add_u32 {s(E1)}, {s(E1)}, {s(E2)}
s_add_u32 {s(E1)}, {s(E1)}, {OFF_H}
s_cmp_lg_u32 {s(S_KH)}, 0
s_cselect_b32 {s(E1)}, {OOR}, {s(E1)}
s_cselect_b32 {s(E5)}, 0, 1.0
s_add_u32 {s(E0)}, {s(E0)}, {s(S_KH)}
s_lshl_b32 {s(E0)}, {s(E0)}, 10
s_add_u32 {s(E0)}, {s(E0)}, {OFF_H}
s_lshl_b32 {s(E2)}, {s(S_STILE)}, 3
s_add_u32 {s(E2)}, {s(E2)}, {s(S_CT)}
s_lshl_b32 {s(E2)}, {s(E2)}, 8
s_lshl_b32 {s(T0+3)}, {s(S_KH)}, 7
s_add_u32 {s(E2)}, {s(E2)}, {s(T0+3)}
s_add_u32 {s(E2)}, {s(E2)}, {OFF_HST}
s_mul_i32 {s(E3)}, {s(S_CT)}, 5120
s_mul_i32 {s(T0+3)}, {s(S_W)}, 40960
s_add_u32 {s(E3)}, {s(E3)}, {s(T0+3)}
s_add_u32 {s(E3)}, {s(E3)}, {OFF_W2P}
s_mul_i32 {s(E7)}, {s(S_W)}, 5120
s_lshl_b32 {s(S_C3)}, {s(S_O3)}, 5
s_lshl_b32 {s(T0+6)}, {s(S_MG)}, 6
s_add_u32 {s(S_C3)}, {s(S_C3)}, {s(T0+6)}
s_cmp_eq_u32 {s(S_C3)}, 224
s_cselect_b32 {s(S_C3)}, 0, {s(S_C3)}
s_lshl_b32 {s(S_P0)}, {s(S_C3)}, 5
s_lshl_b32 {s(S_HX)}, {s(S_RT1)}, 3
s_lshl_b32 {s(T0+6)}, {s(S_KH)}, 2
s_add_u32 {s(S_HX)}, {s(S_HX)}, {s(T0+6)}
s_mul_i32 {s(S_GP)}, {s(S_HX)}, 54
s_mul_i32 {s(S_HX)}, {s(S_HX)}, 20
s_add_u32 {s(S_HX)}, {s(S_HX)}, {s(S_MG)}
s_lshl_b32 {s(S_HX)}, {s(S_HX)}, 10
s_add_u32 {s(S_HX)}, {s(S_HX)}, {OFF_H}
s_mul_i32 {s(S_MXl)}, {s(S_KH)}, 20480
s_lshl_b32 {s(T0+6)}, {s(S_MG)}, 10
s_add_u32 {s(S_MXl)}, {s(S_MXl)}, {s(T0+6)}
s_lshl_b32 {s(T0+6)}, {s(S_T0)}, 5
s_add_u32 {s(T0+6)}, {s(T0+6)}, {s(S_C3)}
s_lshr_b32 {s(T0+7)}, {s(T0+6)}, 6
s_add_u32 {s(S_GP)}, {s(S_GP)}, {s(T0+7)}
s_lshl_b32 {s(S_GP)}, {s(S_GP)}, 10
s_bfe_u32 {s(T0+7)}, {s(T0+6)}, 0x10005
s_lshl_b32 {s(T0+7)}, {s(T0+7)}, 9
s_add_u32 {s(S_GP)}, {s(S_GP)}, {s(T0+7)}
s_add_u32 {s(S_GP)}, {s(S_GP)}, {OFF_G}
s_cmp_ge_u32 {s(S_HP)}, 12
s_cselect_b32 {s(T0+6)}, {OOR}, {s(S_GP)}
s_cmp_eq_u32 {s(S_MG)}, 3
s_cselect_b32 {s(S_GP)}, {s(T0+6)}, {s(S_GP)}
s_lshl_b32 {s(S_HS)}, {s(S_RT1)}, 3
s_add_u32 {s(S_HS)}, {s(S_HS)}, {s(S_W)}
s_lshl_b32 {s(S_HS)}, {s(S_HS)}, 11
s_add_u32 {s(S_HS)}, {s(S_HS)}, {OFF_HST}
s_lshl_b32 {s(S_R0)}, {s(S_W)}, 7
s_add_u32 {s(S_R0)}, {s(S_R0)}, {RRB}
s_lshl_b32 {s(S_R1)}, {s(S_KH)}, 9
s_add_u32 {s(S_R1)}, {s(S_R1)}, {RRB}''')
    def p2_setup():
        g_, r_, c_ = t4, t5, t6
        a(f'''v_lshrrev_b32 {v(g_)}, 4, {v(vL)}
v_bfe_u32 {v(r_)}, {v(vL)}, 2, 2
v_and_b32 {v(c_)}, 3, {v(vL)}
v_lshl_add_u32 {v(t0)}, {v(g_)}, 2, {v(r_)}
v_mul_u32_u24 {v(t0)}, 160, {v(t0)}
v_lshl_add_u32 {v(t0)}, {v(c_)}, 3, {v(t0)}
v_mul_u32_u24 {v(t1)}, 20, {v(r_)}
v_add3_u32 {v(t1)}, {v(t1)}, {v(g_)}, 16
v_mul_u32_u24 {v(t1)}, 160, {v(t1)}
v_lshl_add_u32 {v(t1)}, {v(c_)}, 3, {v(t1)}
s_xor_b32 {s(T0+4)}, {s(S_KH)}, 1
s_mul_i32 {s(T0+4)}, {s(T0+4)}, 51200''')
        for i, sc in enumerate((S_CM, S_CO, S_CS)):
            a(f's_add_u32 {s(T0+5)}, {s(T0+4)}, {s(sc)}\nv_add_u32 {v(aM+i)}, {s(T0+5)}, {v(t0)}\nv_add_u32 {v(aS+i)}, {s(T0+5)}, {v(t1)}')
        a(f'''s_mul_i32 {s(T0+5)}, {s(S_MG)}, 3072
s_add_u32 {s(T0+5)}, {s(T0+5)}, {XC0}
s_add_u32 {s(T0+6)}, {s(T0+5)}, {s(T0+4)}
v_add_u32 {v(axw)}, {s(T0+6)}, {v(vL16)}
s_sub_u32 {s(T0+6)}, 51200, {s(T0+4)}
s_add_u32 {s(T0+6)}, {s(T0+6)}, {s(T0+5)}
v_add_u32 {v(axr)}, {s(T0+6)}, {v(vL16)}
v_lshlrev_b32 {v(vL8)}, 3, {v(vL)}
v_lshlrev_b32 {v(vL4b)}, 2, {v(vL)}
v_and_b32 {v(t2)}, 15, {v(vL)}
v_mul_u32_u24 {v(t2)}, 160, {v(t2)}
v_lshl_add_u32 {v(t2)}, {v(g_)}, 3, {v(t2)}
s_mul_i32 {s(T0+4)}, {s(S_MG)}, 2560
s_add_u32 {s(T0+4)}, {s(T0+4)}, {XRL}
s_add_u32 {s(T0+5)}, {s(T0+4)}, {s(S_CM)}
v_add_u32 {v(axr_)}, {s(T0+5)}, {v(t2)}
s_add_u32 {s(T0+5)}, {s(T0+4)}, {s(S_CS)}
v_add_u32 {v(axr_+1)}, {s(T0+5)}, {v(t2)}''')
    tl = [(0, 0), (0, 32), (1, 0), (1, 32), (2, 0)]
    WB_ = lambda kind, j: WP[j % 6] if kind == 'm' else WP[6 + j]
    def wread(kind, j):
        buf = WB_(kind, j); L = []
        for t, (ai, ci) in enumerate(tl):
            for jh in range(2):
                if kind == 'm': ad_, off = aM + ai, j * 6400 + jh * 3200 + ci
                else: ad_, off = aS + ai, j * 25600 + jh * 12800 + ci
                L.append(f'ds_read_b64_tr_b16 {v(buf+4*t+2*jh,2)}, {v(ad_)} offset:{off}')
        return L
    def preread(): return [x for j in range(2) for x in wread('s', j)] + [x for j in range(6) for x in wread('m', j)]

    p1_mark = base_mark
    va.reset(base_mark)
    vX = va.a(4); vW = va.a(6); aX = vHR; vFL = vHR + 4
    a(f"""v_lshrrev_b32 {v(t0)}, 3, {v(vL)}
v_and_b32 {v(t1)}, 7, {v(vL)}
v_lshrrev_b32 {v(t2)}, 4, {v(vL)}
s_lshl_b32 {s(T0+4)}, {s(S_MG)}, 5
v_add_u32 {v(t3)}, {s(T0+4)}, {v(t0)}
v_mul_u32_u24 {v(t3)}, 1280, {v(t3)}
v_xor_b32 {v(vX)}, {v(t1)}, {v(t2)}
v_lshl_add_u32 {v(vX)}, {v(vX)}, 4, {v(t3)}
v_xor_b32 {v(vX+1)}, 64, {v(vX)}
v_add_u32 {v(vX+1)}, {8*1280-1024}, {v(vX+1)}
v_add_u32 {v(vX+2)}, {16*1280-2048}, {v(vX)}
v_add_u32 {v(vX+3)}, {16*1280-2048}, {v(vX+1)}
s_mul_i32 {s(T0+6)}, {s(S_RT1)}, 163840""")
    S_MX = M_C; S_MW = M_C + 1; S_SX = M_D; S_SW = M_D + 1; S_CH = S_U1
    a(f's_lshl_b32 {s(S_MX)}, {s(S_MG)}, 12\ns_lshl_b32 {s(S_MW)}, {s(S_MG)}, 11')
    a(f"""s_mul_i32 {s(S_CH)}, {s(T0+2)}, 3
s_add_u32 {s(S_CH)}, {s(S_CH)}, {s(T0+3)}
s_and_b32 {s(T0+7)}, {s(T0)}, 3
s_add_u32 {s(S_CH)}, {s(S_CH)}, {s(T0+7)}
s_lshr_b32 {s(T0+7)}, {s(T0)}, 2
s_lshl_b32 {s(T0+7)}, {s(T0+7)}, 1
s_add_u32 {s(S_CH)}, {s(S_CH)}, {s(T0+7)}
s_cmp_ge_u32 {s(S_CH)}, 10
s_cselect_b32 {s(T0+7)}, 10, 0
s_sub_u32 {s(S_CH)}, {s(S_CH)}, {s(T0+7)}
s_cmp_ge_u32 {s(S_CH)}, 10
s_cselect_b32 {s(T0+7)}, 10, 0
s_sub_u32 {s(S_CH)}, {s(S_CH)}, {s(T0+7)}
s_lshl_b32 {s(T0+4)}, {s(S_MG)}, 4
v_add_u32 {v(t3)}, {s(T0+4)}, {v(t0)}
v_mul_u32_u24 {v(t3)}, 3840, {v(t3)}
v_and_b32 {v(t2)}, 1, {v(t2)}
v_lshlrev_b32 {v(t2)}, 1, {v(t2)}
v_xor_b32 {v(t1)}, {v(t1)}, {v(t2)}
v_lshl_add_u32 {v(t3)}, {v(t1)}, 4, {v(t3)}
v_xor_b32 {v(t0)}, 64, {v(t3)}
v_add_u32 {v(t0)}, {8*3840-1024}, {v(t0)}
s_mul_i32 {s(T0+5)}, {s(S_HP)}, 80
s_and_b32 {s(T0+5)}, {s(T0+5)}, 0xffffffc0
s_add_u32 {s(T0+5)}, {s(T0+5)}, 1280
v_add_u32 {v(vW)}, {s(T0+5)}, {v(t3)}
v_add_u32 {v(vW+1)}, {s(T0+5)}, {v(t0)}
s_add_u32 {s(T0+5)}, {s(T0+5)}, 1280
v_xor_b32 {v(t1)}, 16, {v(t3)}
v_xor_b32 {v(t2)}, 16, {v(t0)}
v_add_u32 {v(vW+2)}, {s(T0+5)}, {v(t1)}
v_add_u32 {v(vW+3)}, {s(T0+5)}, {v(t2)}
s_waitcnt lgkmcnt(0)""")
    srd(a, R_X, P_X, s(T0+6), 163840)
    srd(a, R_WQ, P_WQKV, None, 2457600)
    adv = f's_add_u32 {s(S_CH)}, {s(S_CH)}, 1\ns_cmp_eq_u32 {s(S_CH)}, 10\ns_cselect_b32 {s(S_CH)}, 0, {s(S_CH)}'
    def p1_dma(c):
        sl = c % 4
        L = [f's_lshl_b32 {s(S_SX)}, {s(S_CH)}, 7\ns_mul_i32 {s(S_SW)}, {s(S_CH)}, 245760\ns_add_u32 m0, {s(S_MX)}, {sl*SA}\n{adv}\n'
             f'buffer_load_dwordx4 {v(vX)}, {s(R_X,4)}, {s(S_SX)} offen lds']
        for i in range(1, 4):
            L.append(f'buffer_load_dwordx4 {v(vX+i)}, {s(R_X,4)}, {s(S_SX)} offen offset:{1024*i} lds')
        for sec in range(2):
            L[-1] += f'\ns_add_u32 m0, {s(S_MW)}, {RK + 8192*sec + sl*SA}'
            for b in range(2):
                tg = f';@tag c{c}\n' if (sec == 1 and b == 1) else ''
                L.append(f'{tg}buffer_load_dwordx4 {v(vW+2*sec+b)}, {s(R_WQ,4)}, {s(S_SW)} offen offset:{1024*b} lds')
        return L
    def wq_dma(qs):
        L = []
        for q in qs:
            L.append(f's_mul_i32 {s(S_SW)}, {s(S_CH)}, 245760\ns_add_u32 m0, {s(S_MW)}, {WQPOS[q]}\n{adv}\n'
                     f'buffer_load_dwordx4 {v(vW+4)}, {s(R_WQ,4)}, {s(S_SW)} offen lds')
            L.append(f';@tag q{q}\nbuffer_load_dwordx4 {v(vW+5)}, {s(R_WQ,4)}, {s(S_SW)} offen offset:1024 lds')
        return L
    stamp('start')
    a(p1_dma(0))
    a(f"""s_xor_b32 {s(T0+5)}, {s(S_HP)}, {QXOR}
s_mul_i32 {s(T0+5)}, {s(T0+5)}, 80
s_and_b32 {s(T0+5)}, {s(T0+5)}, 0xffffffc0
v_add_u32 {v(vW+4)}, {s(T0+5)}, {v(t3)}
v_add_u32 {v(vW+5)}, {s(T0+5)}, {v(t0)}""")
    x_addrs(aX)
    for i in range(4): a(f'v_mov_b32 {v(vONE+i)}, 0x3f803f80')
    aQ = va.a(6); aST = va.a(); zp = va.a(2); aTW = zp + 1
    XR = va.a(160, 4); gram = va.a(8, 4); rsum = va.a(8, 4)
    lmark = va.mark()
    ltouch = f'''v_min_u32 {v(t0)}, 31, {v(vL)}
v_mul_lo_u32 {v(t0)}, {v(t0)}, {s(S_U0)}
v_lshlrev_b32 {v(t1)}, 7, {v(vL)}
buffer_load_dword {v(vDUM)}, {v(t1)}, {s(R_B1,4)}, {s(P_BX)} offen
buffer_load_dword {v(vDUM)}, {v(t0)}, {s(R_W2,4)}, {s(P_BX+1)} offen'''
    i_ls = stamp('loopstart')
    NQ8 = OPT.get('nq8', 0); NQ1 = OPT.get('nq1', 2)
    a(p1_dma(1))
    for i in range(10):
        a(f';@wait c{i}\ns_barrier')
        sl = i % 4
        for j in range(2):
            for m in range(2): a(f'ds_read_b128 {v(XR+16*i+8*j+4*m,4)}, {v(aX+2*(sl>>1)+j)} offset:{(sl&1)*SA + 2048*m}')
        M = []
        for j in range(2):
            z = (i == 0 and j == 0)
            for m in range(2):
                x = v(XR + 16 * i + 8 * j + 4 * m, 4)
                M.append(f'{MF} {v(gram+4*m,4)}, {x}, {x}, {0 if z else v(gram+4*m,4)}')
                M.append(f'{MF} {v(rsum+4*m,4)}, {v(vONE,4)}, {x}, {0 if z else v(rsum+4*m,4)}')
        D_ = p1_dma(i + 2) if i <= 7 else []
        if i == 6: a(f'buffer_load_dword {v(vD10)}, {v(zp)}, {s(R_DBG,4)}, 0 offen sc1')
        a(D_[:2]); a(weave(M, D_[2:]))
        if i == 0:
            srd(a, R_WS, P_WS, None, WS_REC)
            late_ids()
        if i == 1:
            w_addrs(aQ + 1, aQ + 2, aQ, QXOR, 2 * SA)
            for k in range(3): a(f'v_add_u32 {v(aQ+3+k)}, {SP-2*SA}, {v(aQ+k)}')
            a(mk(M_A, lambda l: (l & 3) == 1)); a(mk(M_B, lambda l: (l & 3) == 2)); a(mk(T0+2, lambda l: (l & 3) == 3))
            a(mk(T0, lambda l: ((l & 15) >> 2) == (l >> 4)))
            a(f"""v_and_b32 {v(t0)}, 15, {v(vL)}
v_lshlrev_b32 {v(t0)}, 2, {v(t0)}
s_lshl_b32 {s(T0+4)}, {s(S_MG)}, 7
s_add_u32 {s(T0+4)}, {s(T0+4)}, {ST}
v_add_u32 {v(aST)}, {s(T0+4)}, {v(t0)}
v_mov_b32 {v(zp)}, 0
v_mov_b32 {v(vFL)}, {FLG}
v_mov_b32 {v(vFL+1)}, 1
""")
        if i == 2:
            a(f'''s_lshl_b32 {s(T0+5)}, {s(S_T)}, 2
s_add_u32 {s(T0+5)}, {s(T0+5)}, {s(S_MG)}
s_lshl_b32 {s(P_BX)}, {s(T0+5)}, 13
s_lshl_b32 {s(T0+6)}, s2, 2
s_add_u32 {s(T0+6)}, {s(T0+6)}, {s(S_MG)}
s_movk_i32 {s(S_U0)}, 3456
s_movk_i32 {s(P_BX+1)}, {(1<<16)//27+1}
s_cmp_lt_u32 {s(T0+6)}, 540
s_cselect_b32 {s(R_W2)}, {s(P_W2)}, {s(P_W1)}
s_cselect_b32 {s(R_W2+1)}, {s(P_W2+1)}, {s(P_W1+1)}
s_mov_b32 {s(R_W2+2)}, 2211840
s_mov_b32 {s(R_W2+3)}, 0x20000
s_cselect_b32 {s(S_U0)}, 1280, {s(S_U0)}
s_cselect_b32 {s(T0+5)}, 0, 540
s_cselect_b32 {s(P_BX+1)}, {(1<<16)//10+1}, {s(P_BX+1)}
s_sub_u32 {s(T0+5)}, {s(T0+6)}, {s(T0+5)}
s_mul_i32 {s(P_BX+1)}, {s(P_BX+1)}, {s(T0+5)}
s_lshr_b32 {s(P_BX+1)}, {s(P_BX+1)}, 16
s_mul_i32 {s(P_BX+1)}, {s(P_BX+1)}, {s(S_U0)}
s_mul_i32 {s(P_BX+1)}, {s(P_BX+1)}, 31
s_lshl_b32 {s(T0+5)}, {s(T0+5)}, 7
s_add_u32 {s(P_BX+1)}, {s(P_BX+1)}, {s(T0+5)}''')
            srd(a, R_B1, P_WO, None, 819200)
        if i == OPT.get('lt', 1) - 20: a(ltouch)
        if i == OPT.get('wq0at', 7): a(wq_dma(range(3)))
        if i == OPT.get('lt', 1) - 10: a(ltouch)
        if i == 8: a(wq_dma(range(3, 3 + NQ8)))
    tmp = vTmp
    a(f's_mov_b32 {s(T0+4)}, {fhex(1/640)}\ns_mov_b32 {s(T0+5)}, {fhex(1e-5)}')
    SS = []
    for m in range(2):
        G = gram + 4 * m; sm = rsum + 4 * m; sq = tmp + 4 * m + 1; o = tmp + 4 * m + 2
        SS.append(f"""v_cndmask_b32 {v(sq)}, {v(G)}, {v(G+1)}, {s(M_A,2)}
v_cndmask_b32 {v(sq)}, {v(sq)}, {v(G+2)}, {s(M_B,2)}
v_cndmask_b32 {v(sq)}, {v(sq)}, {v(G+3)}, {s(T0+2,2)}
v_mul_f32 {v(sm)}, {s(T0+4)}, {v(sm)}
v_mul_f32 {v(sq)}, {s(T0+4)}, {v(sq)}
v_fma_f32 {v(sq)}, -{v(sm)}, {v(sm)}, {v(sq)}
v_max_f32 {v(sq)}, 0, {v(sq)}
v_add_f32 {v(sq)}, {s(T0+5)}, {v(sq)}
v_rsq_f32 {v(o)}, {v(sq)}
v_mul_f32 {v(o+1)}, -{v(sm)}, {v(o)}""".split('\n'))
    for x, y in zip(*SS): a(x); a(y)
    a(f's_mov_b64 exec, {s(T0,2)}')
    for m in range(2):
        a(f'ds_write2_b32 {v(aST)}, {v(tmp+4*m+2)}, {v(tmp+4*m+3)} offset0:{16*m} offset1:{128+16*m}')
    a('s_mov_b64 exec, -1')
    a(f"""v_readfirstlane_b32 {s(T0+4)}, {v(vD10)}
s_cmp_ge_u32 {s(T0+4)}, {ZBYTES//1024}
s_cbranch_scc1 L_zok
s_mov_b32 {s(T0+5)}, 0x400000
L_zpoll:
buffer_load_dword {v(vD10)}, {v(zp)}, {s(R_DBG,4)}, 0 offen sc1
s_waitcnt vmcnt(0)
v_readfirstlane_b32 {s(T0+4)}, {v(vD10)}
s_sub_u32 {s(T0+5)}, {s(T0+5)}, 1
s_cmp_eq_u32 {s(T0+5)}, 0
s_cbranch_scc1 L_zok
s_cmp_lt_u32 {s(T0+4)}, {ZBYTES//1024}
s_cbranch_scc1 L_zpoll
L_zok:""")
    a(wq_dma(range(3 + NQ8, 3 + NQ8 + NQ1)))
    a('s_waitcnt lgkmcnt(0)')
    i_le = stamp('p1loop')
    a('s_barrier')
    QD = wq_dma(range(3 + NQ8 + NQ1, 10))
    va.reset(gram)
    stt = vX
    for m in range(2):
        a(f'ds_read2_b32 {v(stt+2*m,2)}, {v(aST)} offset0:{16*m} offset1:{128+16*m}')
    acc = va.a(24, 4); csq = va.a(12, 4); fq = [va.a(12, 4), vTmp - 0]
    fq[1] = None
    fq1 = [vTmp, vTmp + 4, vW + 0]
    assert vW % 2 == 0
    FQ = lambda b, t: (fq[0] + 4 * t) if b == 0 else fq1[t]
    def qreads(n):
        q = n >> 1; pos = WQPOS[q]; st_ = 3 if pos >= SP else 0; off = pos - (SP if pos >= SP else 2 * SA) + 4096 * (n & 1)
        return [f'ds_read_b64_tr_b16 {v(FQ(n&1,t)+2*jh,2)}, {v(aQ+st_+t)} offset:{off + 512*jh}' for t in range(3) for jh in range(2)]
    groups = {0: (2, 0), 6: (6, 4), 14: (9, 8)}
    def qsync(n):
        ql, fo = groups[n]
        if OPT.get('fine'): stamp(f'q{n}a')
        a(f';@wait q{ql}'); larrive(vFL, F_WQ + fo); lwait(vFL, F_WQ + fo, f'q{n}', vD10)
        if OPT.get('fine'): stamp(f'q{n}b')
    LT = OPT.get('lt', 1)
    if LT == 2: a(ltouch)
    if LT: a(QD); QD = []
    if LT == 1: a(ltouch)
    if LT == 3: a(ltouch.split('\n')[2:4])
    if LT == 5: a(ltouch.split('\n')[0:2] + ltouch.split('\n')[4:])
    if OPT.get('holdb', 0): lwait(vFL, F_KVR, 'hb', vD10)
    qsync(0)
    a(qreads(0))
    for n in range(20):
        M = []
        for t in range(3):
            for m in range(2):
                d = v(acc + (2 * t + m) * 4, 4)
                M.append(f'{MF} {d}, {v(FQ(n&1,t),4)}, {v(XR+8*n+4*m,4)}, {d if n else 0}')
            M.append(f'{MF} {v(csq+4*t,4)}, {v(FQ(n&1,t),4)}, {v(vONE,4)}, {v(csq+4*t,4) if n else 0}')
        if n + 1 in groups:
            a(QD); QD = []
            a(M[:3]); qsync(n + 1); a(weave(M[3:], qreads(n + 1)))
        elif n < 19:
            k = OPT.get('qdper', 3); a(weave(M, qreads(n + 1) + QD[:k])); QD = QD[k:]
        else: a(M)
    larrive(vFL, F_PB)
    stamp('passB')
    va.reset(XR)
    kc = va.a(6, 2); cL, cE6L, e6v = kc, kc + 2, kc + 4
    tmp = va.a(16, 4); pk = va.a(12, 4); kvr = va.a(16, 4); fr = va.a(12, 4); Dq = va.a(32, 4); O = va.a(8, 4); tt = va.a(8, 2); cden = va.a(4, 4)
    aPA = va.a(); aSB = va.a(); vL4 = va.a(); OS = va.a(2)
    a(f"""v_mov_b32 {v(cL)}, {fhex(LOG2E)}
v_mov_b32 {v(cE6L)}, {fhex(-1e-6*LOG2E)}
v_mov_b32 {v(e6v)}, {fhex(1e-6)}
v_mov_b32 {v(cden)}, {fhex(1e-6)}
v_mov_b32 {v(cden+1)}, {fhex(1e-6)}
v_mov_b32 {v(cden+2)}, 0
v_mov_b32 {v(cden+3)}, 0
v_lshlrev_b32 {v(vL4)}, 2, {v(vL)}
s_xor_b32 {s(T0+2)}, {s(S_HP)}, {QXOR}
s_lshl_b32 {s(T0)}, {s(S_MG)}, 1
s_lshl_b32 {s(T0+1)}, {s(S_RT1)}, 3
s_add_u32 {s(T0)}, {s(T0)}, {s(T0+1)}
s_lshl_b32 {s(T0)}, {s(T0)}, 4
s_add_u32 {s(T0)}, {s(T0)}, {s(T0+2)}
s_mul_i32 {s(T0)}, {s(T0)}, 1280
s_add_u32 {s(T0)}, {s(T0)}, {OFF_O}
s_add_u32 {s(T0+1)}, {s(T0)}, {16*1280}
s_lshl_b32 {s(T0+3)}, {s(T0+2)}, 7
s_add_u32 {s(T0+3)}, {s(T0+3)}, {OFF_CA}
s_lshl_b32 {s(T0+2)}, {s(T0+2)}, 12
s_add_u32 {s(T0+2)}, {s(T0+2)}, {OFF_KV}""")
    a(mk(M_A, lambda l: (l >> 4) == 0)); a(mk(M_B, lambda l: (l >> 4) == 1))
    a(mk(M_C, lambda l: ((l >> 4) == 0 and (l & 1) == 0) or ((l >> 4) == 1 and (l & 1) == 1)))
    a(mk(M_D, lambda l: (l & 1) == 0))
    dst = {1: 0, 0: 2, 2: 4}
    for t in range(3):
        c = csq + 4 * t
        for m in range(2):
            for i in (0, 2):
                a(f'v_pk_fma_f32 {v(tmp+8*m+i,2)}, {v(stt+2*m,2)}, {v(c+i,2)}, {v(e6v,2)} op_sel:[1,0,0] op_sel_hi:[1,1,0]')
        for m in range(2):
            x = acc + (2 * t + m) * 4
            for i in (0, 2):
                a(f'v_pk_fma_f32 {v(x+i,2)}, {v(x+i,2)}, {v(stt+2*m,2)}, {v(tmp+8*m+i,2)} op_sel_hi:[1,0,1]')
        P = [phi4(acc + (2 * t + m) * 4, tmp + 8 * m + 4, cL, cE6L, e6v) for m in range(2)]
        for x, y in zip(*P): a(x); a(y)
        for m in range(2):
            x = acc + (2 * t + m) * 4; o = pk + 6 * m + dst[t]
            a(f'v_cvt_pk_bf16_f32 {v(o)}, {v(x)}, {v(x+1)}\nv_cvt_pk_bf16_f32 {v(o+1)}, {v(x+2)}, {v(x+3)}')
    stamp('qepi')
    a(f's_cmp_lg_u32 {s(S_W)}, 0\ns_cbranch_scc1 L_sA_o\n;@opt on'); a(gpoll('sA', T0+3))
    a(f'v_mov_b32 {v(tmp)}, 4\nds_write_b32 {v(vFL)}, {v(tmp)} offset:{F_GA}\ns_branch L_sA_j\nL_sA_o:')
    lwait(vFL, F_GA, 'ga', tmp)
    a('L_sA_j:')
    stamp('syncA')
    for b in (3, 2, 0, 1):
        a(f'buffer_load_dwordx4 {v(kvr+4*b,4)}, {v(vL16)}, {s(R_WS,4)}, {s(T0+2)} offen offset:{1024*b} sc1')
    M0, M1, EM, XX = kvr, kvr + 4, kvr + 8, kvr + 12
    em, xx, tx = tt, tt + 2, tt + 4; f = fr
    for i in range(2): a(f'v_cvt_pk_bf16_f32 {v(xx+i)}, {v(XX+2*i)}, {v(XX+2*i+1)}')
    for i in range(2): a(f'v_cvt_pk_bf16_f32 {v(em+i)}, {v(EM+2*i)}, {v(EM+2*i+1)}')
    for i in range(2): a(f'v_permlane32_swap_b32 {v(xx+i)}, {v(tx+i)}')
    for i in range(2): a(f'v_cndmask_b32 {v(tx+i)}, 0, {v(tx+i)}, {s(M_C,2)}')
    for i in range(2):
        a(f'v_cndmask_b32 {v(f+8+i)}, {v(tx+i)}, {v(em+i)}, {s(M_D,2)}')
        a(f'v_cndmask_b32 {v(f+10+i)}, {v(em+i)}, {v(tx+i)}, {s(M_D,2)}')
    for i in range(2):
        a(f'v_cndmask_b32 {v(f+2+i)}, 0, {v(xx+i)}, {s(M_A,2)}')
        a(f'v_cndmask_b32 {v(f+4+i)}, 0, {v(xx+i)}, {s(M_B,2)}')
    X0 = lambda m: v(pk + 6 * m, 4); X1 = lambda m: v(pk + 6 * m + 2, 4)
    for m in range(2):
        a(f'{MF} {v(Dq+16*m+8,4)}, {v(f+8,4)}, {X0(m)}, {v(cden,4)}\n{MF} {v(Dq+16*m+12,4)}, {v(f+8,4)}, {X1(m)}, {v(cden,4)}')
    for i in range(2): a(f'v_cvt_pk_bf16_f32 {v(f+i)}, {v(M0+2*i)}, {v(M0+2*i+1)}')
    for i in range(2): a(f'v_cvt_pk_bf16_f32 {v(f+6+i)}, {v(M1+2*i)}, {v(M1+2*i+1)}')
    for m in range(2):
        a(f'{MF} {v(Dq+16*m,4)}, {v(f,4)}, {X0(m)}, 0\n{MF} {v(Dq+16*m+4,4)}, {v(f+4,4)}, {X1(m)}, 0')
    for m in range(2):
        d = Dq + 16 * m
        a(f'v_rcp_f32 {v(tt+4*m)}, {v(d+8)}\nv_rcp_f32 {v(tt+4*m+1)}, {v(d+13)}')
    for m in range(2):
        d = Dq + 16 * m
        a(f'v_mul_f32 {v(tt+4*m+2)}, {v(tt+4*m)}, {v(d+10)}\nv_mul_f32 {v(tt+4*m+3)}, {v(tt+4*m+1)}, {v(d+15)}')
        a(f'v_cvt_pk_bf16_f32 {v(OS+m)}, {v(tt+4*m+2)}, {v(tt+4*m+3)}')
        a(f'buffer_store_dword {v(OS+m)}, {v(vL4)}, {s(R_WS,4)}, {s(T0+m)} offen offset:1024 sc1')
    for m in range(2):
        d = Dq + 16 * m
        for i in (0, 2): a(f'v_pk_mul_f32 {v(d+i,2)}, {v(d+i,2)}, {v(tt+4*m,2)} op_sel_hi:[1,0]')
        for i in (4, 6): a(f'v_pk_mul_f32 {v(d+i,2)}, {v(tt+4*m,2)}, {v(d+i,2)} op_sel:[1,0] op_sel_hi:[1,1]')
        for i in range(4): a(f'v_cvt_pk_bf16_f32 {v(O+4*m+i)}, {v(d+2*i)}, {v(d+2*i+1)}')
        a(f'buffer_store_dwordx4 {v(O+4*m,4)}, {v(vL16)}, {s(R_WS,4)}, {s(T0+m)} offen sc1')
    stamp('ost')
    p2_setup()
    p2_scalars()
    last_signals(vFL, F_DRB, 'B', vD10, S_RT1, OFF_CB)
    stamp('sigB')
    a('s_branch L_p1join')

    va.reset(base_mark)
    a('L_p1c:\n;@restore p1')
    stamp('start', 0)
    aX = vHR; vFL = vHR + 4
    a(f'v_mov_b32 {v(t0)}, 0\nv_mov_b32 {v(t1)}, 0\nv_mov_b32 {v(t2)}, 0\nv_mov_b32 {v(t3)}, 0\nv_mov_b32 {v(vFL)}, {FLG}\nv_mov_b32 {v(vFL+1)}, 1')
    a(f'ds_write_b128 {v(vFL)}, {v(t0,4)}\nds_write_b128 {v(vFL)}, {v(t0,4)} offset:16\nds_write_b128 {v(vFL)}, {v(t0,4)} offset:32')
    for i in range(4): a(f'v_mov_b32 {v(vONE+i)}, 0x3f803f80')
    x_addrs(aX)
    aT = va.a(10)
    w_addrs(aT, aT + 1, aT + 4, 0, RK)
    a(f"""v_xor_b32 {v(aT+2)}, 16, {v(aT)}
v_xor_b32 {v(aT+3)}, 16, {v(aT+1)}
v_xor_b32 {v(t0)}, 16, {v(aT+4)}
v_add_u32 {v(aT+2)}, {RV-RK}, {v(aT+2)}
v_add_u32 {v(aT+3)}, {RV-RK}, {v(aT+3)}
v_add_u32 {v(t0)}, {RV-RK}, {v(t0)}
v_cmp_lt_u32 vcc, 1, {v(t6)}
v_cndmask_b32 {v(aT+4)}, {v(aT+4)}, {v(t0)}, vcc""")
    for i in range(5): a(f'v_add_u32 {v(aT+5+i)}, {2*SA}, {v(aT+i)}')
    raw = va.a(32, 4); vPK = va.a(4); PKO = P_BX; PKI = P_BX + 1; S_GW = S_U1; S_PK2 = M_D
    kc = va.a(6, 2); cL, cE6L, e6v, zv = kc, kc + 2, kc + 4, kc + 5
    aST = va.a(); aW1 = va.a(); aW2 = va.a(); aRD = va.a(); aAT = va.a(); aSA = va.a(); vDW = va.a(5); aTW = va.a(3)
    def rawloads():
        for r in range(4):
            a(f'buffer_load_dwordx4 {v(raw+4*r,4)}, {v(vPK)}, {s(R_W2,4)}, {s(PKO)} offen')
            if r < 3: a(f's_add_u32 {s(PKO)}, {s(PKO)}, {s(PKI)}')
        a(f'''s_lshl_b32 {s(S_PK2)}, {s(S_MG)}, 8
s_xor_b32 {s(T0+5)}, s2, 0xe0
s_add_u32 {s(S_PK2)}, {s(S_PK2)}, {s(T0+5)}
s_add_u32 {s(T0+5)}, {s(S_PK2)}, 484
s_mul_i32 {s(PKO)}, {s(T0+5)}, {(1<<16)//27+1}
s_lshr_b32 {s(PKO)}, {s(PKO)}, 16
s_mul_i32 {s(PKO)}, {s(PKO)}, {31*3456}
s_lshl_b32 {s(T0+5)}, {s(T0+5)}, 7
s_add_u32 {s(PKO)}, {s(PKO)}, {s(T0+5)}
s_cmp_ge_u32 {s(S_PK2)}, 56
s_cselect_b32 {s(PKO)}, 0x1000000, {s(PKO)}''')
        for r in range(4):
            a(f'buffer_load_dwordx4 {v(raw+16+4*r,4)}, {v(vPK+1)}, {s(R_W1,4)}, {s(PKO)} offen')
            if r < 3: a(f's_add_u32 {s(PKO)}, {s(PKO)}, {8*3456}')
    def setupA():
        a('s_waitcnt lgkmcnt(0)')
        srd(a, R_WS, P_WS, None, WS_REC)
        a(f"""s_lshl_b32 {s(S_GW)}, s2, 2
s_add_u32 {s(S_GW)}, {s(S_GW)}, {s(S_MG)}
s_lshl_b32 {s(T0+4)}, {s(S_GW)}, 10
s_add_u32 {s(T0+5)}, {s(T0+4)}, {OFF_KV}
s_cmp_lt_u32 {s(S_GW)}, 64
s_cselect_b32 {s(T0+4)}, {s(T0+5)}, {s(T0+4)}
s_cmp_ge_u32 {s(S_GW)}, {ZBYTES//1024}
s_cselect_b32 {s(T0+4)}, {OOR}, {s(T0+4)}
v_mov_b32 {v(t0)}, 0
v_mov_b32 {v(t1)}, 0
v_mov_b32 {v(t2)}, 0
v_mov_b32 {v(t3)}, 0
buffer_store_dwordx4 {v(t0,4)}, {v(vL16)}, {s(R_WS,4)}, {s(T0+4)} offen sc1""")
        a(f'''v_lshrrev_b32 {v(t4)}, 3, {v(vL)}
v_and_b32 {v(t5)}, 7, {v(vL)}
v_lshlrev_b32 {v(t5)}, 4, {v(t5)}
s_movk_i32 {s(T0+4)}, 3456
s_movk_i32 {s(PKO)}, {(1<<16)//27+1}
s_cmp_lt_u32 {s(S_GW)}, 540
s_cselect_b32 {s(R_W2)}, {s(P_W2)}, {s(P_W1)}
s_cselect_b32 {s(R_W2+1)}, {s(P_W2+1)}, {s(P_W1+1)}
s_mov_b32 {s(R_W2+2)}, 2211840
s_mov_b32 {s(R_W2+3)}, 0x20000
s_cselect_b32 {s(T0+4)}, 1280, {s(T0+4)}
s_cselect_b32 {s(T0+5)}, 0, 540
s_cselect_b32 {s(PKO)}, {(1<<16)//10+1}, {s(PKO)}
v_mad_u32_u24 {v(vPK)}, {v(t4)}, {s(T0+4)}, {v(t5)}
s_lshl_b32 {s(PKI)}, {s(T0+4)}, 3
s_sub_u32 {s(T0+5)}, {s(S_GW)}, {s(T0+5)}
s_mul_i32 {s(PKO)}, {s(PKO)}, {s(T0+5)}
s_lshr_b32 {s(PKO)}, {s(PKO)}, 16
s_mul_i32 {s(PKO)}, {s(PKO)}, {s(T0+4)}
s_mul_i32 {s(PKO)}, {s(PKO)}, 31
s_lshl_b32 {s(T0+5)}, {s(T0+5)}, 7
s_add_u32 {s(PKO)}, {s(PKO)}, {s(T0+5)}
s_movk_i32 {s(T0+4)}, 3456
v_mad_u32_u24 {v(vPK+1)}, {v(t4)}, {s(T0+4)}, {v(t5)}''')
        assert all((j * ((1<<16)//10+1)) >> 16 == j // 10 for j in range(540)) and all((j * ((1<<16)//27+1)) >> 16 == j // 27 for j in range(540))
        srd(a, R_W1, P_W1, None, 2211840)
        srd(a, R_B1, P_B1, None, 3456)
        srd(a, R_X, P_B2, None, 1280)
        a(f'''v_lshlrev_b32 {v(t4)}, 7, {v(vL)}
s_cmp_lg_u32 {s(S_W)}, 4
s_cbranch_scc1 L_ntb
buffer_load_dword {v(vDUM)}, {v(t4)}, {s(R_B1,4)}, 0 offen
buffer_load_dword {v(vDUM)}, {v(t4)}, {s(R_X,4)}, 0 offen
L_ntb:''')
    def setupC():
        late_ids()
        a(mk(M_A, lambda l: (l & 15) >= 8)); a(mk(M_B, lambda l: (l >> 4) == 1)); a(mk(M_C, lambda l: ((l & 15) >> 2) & 1))
        a(f"""v_mov_b32 {v(cL)}, {fhex(LOG2E)}
v_mov_b32 {v(cE6L)}, {fhex(-1e-6*LOG2E)}
v_mov_b32 {v(e6v)}, {fhex(1e-6)}
v_cndmask_b32 {v(zv)}, {v(e6v)}, 0, {s(M_A,2)}
s_lshl_b32 {s(T0+4)}, {s(S_MG)}, 7
s_add_u32 {s(T0+4)}, {s(T0+4)}, {ST}
v_and_b32 {v(t0)}, 48, {v(vL)}
v_add_u32 {v(aST)}, {s(T0+4)}, {v(t0)}
s_mul_i32 {s(T0+4)}, {s(S_MG)}, 5120
s_add_u32 {s(T0+4)}, {s(T0+4)}, {KVR}
v_add_u32 {v(aW1)}, {s(T0+4)}, {v(vL16)}
v_and_b32 {v(t1)}, 3, {v(vL)}
v_bfe_u32 {v(t2)}, {v(vL)}, 2, 2
v_lshl_add_u32 {v(t1)}, {v(t1)}, 2, {v(t2)}
v_add_u32 {v(t1)}, {v(t1)}, {v(t0)}
v_lshl_add_u32 {v(aW2)}, {v(t1)}, 4, {s(T0+4)}
s_lshl_b32 {s(T0+4)}, {s(S_MG)}, 10
v_lshl_add_u32 {v(aRD)}, {v(vL)}, 2, {s(T0+4)}
s_lshl_b32 {s(T0+5)}, {s(S_HP)}, 12
s_add_u32 {s(T0+5)}, {s(T0+5)}, {OFF_KV}
v_add_u32 {v(aAT)}, {s(T0+5)}, {v(aRD)}
s_lshl_b32 {s(T0+4)}, {s(S_MG)}, 11
s_add_u32 {s(T0+4)}, {s(T0+4)}, {PKS}
v_add_u32 {v(vPK+2)}, {s(T0+4)}, {v(vL16)}
v_lshrrev_b32 {v(t0)}, 2, {v(vL)}
v_lshlrev_b32 {v(t0)}, 7, {v(t0)}
v_and_b32 {v(t1)}, 3, {v(vL)}
v_lshl_add_u32 {v(t0)}, {v(t1)}, 3, {v(t0)}
v_add_u32 {v(vPK+3)}, {s(T0+4)}, {v(t0)}
s_lshl_b32 {s(S_U0)}, {s(S_GW)}, 12
s_add_u32 {s(S_U0)}, {s(S_U0)}, {OFF_W2P}
s_lshl_b32 {s(T0+4)}, {s(S_MG)}, 6
v_add_u32 {v(t0)}, {s(T0+4)}, {v(vL)}
s_movk_i32 {s(T0+4)}, 1120""")
        for j in range(5):
            a(f'''v_mul_u32_u24 {v(t1)}, 6554, {v(t0)}
v_lshrrev_b32 {v(t1)}, 16, {v(t1)}
v_lshlrev_b32 {v(t2)}, 4, {v(t0)}
v_mad_u32_u24 {v(vDW+j)}, {v(t1)}, {s(T0+4)}, {v(t2)}
v_add_u32 {v(t0)}, 256, {v(t0)}''')
        srd(a, R_B1, P_WO, None, 819200)
        srd(a, R_X, P_W2, None, 2211840)
        srd(a, R_WQ, P_WQKV, None, 2457600)
        a(f'''s_lshl_b32 {s(T0+4)}, {s(S_RT1)}, 3
s_lshr_b32 {s(T0+5)}, {s(S_HP)}, 1
s_add_u32 {s(T0+4)}, {s(T0+4)}, {s(T0+5)}
s_mul_i32 {s(T0+5)}, {s(T0+4)}, 43
s_lshr_b32 {s(T0+5)}, {s(T0+5)}, 8
s_mul_i32 {s(T0+5)}, {s(T0+5)}, 6
s_sub_u32 {s(T0+3)}, {s(T0+4)}, {s(T0+5)}
s_and_b32 {s(T0+5)}, {s(S_HP)}, 7
s_bitcmp1_b32 0xa5, {s(T0+5)}
s_cselect_b32 {s(T0+3)}, {s(T0+3)}, 63
s_lshl_b32 {s(T0+4)}, {s(T0+4)}, 2
s_add_u32 {s(T0+4)}, {s(T0+4)}, {s(S_MG)}
s_mul_i32 {s(T0)}, {s(T0+4)}, {34*128}
s_mul_i32 {s(T0+1)}, {s(T0+4)}, {13*128}
v_min_u32 {v(aTW)}, 33, {v(vL)}
v_lshlrev_b32 {v(aTW)}, 7, {v(aTW)}
v_min_u32 {v(aTW+1)}, 12, {v(vL)}
s_mul_i32 {s(T0+5)}, {s(T0+4)}, 13
v_add_u32 {v(t0)}, {s(T0+5)}, {v(aTW+1)}
v_lshlrev_b32 {v(aTW+1)}, 7, {v(aTW+1)}
v_mul_u32_u24 {v(t1)}, 6554, {v(t0)}
v_lshrrev_b32 {v(t1)}, 16, {v(t1)}
v_lshlrev_b32 {v(t0)}, 7, {v(t0)}
s_movk_i32 {s(T0+5)}, 2560
v_mad_u32_u24 {v(aTW+2)}, {v(t1)}, {s(T0+5)}, {v(t0)}''')
        assert all((u * 43) >> 8 == u // 6 for u in range(128)) and all((u * 6554) >> 16 == u // 10 for u in range(6700))
    acc = va.a(40, 4); csa = va.a(20, 4); pkf = va.a(16, 4)
    fX = [va.a(8, 4), va.a(8, 4)]; fW = [va.a(20, 4), va.a(20, 4)]
    A_ = lambda t, m: acc + (t * 2 + m) * 4
    zsig = f"""s_cmp_ge_u32 {s(S_GW)}, {ZBYTES//1024}
s_cbranch_scc1 L_nozsig
v_mov_b32 {v(t0)}, 0
s_mov_b64 exec, 1
buffer_atomic_add {v(vFL+1)}, {v(t0)}, {s(R_DBG,4)}, 0 offen sc1
s_mov_b64 exec, -1
L_nozsig:"""
    def packjob(rw, dst):
        for hf in range(2):
            for r in range(2): a(f'ds_write_b128 {v(vPK+2)}, {v(rw+8*hf+4*r,4)} offset:{1024*r}')
            for t in range(4): a(f'ds_read_b64_tr_b16 {v(pkf+4*t+2*hf,2)}, {v(vPK+3)} offset:{32*t}')
        for t in range(4):
            a(f'buffer_store_dwordx4 {v(pkf+4*t,4)}, {v(vL16)}, {s(R_WS,4)}, {dst} offen offset:{1024*t} sc1')
    if OPT.get('sa', 0) < 0: setupA()
    if OPT.get('sc', 1) < 0: setupC()
    stamp('loopstart', i_ls)
    def reads(n):
        sl = (n // 2) % 4; j = n & 1; b = n & 1
        L = [f'ds_read_b128 {v(fX[b]+4*m,4)}, {v(aX+2*(sl>>1)+j)} offset:{(sl&1)*SA + 2048*m}' for m in range(2)]
        for t in range(5):
            for jh in range(2):
                L.append(f'ds_read_b64_tr_b16 {v(fW[b]+4*t+2*jh,2)}, {v(aT+5*(sl>>1)+t)} offset:{(sl&1)*SA + 4096*j + 512*jh}')
        return L
    def mfmas(n):
        b = n & 1; L = []
        for t in ((0, 1, 2, 3, 4) if n < 19 else (0, 4, 2, 1, 3)):
            L.append(f'{MF} {v(csa+4*t,4)}, {v(vONE,4)}, {v(fW[b]+4*t,4)}, {v(csa+4*t,4) if n else 0}')
            for m in range(2):
                d = v(A_(t, m), 4)
                L.append(f'{MF} {d}, {v(fX[b]+4*m,4)}, {v(fW[b]+4*t,4)}, {d if n else 0}')
        return L
    a('s_waitcnt lgkmcnt(0)\ns_barrier')
    if OPT.get('fine'): stamp('b0')
    a(reads(0))
    PJ = OPT.get('pjat', 6)
    for n in range(20):
        if n & 1 and n < 19:
            if OPT.get('fine'): stamp(f'b{(n+1)//2}pre')
            a('s_barrier')
            if OPT.get('fine'): stamp(f'b{(n+1)//2}')
        a('s_waitcnt lgkmcnt(0)')
        a(weave(mfmas(n), reads(n + 1) if n < 19 else []))
        if n == OPT.get('sa', 0): setupA()
        if n == OPT.get('sc', 1): setupC()
        W0_ = OPT.get('wm0', 4)
        if OPT.get('warm', 0) and W0_ <= n < W0_ + 12 and (n - W0_) % 2 == 0:
            a(f'''s_cmp_lg_u32 {s(T0+3)}, {(n-W0_)//2}
s_cbranch_scc1 L_wm{n}
buffer_load_dword {v(vDUM)}, {v(aTW+2)}, {s(R_WQ,4)}, 0 offen
buffer_load_dword {v(vDUM)}, {v(aTW+1)}, {s(R_B1,4)}, {s(T0+1)} offen
buffer_load_dword {v(vDUM)}, {v(aTW)}, {s(R_W1,4)}, {s(T0)} offen
buffer_load_dword {v(vDUM)}, {v(aTW)}, {s(R_X,4)}, {s(T0)} offen
L_wm{n}:''')
        if n == OPT.get('zs', 3):
            a('s_waitcnt vmcnt(0)')
            a(zsig)
    stamp('p1loop', i_le)
    a('s_setprio 1\ns_barrier')
    if OPT.get('fine'): stamp('B2')
    RAW = OPT.get('raw', 3)
    def cold():
        rawloads()
    stt = pkf; tmp = va.a(16, 4); op = fW[0] - 16; D = fW[0] + 8
    assert op == fX[0] and fW[1] == fW[0] + 20
    for m in range(2):
        a(f'ds_read_b128 {v(stt+8*m+4,4)}, {v(aST)} offset:{512+64*m}')
        a(f'ds_read_b128 {v(stt+8*m,4)}, {v(aST)} offset:{64*m}')
    if RAW == 1: cold()
    KA, KB, VA_, VB, KVC, KVCp = [v(op + 4 * i, 4) for i in range(6)]
    prods = [(KA, VA_), (KB, VB), (KVC, VA_), (KVC, VB), (KA, KVCp), (KB, KVCp), (KVC, KVCp)]
    PM = lambda i: f'{MF} {v(D+4*i,4)}, {prods[i][0]}, {prods[i][1]}, 0'
    for t in (0, 4, 2, 1, 3):
        cp = v(csa + 4 * t, 2)
        PKE = OPT.get('pke', 0)
        for m in range(2):
            tt_ = tmp + 8 * m
            if PKE:
                for i in (0, 2):
                    if t in (2, 3):
                        a(f'v_pk_mul_f32 {v(tt_+i,2)}, {cp}, {v(stt+8*m+4+i,2)}')
                    else:
                        zs = 1 if t == 4 else 0
                        a(f'v_pk_fma_f32 {v(tt_+i,2)}, {cp}, {v(stt+8*m+4+i,2)}, {v(e6v,2)} op_sel:[0,0,{zs}] op_sel_hi:[1,1,{zs}]')
            else:
                for i in range(4):
                    if t in (2, 3): a(f'v_mul_f32 {v(tt_+i)}, {v(csa+4*t)}, {v(stt+8*m+4+i)}')
                    else: a(f'v_fma_f32 {v(tt_+i)}, {v(csa+4*t)}, {v(stt+8*m+4+i)}, {v(zv if t == 4 else e6v)}')
        if t == 2: a(PM(4)); a(PM(6))
        if t == 1: a(PM(0)); a(PM(2))
        if t == 3: a(PM(5))
        for m in range(2):
            x = A_(t, m); tt_ = tmp + 8 * m
            if PKE:
                for i in (0, 2): a(f'v_pk_fma_f32 {v(x+i,2)}, {v(x+i,2)}, {v(stt+8*m+i,2)}, {v(tt_+i,2)}')
            else:
                for i in range(4): a(f'v_fma_f32 {v(x+i)}, {v(x+i)}, {v(stt+8*m+i)}, {v(tt_+i)}')
        if t == 4:
            for m in range(2):
                x = A_(t, m)
                a(f'v_cvt_pk_bf16_f32 {v(op+20+2*m)}, {v(x)}, {v(x+1)}\nv_cvt_pk_bf16_f32 {v(op+20+2*m+1)}, {v(x+2)}, {v(x+3)}')
        if t in (0, 1, 4):
            P = [phi4(A_(t, m), tmp + 8 * m + 4, cL, cE6L, e6v, PKE) for m in range(2)]
            for x, y in zip(*P): a(x); a(y)
        if t == 1: a(f'ds_write_b128 {v(aW1)}, {v(D,4)}')
        for m in range(2):
            x = A_(t, m)
            a(f'v_cvt_pk_bf16_f32 {v(op+4*t+2*m)}, {v(x)}, {v(x+1)}\nv_cvt_pk_bf16_f32 {v(op+4*t+2*m+1)}, {v(x+2)}, {v(x+3)}')
        if t == 4:
            for i in range(4): a(f'v_cndmask_b32 {v(op+20+i)}, {v(vONE)}, {v(op+20+i)}, {s(M_A,2)}')
    a(PM(3)); a(PM(1))
    for r in range(4): a(f'v_cndmask_b32 {v(D+16+r)}, {v(D+16+r)}, {v(D+20+r)}, {s(M_C,2)}')
    a(f'ds_write_b128 {v(aW2)}, {v(D+16,4)} offset:2048')
    for r in range(4): a(f'v_cndmask_b32 {v(D+8+r)}, {v(D+8+r)}, {v(D+12+r)}, {s(M_B,2)}')
    a(f"""ds_write_b128 {v(aW1)}, {v(D+8,4)} offset:3072
ds_write_b128 {v(aW2)}, {v(D+24,4)} offset:3584
ds_write_b128 {v(aW1)}, {v(D+4,4)} offset:1024""")
    if OPT.get('fine'): stamp('kvepi')
    larrive(vFL, F_KVR); lwait(vFL, F_KVR, 'kvr', vD10)
    if OPT.get('fine'): stamp('kvr')
    rd = acc
    for p in range(4):
        for hh in range(2): a(f'ds_read2st64_b32 {v(rd+4*p+2*hh,2)}, {v(aRD)} offset0:{p*20+2*hh} offset1:{p*20+2*hh+1}')
    for hh in (0, 2):
        a(f'v_pk_add_f32 {v(rd+hh,2)}, {v(rd+hh,2)}, {v(rd+4+hh,2)}\nv_pk_add_f32 {v(rd+8+hh,2)}, {v(rd+8+hh,2)}, {v(rd+12+hh,2)}')
    for hh in (0, 2):
        a(f'v_pk_add_f32 {v(rd+hh,2)}, {v(rd+hh,2)}, {v(rd+8+hh,2)}')
        for k in range(2): a(f'buffer_atomic_add_f32 {v(rd+hh+k)}, {v(aAT)}, {s(R_WS,4)}, 0 offen offset:{(hh+k)*256}')
    stamp('atomics')
    if RAW == 2: cold()
    a(f'''s_lshl_b32 {s(T0+6)}, {s(S_MG)}, 10
s_mul_i32 {s(T0+4)}, {s(S_MG)}, 20480
s_sub_u32 {s(T0+4)}, {s(S_RB)}, {s(T0+4)}
s_mul_i32 {s(T0+5)}, {s(S_CT)}, 160
s_sub_u32 {s(T0+5)}, {64*1280}, {s(T0+5)}''')
    srd(a, R_X, P_X, s(T0+4), s(T0+5))
    last_signals(vFL, F_DRA, 'A', vD10, S_HP, OFF_CA, ';@wait at')
    a('s_setprio 0')
    stamp('sigA')
    if RAW == 3: cold()
    THR = OPT.get('thr', 6)
    def wodma(H, ns, thr=THR):
        for n in ns:
            a(f's_add_u32 m0, {s(T0+6)}, {WO + (1-H)*51200 + n*4096}\ns_mov_b32 {s(T0+4)}, {H*320*1280 + (n//5)*128*1280}\n;@tag h{H}\n'
              f'buffer_load_dwordx4 {v(vDW + n%5)}, {s(R_WO,4)}, {s(T0+4)} offen lds')
            if thr is not None: a(f's_waitcnt vmcnt({thr})')
    wodma(1, [12] + list(range(5, 12)))
    larrive(vFL, F_PK)
    lwait(vFL, F_DRA, 'dra', vD10)
    wodma(1, range(5))
    lwait(vFL, F_PK, 'z12', vD10)
    lwait(vFL, F_PB, 'pb', vD10)
    wodma(0, range(13))
    larrive(vFL, F_H1)
    for n in range(3): a(f's_add_u32 m0, {s(T0+6)}, {XRL + n*4096}\ns_nop 0\nbuffer_load_dwordx4 {v(vDW+n)}, {s(R_X,4)}, 0 offen lds')
    packjob(raw, s(S_U0))
    a(f's_cmp_ge_u32 {s(S_PK2)}, 56\ns_cbranch_scc1 L_pk2b\ns_lshl_b32 {s(T0+4)}, {s(S_PK2)}, 12\ns_add_u32 {s(T0+4)}, {s(T0+4)}, {OFF_W2P + 1024*4096}')
    packjob(raw + 16, s(T0+4))
    a(';@opt off\nL_pk2b:')
    if OPT.get('fine'): stamp('packed')
    assert THR <= 7
    lwait(vFL, F_H1, 'h1', vD10)
    p2_setup()
    a(preread())
    p2_scalars()

    va.reset(xr_mark)
    a('L_p1join:\n;@clearv\n;@clearl')

    def wave_block(tag, cmp, body, other=None):
        a(f'{cmp}\ns_cbranch_scc1 L_{tag}_e\n;@opt on')
        a(body)
        if other is not None:
            a(f's_branch L_{tag}_j\nL_{tag}_e:'); a(other); a(f';@opt off\nL_{tag}_j:')
        else:
            a(f';@opt off\nL_{tag}_e:')
    def signal(tag, idx, base):
        wave_block(tag + 'sig', f's_cmp_lg_u32 {s(S_W)}, 7', [caddr(S_LB+1, idx, base), ssig(S_LB+1)])
    def poll(tag, idx, base):
        wave_block(tag + 'pol', f's_cmp_lg_u32 {s(S_W)}, 7', [caddr(T0+4, idx, base), gpoll(tag, T0+4)])
        a('s_waitcnt lgkmcnt(0)\ns_barrier')

    if stop_after < 2:
        a('s_waitcnt vmcnt(0)\ns_barrier')
    if stop_after >= 2:
        O = O2; OS = OS2; vL4 = vL4b
        a('s_waitcnt vmcnt(0)\ns_barrier')
        stamp('wolanded')
        wave_block('pks', f's_cmp_lg_u32 {s(S_W)}, 6', [caddr(T0+4, S_RT1, OFF_CP), f'''s_waitcnt lgkmcnt(0)
s_mov_b32 {s(S_LB)}, 1
s_atomic_add {s(S_LB)}, {s(P_WS,2)}, {s(T0+4)} glc
s_waitcnt lgkmcnt(0)
s_cmp_lg_u32 {s(S_LB)}, 15
s_cbranch_scc1 L_pks_e'''] + [f's_atomic_add s3, {s(P_WS,2)}, {OFF_CP + 2048 + 128*r}' for r in range(8)])
        a(f'ds_read_b64 {v(vXR,2)}, {v(axr_)}\nds_read_b64 {v(vXR+2,2)}, {v(axr_)} offset:32\nds_read_b64 {v(vXR+4,2)}, {v(axr_+1)}')
        wave_block('lpre', f's_cmp_ge_u32 {s(S_W)}, 4', preread())
        own = [acc2, acc2 + 4, acc2 + 16]
        for i in range(6):
            o = own[i // 2] + 2 * (i & 1)
            a(f'v_lshlrev_b32 {v(o)}, 16, {v(vXR+i)}\nv_and_b32 {v(o+1)}, 0xffff0000, {v(vXR+i)}')
        for i in range(4): a(f'v_mul_f32 {v(acc2+16+i)}, {s(E5)}, {v(acc2+16+i)}')
        poll('sB', S_GRP, OFF_CB)
        stamp('syncB')
        for j in range(8):
            o = (j % 3) * 1280
            a(f'buffer_load_dwordx4 {v(O+4*j,4)}, {v(vL16)}, {s(R_WS,4)}, {s(T0+2)} offen offset:{o} sc1')
            a(f'buffer_load_dword {v(OS+j)}, {v(vL4)}, {s(R_WS,4)}, {s(T0+2)} offen offset:{o+1024} sc1')
            if j % 3 == 2: a(f's_add_u32 {s(T0+2)}, {s(T0+2)}, 3840')
        a(stamp_txt('oiss', 'fine2'))
        W1POS = [106496 + 7168 * i for i in range(8)] + [7168 * i for i in range(5)] + [51200 + 7168 * i for i in range(5)] + [XC0, XC0 + 51200]
        def w1dma(kss, group=False):
            L = [f's_add_u32 m0, {s(S_MD)}, {W1POS[ks]}\ns_add_u32 {s(T0+4)}, {s(S_W1)}, {ks*110592}\n;@tag w1_{ks}\n'
                 f'buffer_load_dwordx4 {v(vL16)}, {s(R_WS,4)}, {s(T0+4)} offen sc1 lds' for ks in kss]
            if group: return L
            return [f's_cbranch_vccz L_w1s{ks}\n{x}\nL_w1s{ks}:' for ks, x in zip(kss, L)]
        a(stamp_txt('scal', 'fine2'))
        NA = OPT.get('nw1a', 9)
        steps = [('m', 0), ('m', 1), ('m', 2), ('m', 3), ('s', 0), ('m', 4), ('m', 5), ('m', 6), ('m', 7), ('s', 1)]
        WD = w1dma(range(NA)) if stop_after >= 3 else []
        W0 = 7
        for n, (kind, j) in enumerate(steps):
            X = v(O + 4 * j, 4) if kind == 'm' else v(OS + 4 * j, 4)
            order = range(5) if n < 9 else (2, 3, 4, 0, 1)
            M = [f'{MF} {v(acc2+4*t,4)}, {v(WB_(kind,j)+4*t,4)}, {X}, {v(acc2+4*t,4) if (n or t in (0, 1, 4)) else 0}' for t in order]
            F = wread('m', 5 + n) if n in (1, 2) else []
            if n >= W0:
                k = OPT.get('wdk', 2); F = F + WD[:k]; WD = WD[k:]
            if n == 7 and W0 == 7:
                wave_block('sPpol', f's_cmp_lg_u32 {s(S_W)}, 0', [f's_and_b32 {s(T0+5)}, s2, 7', caddr(T0+4, T0+5, OFF_CP + 2048), gpoll('sP', T0+4)])
            if n == W0: a(f's_cmp_lg_u32 {s(S_W)}, 7\ns_cselect_b64 vcc, -1, 0\ns_waitcnt vmcnt(0)')
            if n == 7: a('s_waitcnt lgkmcnt(0)\ns_barrier')
            a(stamp_txt(f'n{n}', 'fine2'))
            a(spread(M, F))
        stamp('p2mm')
        rcv = WP[0]; xf = WP[1]
        for i in range(3): a(f'ds_write_b128 {v(axw)}, {v(acc2+8+4*i,4)} offset:{1024*i}')
        a(WD)
        a('s_waitcnt lgkmcnt(0)\ns_barrier')
        for i in range(3): a(f'ds_read_b128 {v(rcv+4*i,4)}, {v(axr)} offset:{1024*i}')
        for i in range(3):
            for hh in (0, 2):
                a(f'v_pk_add_f32 {v(own[i]+hh,2)}, {v(own[i]+hh,2)}, {v(rcv+4*i+hh,2)}')
            for hh in range(2):
                a(f'v_cvt_pk_bf16_f32 {v(vHR+2*i+hh)}, {v(own[i]+2*hh)}, {v(own[i]+2*hh+1)}')
            if i == 1: a(f'buffer_store_dwordx4 {v(vHR,4)}, {v(vL16)}, {s(R_WS,4)}, {s(E0)} offen sc1')
        a(f'buffer_store_dwordx2 {v(vHR+4,2)}, {v(vL8)}, {s(R_WS,4)}, {s(E1)} offen sc1')
        for i in range(6):
            a(f'v_lshlrev_b32 {v(xf+2*i)}, 16, {v(vHR+i)}\nv_and_b32 {v(xf+2*i+1)}, 0xffff0000, {v(vHR+i)}')
        sm = rcv; sq = rcv + 2; p = rcv + 4; q = rcv + 6
        a(f'v_pk_add_f32 {v(sm,2)}, {v(xf+8,2)}, {v(xf+10,2)}\nv_pk_mul_f32 {v(sq,2)}, {v(xf+8,2)}, {v(xf+8,2)}')
        a(f'v_pk_fma_f32 {v(sq,2)}, {v(xf+10,2)}, {v(xf+10,2)}, {v(sq,2)}')
        for i in range(4): a(f'v_mul_f32 {v(sm+i)}, {s(E5)}, {v(sm+i)}')
        for i in (0, 2, 4, 6):
            a(f'v_pk_add_f32 {v(sm,2)}, {v(sm,2)}, {v(xf+i,2)}\nv_pk_fma_f32 {v(sq,2)}, {v(xf+i,2)}, {v(xf+i,2)}, {v(sq,2)}')
        def xg_reduce(p, q):
            return f'''v_mov_b32 {v(q)}, {v(p)}
v_mov_b32 {v(q+1)}, {v(p+1)}
v_permlane32_swap_b32 {v(p)}, {v(q)}
v_permlane32_swap_b32 {v(p+1)}, {v(q+1)}
v_pk_add_f32 {v(p,2)}, {v(p,2)}, {v(q,2)}
v_mov_b32 {v(q)}, {v(p)}
v_mov_b32 {v(q+1)}, {v(p+1)}
v_permlane16_swap_b32 {v(p)}, {v(q)}
v_permlane16_swap_b32 {v(p+1)}, {v(q+1)}
v_pk_add_f32 {v(p,2)}, {v(p,2)}, {v(q,2)}'''
        a(f'v_add_f32 {v(p)}, {v(sm)}, {v(sm+1)}\nv_add_f32 {v(p+1)}, {v(sq)}, {v(sq+1)}')
        a(xg_reduce(p, q))
        a(f's_mov_b64 exec, 0xffff\nbuffer_store_dwordx2 {v(p,2)}, {v(vL8)}, {s(R_WS,4)}, {s(E2)} offen sc1\ns_mov_b64 exec, -1')
        stamp('p2st')

    if stop_after >= 3:
        va.reset(base_mark)
        W = va.a(160, 4); cs3 = va.a(8, 4); bt = va.a(8, 4); acc3 = [va.a(8, 4), va.a(8, 4)]
        fX = [va.a(4, 4) for _ in range(4)]; u = va.a(8, 4); gp = va.a(4, 4); rr = va.a(8, 2); kk = va.a(2)
        aP = fX[0]; aXl = vONE
        a(f'''v_lshrrev_b32 {v(t0)}, 4, {v(vL)}
v_lshlrev_b32 {v(t0)}, 3, {v(t0)}
buffer_load_dwordx2 {v(u,2)}, {v(t0)}, {s(R_B1,4)}, {s(S_C3)} offen
buffer_load_dwordx2 {v(u+2,2)}, {v(t0)}, {s(R_B1,4)}, {s(S_C3)} offen offset:32''')
        def w1pre(kss):
            R = []; M = []
            for ks in kss:
                pos = W1POS[ks]
                wi, base = (2, 106496) if pos >= 106496 else ((1, 56000) if pos >= 56000 else (0, 0))
                for t in range(2):
                    R.append(f'ds_read_b128 {v(W+8*ks+4*t,4)}, {v(aP+wi)} offset:{pos-base+1024*t}')
                    M.append(f'{MF} {v(cs3+4*t,4)}, {v(W+8*ks+4*t,4)}, {v(vONE,4)}, {v(cs3+4*t,4) if ks else 0}')
            a(R[:6]); k = 6
            for m in M:
                a(m); a(R[k:k+1]); k += 1
        NB = min(18, NA + OPT.get('nw1b', 5)); NPA = min(NA, OPT.get('npa', 10))
        a(f'v_add_u32 {v(aP)}, {s(S_P0)}, {v(vL16)}\nv_add_u32 {v(aP+1)}, 56000, {v(aP)}\nv_add_u32 {v(aP+2)}, 106496, {v(aP)}')
        a(';@opt on\ns_waitcnt vmcnt(5)\ns_barrier')
        wave_block('w1b', f's_cmp_eq_u32 {s(S_W)}, 7', w1dma(range(NA, NB), True))
        w1pre(range(NPA))
        wave_block('w1d', f's_cmp_eq_u32 {s(S_W)}, 7', [f's_waitcnt vmcnt({NB-NA})'], ['s_waitcnt vmcnt(0)'])
        a('s_barrier\n;@clearv')
        stamp('drained2')
        signal('s2', S_GRP, OFF_C2)
        wave_block('w1c', f's_cmp_eq_u32 {s(S_W)}, 7', w1dma(range(NB, 20), True))
        w1pre(range(NPA, NA))
        NC = (NB + 20) // 2
        a(f';@opt on\ns_waitcnt vmcnt({20-NC})\ns_barrier')
        w1pre(range(NA, NC))
        a('s_waitcnt vmcnt(0)\ns_barrier')
        wave_block('s2e', f's_cmp_lg_u32 {s(S_W)}, 7', [caddr(T0+4, S_RT1, OFF_C2), f's_mov_b32 {s(S_LB)}, 0\ns_atomic_add {s(S_LB)}, {s(P_WS,2)}, {s(T0+4)} glc'])
        w1pre(range(NC, 20))
        c0 = math.sqrt(2 / math.pi); K1 = -2 * LOG2E * c0; K2 = K1 * 0.044715
        a(f'v_mov_b32 {v(kk)}, {fhex(K2)}\nv_mov_b32 {v(kk+1)}, {fhex(K1)}')
        for i in range(4):
            a(f'v_lshlrev_b32 {v(bt+2*i)}, 16, {v(u+i)}\nv_and_b32 {v(bt+2*i+1)}, 0xffff0000, {v(u+i)}')
        XS = [0, SLOT, 0, SLOT]
        SL4 = {0: 2 * SLOT, 1: 3 * SLOT, 2: 0, 3: SLOT, 4: 2 * SLOT, 5: 3 * SLOT, 6: 0}
        a(f'''s_mul_i32 {s(T0+6)}, {s(S_KH)}, 20480
v_add_u32 {v(aXl)}, {s(T0+6)}, {v(vL16)}
v_add_u32 {v(aXl+1)}, {SLOT}, {v(aXl)}
v_add_u32 {v(vD10)}, 3072, {v(vL16)}
v_lshlrev_b32 {v(aXl+3)}, 3, {v(vL)}
v_add_u32 {v(aXl+2)}, {s(T0+6)}, {v(aXl+3)}
v_and_b32 {v(t0)}, 15, {v(vL)}
v_lshl_add_u32 {v(t5)}, {v(t0)}, 3, {s(S_R0)}
v_lshl_add_u32 {v(t6)}, {v(t0)}, 3, {s(S_R1)}
s_mov_b32 {s(E1)}, {fhex(1/640)}
s_mov_b32 {s(E2)}, {fhex(1e-5)}''')
        stamp('w1pre')
        wave_block('s2pol', f's_cmp_lg_u32 {s(S_W)}, 7', [f's_waitcnt lgkmcnt(0)\ns_cmp_ge_u32 {s(S_LB)}, 16\ns_cbranch_scc1 L_s2pol_e', gpoll('s2', T0+4)])
        a('s_waitcnt lgkmcnt(0)\ns_barrier')
        stamp('sync2')
        def xdma(j, rounds=range(5)):
            return [f's_add_u32 m0, {s(S_MXl)}, {XS[j] + r*4096}\ns_add_u32 {s(T0+4)}, {s(S_HX)}, {j*20480 + r*4096}\n;@tag x{j}_{r}\n'
                    f'buffer_load_dwordx4 {v(vL16)}, {s(R_WS,4)}, {s(T0+4)} offen sc1 lds' for r in rounds]
        def w2dma(c):
            skip = f's_cmp_ge_u32 {s(S_W)}, 6\ns_cselect_b32 {s(E5)}, {OOR}, {s(E5)}\n' if c == 6 else ''
            L = [f's_add_u32 m0, {s(E7)}, {SL4[c]}\ns_add_u32 {s(E5)}, {s(S_W2)}, {c*8*40960}\n{skip}'
                 f'buffer_load_dwordx4 {v(vL16)}, {s(R_WS,4)}, {s(E5)} offen sc1 lds']
            L += [f's_add_u32 m0, {s(E7)}, {SL4[c]}\ns_nop 0\nbuffer_load_dwordx4 {v(vL16)}, {s(R_WS,4)}, {s(E5)} offen offset:{1024*t} sc1 lds' for t in (1, 2, 3)]
            L.append(f's_add_u32 m0, {s(E7)}, {SL4[c] + 3072}\ns_nop 0\n;@tag sc{c}\nbuffer_load_dwordx4 {v(vD10)}, {s(R_WS,4)}, {s(E5)} offen offset:1024 sc1 lds')
            return L
        hs = acc3[1]
        a(xdma(0, [0, 1]))
        for i in range(4):
            a(f'buffer_load_dwordx2 {v(hs+2*i,2)}, {v(aXl+3)}, {s(R_WS,4)}, {s(S_HS)} offen offset:{512*i} sc1')
        a(xdma(0, [2, 3, 4]))
        a(';@wait x0_0\ns_barrier')
        a(stamp_txt('x0'))
        p = hs; q = hs + 2
        stats = (f'''v_pk_add_f32 {v(hs,2)}, {v(hs,2)}, {v(hs+2,2)}
v_pk_add_f32 {v(hs+4,2)}, {v(hs+4,2)}, {v(hs+6,2)}
v_pk_add_f32 {v(p,2)}, {v(hs,2)}, {v(hs+4,2)}
''' + xg_reduce(p, q) + f'''
v_mul_f32 {v(p)}, {s(E1)}, {v(p)}
v_mul_f32 {v(p+1)}, {s(E1)}, {v(p+1)}
v_fma_f32 {v(p+1)}, -{v(p)}, {v(p)}, {v(p+1)}
v_max_f32 {v(p+1)}, 0, {v(p+1)}
v_add_f32 {v(q)}, {s(E2)}, {v(p+1)}
v_rsq_f32 {v(q)}, {v(q)}
v_mul_f32 {v(q+1)}, {v(q)}, {v(q)}
v_fma_f32 {v(q+1)}, {v(q+1)}, {v(p+1)}, {s(E2)}
v_rsq_f32 {v(q+1)}, {v(q+1)}
v_mul_f32 {v(hs+4)}, {v(q)}, {v(q+1)}
v_mul_f32 {v(hs+5)}, -{v(p)}, {v(hs+4)}
;@tag rrw
ds_write_b64 {v(t5)}, {v(hs+4,2)}''').split('\n')
        stats = stats[:-2] + [stats[-2] + '\n' + stats[-1]]
        def xread(n):
            j, ks = divmod(n, 20)
            if ks % 5 == 2:
                o = (XS[j] + ks * 1024) // 512
                return f'ds_read2st64_b64 {v(fX[n&3],4)}, {v(aXl+2)} offset0:{o} offset1:{o+1}'
            return f'ds_read_b128 {v(fX[n&3],4)}, {v(aXl + XS[j]//SLOT)} offset:{ks*1024}'
        def epi(j, packed):
            x = acc3[j & 1]; r0 = rr + 2 * j; L = []
            if packed:
                r = v(r0, 2); P4 = (0, 2, 4, 6)
                L += [f'v_pk_fma_f32 {v(u+i,2)}, {r}, {v(cs3+i,2)}, {v(bt+i,2)} op_sel:[1,0,0] op_sel_hi:[1,1,1]' for i in P4]
                L += [f'v_pk_fma_f32 {v(x+i,2)}, {v(x+i,2)}, {r}, {v(u+i,2)} op_sel_hi:[1,0,1]' for i in P4]
                L += [f'v_pk_mul_f32 {v(u+i,2)}, {v(x+i,2)}, {v(x+i,2)}' for i in P4]
                L += [f'v_pk_fma_f32 {v(u+i,2)}, {v(u+i,2)}, {v(kk,2)}, {v(kk,2)} op_sel:[0,0,1] op_sel_hi:[1,0,1]' for i in P4]
                L += [f'v_pk_mul_f32 {v(u+i,2)}, {v(u+i,2)}, {v(x+i,2)}' for i in P4]
                L += [f'v_exp_f32 {v(u+i)}, {v(u+i)}' for i in range(8)]
                L += [f'v_pk_add_f32 {v(u+i,2)}, {v(u+i,2)}, 1.0 op_sel_hi:[1,0]' for i in P4]
                L += [f'v_rcp_f32 {v(u+i)}, {v(u+i)}' for i in range(8)]
                L += [f'v_pk_mul_f32 {v(x+i,2)}, {v(x+i,2)}, {v(u+i,2)}' for i in P4]
            else:
                R8 = range(8)
                L += [f'v_fma_f32 {v(u+i)}, {v(cs3+i)}, {v(r0+1)}, {v(bt+i)}' for i in R8]
                L += [f'v_fma_f32 {v(x+i)}, {v(x+i)}, {v(r0)}, {v(u+i)}' for i in R8]
                L += [f'v_mul_f32 {v(u+i)}, {v(x+i)}, {v(x+i)}' for i in R8]
                L += [f'v_fma_f32 {v(u+i)}, {v(u+i)}, {v(kk)}, {v(kk+1)}' for i in R8]
                L += [f'v_mul_f32 {v(u+i)}, {v(u+i)}, {v(x+i)}' for i in R8]
                L += [f'v_exp_f32 {v(u+i)}, {v(u+i)}' for i in R8]
                L += [f'v_add_f32 {v(u+i)}, 1.0, {v(u+i)}' for i in R8]
                L += [f'v_rcp_f32 {v(u+i)}, {v(u+i)}' for i in R8]
                L += [f'v_mul_f32 {v(x+i)}, {v(x+i)}, {v(u+i)}' for i in R8]
            L += [f'v_cvt_pk_bf16_f32 {v(gp+i)}, {v(x+2*i)}, {v(x+2*i+1)}' for i in range(4)]
            L.append(f'''s_cmp_eq_u32 {s(S_MG)}, 3
s_cbranch_scc1 L_g{j}s
buffer_store_dwordx4 {v(gp,4)}, {v(vL16)}, {s(R_WS,4)}, {s(S_GP)} offen sc1
s_branch L_g{j}b
L_g{j}s:
buffer_store_dwordx2 {v(gp,2)}, {v(aXl+3)}, {s(R_WS,4)}, {s(S_GP)} offen sc1
L_g{j}b:
s_add_u32 {s(S_GP)}, {s(S_GP)}, {54*1024}''')
            return L
        if OPT.get('prio3', 1): a(f's_cmp_lt_u32 {s(S_W)}, 4\ns_cbranch_scc1 L_pr3\ns_setprio 1\nL_pr3:')
        for n in range(3): a(xread(n))
        for j in range(4):
            M = []
            for ks in range(20):
                n = 20 * j + ks
                pre = ''
                nx = n + 3
                if nx < 80:
                    jx, kx = divmod(nx, 20)
                    if jx == 0 and kx in (4, 8): pre = stamp_txt(f'x0_{kx}a') + f';@wait x0_{1 if kx == 4 else 4}\ns_barrier\n' + stamp_txt(f'x0_{kx}b')
                    if jx > 0 and kx == 0: pre = stamp_txt(f'x{jx}a') + f';@wait x{jx}_4\n;@lwait rrw\ns_barrier\n' + stamp_txt(f'x{jx}b')
                    if jx == 1 and kx == 0: pre += '\n'.join(f'ds_read_b64 {v(rr+2*i,2)}, {v(t6)} offset:{128*i}' for i in range(4)) + '\n'
                for t in range(2):
                    d = v(acc3[j & 1] + 4 * t, 4)
                    ins = f'{MF} {d}, {v(W+8*ks+4*t,4)}, {v(fX[n&3],4)}, {d if ks else 0}'
                    if t == 1 and nx < 80: ins += '\n' + pre + xread(nx)
                    M.append(ins)
            W4 = stop_after >= 4
            TW = []
            if j == 0:
                M = spread(M, xdma(1) + TW, start=2, end=14)
                a(spread(M, stats, start=10, end=36))
            else:
                M[3] += '\ns_barrier'
                D_ = (xdma(j + 1) if j < 3 else []) + TW + (w2dma(j - 1) if W4 else [])
                M = spread(M, D_, start=4, end=OPT.get('d3end', 26) if j < 3 else 14)
                a(spread(M, epi(j - 1, OPT.get('pk3', 0)) if not OPT.get('noepi') else [], start=4, end=len(M) - OPT.get('e3end', 2)))
        stamp('p3mm')
        a(epi(3, 1))
        stamp('p3st')

    if stop_after >= 4:
        va.reset(base_mark)
        b2r = va.a(6, 2); aW = va.a(12); axw = va.a(); axr = va.a(); vL8 = aXl + 3
        NX = OPT.get('nx', 12)
        acc4 = va.a(20, 4); X4 = va.a(4 * NX, 4); WB = [va.a(20, 4) for _ in range(6)]
        a(f"""v_lshrrev_b32 {v(t0)}, 4, {v(vL)}
v_lshlrev_b32 {v(t0)}, 3, {v(t0)}
buffer_load_dwordx2 {v(b2r,2)}, {v(t0)}, {s(R_B2,4)}, {s(S_CM)} offen
buffer_load_dwordx2 {v(b2r+2,2)}, {v(t0)}, {s(R_B2,4)}, {s(S_CM)} offen offset:32
buffer_load_dwordx2 {v(b2r+4,2)}, {v(t0)}, {s(R_B2,4)}, {s(S_CS)} offen
s_mul_i32 {s(T0+6)}, {s(S_KH)}, 5120""")
        for i, sc in enumerate((S_CM, S_CO, S_CS)):
            a(f's_lshl_b32 {s(T0+7)}, {s(sc)}, 5\ns_add_u32 {s(T0+7)}, {s(T0+7)}, {s(T0+6)}\nv_add_u32 {v(aW+i)}, {s(T0+7)}, {v(vL16)}')
            for sl in (2, 1, 3): a(f'v_add_u32 {v(aW+3*sl+i)}, {sl*SLOT}, {v(aW+i)}')
        tl = [(0, 0), (0, 1024), (1, 0), (1, 1024), (2, 0)]
        wbuf = lambda i: WB[i] if i < 4 else WB[4 + (i & 1)]
        def w2read(i):
            c = i // 4; off = (i % 4) * 10240
            return [f'ds_read_b128 {v(wbuf(i)+4*t,4)}, {v(aW+3*(SL4[c]//SLOT)+ai)} offset:{off+ci}' for t, (ai, ci) in enumerate(tl)]
        for i in range(4): a(w2read(i))
        S_GX = T0
        XCH4 = SLOT
        a(f"""s_mul_i32 {s(S_GX)}, {s(S_STILE)}, 54
s_add_u32 {s(S_GX)}, {s(S_GX)}, {s(S_KH)}
s_lshl_b32 {s(S_GX)}, {s(S_GX)}, 10
s_add_u32 {s(S_GX)}, {s(S_GX)}, {OFF_G}
s_mul_i32 {s(T0+6)}, {s(S_W)}, 3072
v_add_u32 {v(axw)}, {s(T0+6)}, {v(vL16)}
s_xor_b32 {s(T0+6)}, {s(S_W)}, 4
s_mul_i32 {s(T0+6)}, {s(T0+6)}, 3072
v_add_u32 {v(axr)}, {s(T0+6)}, {v(vL16)}
s_add_u32 {s(T0+1)}, {s(S_RB)}, {s(S_CM)}
s_add_u32 {s(T0+2)}, {s(S_RB)}, {s(S_CS)}
s_cmp_lg_u32 {s(S_KH)}, 0
s_cselect_b32 {s(T0+2)}, 0x4000000, {s(T0+2)}
s_cselect_b32 {s(T0+3)}, 0, 1.0
s_cselect_b64 vcc, -1, 0
{caddr(S_LB+1, S_RT1, OFF_C3)}
{caddr(T0+5, S_GRP, OFF_C3)}
s_waitcnt lgkmcnt(0)
s_barrier""")
        stamp('drained3')
        wave_block('s3sig', f's_cmp_lg_u32 {s(S_W)}, 7', [ssig(S_LB+1)])
        a(w2read(4))
        a(w2dma(3))
        if OPT.get('sc4early', 1): a(w2dma(4))
        own = [acc4, acc4 + 4, acc4 + 16]; bf = X4
        for i in range(6):
            o = own[i // 2] + 2 * (i & 1)
            a(f'v_lshlrev_b32 {v(o)}, 16, {v(vHR+i)}\nv_and_b32 {v(o+1)}, 0xffff0000, {v(vHR+i)}')
            a(f'v_lshlrev_b32 {v(bf)}, 16, {v(b2r+i)}\nv_and_b32 {v(bf+1)}, 0xffff0000, {v(b2r+i)}')
            a(f'v_pk_add_f32 {v(o,2)}, {v(o,2)}, {v(bf,2)}')
        for i in range(4): a(f'v_mul_f32 {v(acc4+16+i)}, {s(T0+3)}, {v(acc4+16+i)}')
        a(f'''v_and_b32 {v(t1)}, 15, {v(vL)}
v_mul_u32_u24 {v(t1)}, 1280, {v(t1)}
v_bfe_u32 {v(t2)}, {v(vL)}, 4, 1
v_lshl_add_u32 {v(t1)}, {v(t2)}, 5, {v(t1)}
v_lshrrev_b32 {v(t2)}, 5, {v(vL)}
v_lshl_add_u32 {v(t1)}, {v(t2)}, 4, {v(t1)}''')
        wave_block('s3pol', f's_cmp_lg_u32 {s(S_W)}, 7', [gpoll('s3', T0+5)])
        a('s_barrier')
        stamp('sync3')
        def xload(i):
            x = f'buffer_load_dwordx4 {v(X4+4*(i%NX),4)}, {v(vL16)}, {s(R_WS,4)}, {s(S_GX)} offen offset:{(i&1)*2048} sc1'
            for kh in range(2):
                if (2 * i + kh) % 7 == 3 and 2 * i + kh < 42:
                    y = '\n'.join(f'buffer_load_dwordx2 {v(X4+4*(i%NX)+2*hf,2)}, {v(vL8)}, {s(R_WS,4)}, {s(S_GX)} offen offset:{(i&1)*2048+512*hf} sc1' for hf in range(2))
                    x = f's_cbranch_vcc{"z" if kh else "nz"} L_xn{i}\n;@save xs\n{y}\ns_branch L_xj{i}\nL_xn{i}:\n{x}\nL_xj{i}:'
            if i & 1: x += f'\ns_add_u32 {s(S_GX)}, {s(S_GX)}, 4096'
            return x
        NP = OPT.get('np', 6)
        nxt = [0]
        def xl(k):
            L = []
            for _ in range(k):
                if nxt[0] < 27: L.append(xload(nxt[0])); nxt[0] += 1
            return L
        a(xl(NP))
        for i in range(27):
            F = []
            nx = i + 1
            if nx >= 5 and nx < 27:
                if nx % 4 == 0 and nx > 8:
                    c = nx // 4
                    a(stamp_txt(f'sc{c}a') + f';@wait sc{c}\ns_barrier\n' + stamp_txt(f'sc{c}b'))
                    if c in (3, 4): F += w2dma(c + 2)
                if nx == 6 and not OPT.get('sc4early', 1): F += w2dma(4)
                F = w2read(nx) + F
            order = range(5) if i < 26 else (2, 3, 4, 0, 1)
            M = [f'{MF} {v(acc4+4*t,4)}, {v(wbuf(i)+4*t,4)}, {v(X4+4*(i%NX),4)}, {v(acc4+4*t,4) if (i or t in (0, 1, 4)) else 0}' for t in order]
            a(spread(M, F))
            a(xl(min(2, i + 1 + NX - nxt[0])))
        stamp('p4mm')
        rcv = WB[0]; bf = WB[2]
        for i in range(3): a(f'ds_write_b128 {v(axw)}, {v(acc4+8+4*i,4)} offset:{XCH4+1024*i}')
        a('s_waitcnt lgkmcnt(0)\ns_barrier')
        for i in range(3): a(f'ds_read_b128 {v(rcv+4*i,4)}, {v(axr)} offset:{XCH4+1024*i}')
        for i in range(3):
            for hh in (0, 2):
                a(f'v_pk_add_f32 {v(own[i]+hh,2)}, {v(own[i]+hh,2)}, {v(rcv+4*i+hh,2)}')
            for hh in range(2):
                a(f'v_cvt_pk_bf16_f32 {v(bf+2*i+hh)}, {v(own[i]+2*hh)}, {v(own[i]+2*hh+1)}')
            if i == 1:
                a(f'v_permlane16_swap_b32 {v(bf)}, {v(bf+2)}\nv_permlane16_swap_b32 {v(bf+1)}, {v(bf+3)}')
                a(f'buffer_store_dwordx4 {v(bf,4)}, {v(t1)}, {s(R_OUT,4)}, {s(T0+1)} offen\ns_cbranch_vccnz L_fin')
        a(f'buffer_store_dwordx2 {v(bf+4,2)}, {v(vRO)}, {s(R_OUT,4)}, {s(T0+2)} offen\nL_fin:')
        stamp('end')
    if ts:
        a(f'''s_lshl_b32 {s(S_TS)}, s2, 3
s_add_u32 {s(S_TS)}, {s(S_TS)}, {s(S_W)}
s_lshl_b32 {s(S_TS)}, {s(S_TS)}, 8
s_add_u32 {s(S_TS)}, {s(S_TS)}, {OFF_TS}
v_lshlrev_b32 {v(t7)}, 2, {v(vL)}
buffer_store_dword v0, {v(t7)}, {s(R_WS,4)}, {s(S_TS)} offen''')
    a('L_end:\ns_endpgm\n;@clearv\n;@clearl')
    for blk in ool:
        a(blk); a(';@clearv\n;@clearl')
    body = a.finalize()
    return body, va.hi, names

def wrap(body, listmode=False):
    ref = open('cdna_kernels/%s.s.ref' % NAME).read().split('\n')
    hdr = [l for l in ref if l.startswith(';') and '@launch' not in l]
    kn = NAME + '_kernel'
    nv = 256
    launch = (f'; @launch kernel={kn} grid=(256,1,1) block=(512,1,1) lds=163840' if listmode
              else '; @launch grid=(256,1,1) block=(512,1,1) lds=163840')
    return '\n'.join(hdr) + '\n' + launch + '\n' + f'''.amdgcn_target "amdgcn-amd-amdhsa--gfx950"
.text
.globl {kn}
.p2align 8
.type {kn},@function
{kn}:
{body}.section .rodata,"a"
.p2align 6
.amdhsa_kernel {kn}
  .amdhsa_next_free_vgpr {nv}
  .amdhsa_next_free_sgpr 102
  .amdhsa_accum_offset {nv}
  .amdhsa_group_segment_fixed_size 0
  .amdhsa_kernarg_size 88
  .amdhsa_user_sgpr_count 2
  .amdhsa_user_sgpr_kernarg_segment_ptr 1
  .amdhsa_system_sgpr_workgroup_id_x 1
.end_amdhsa_kernel
'''

if __name__ == '__main__':
    import argparse
    ap = argparse.ArgumentParser()
    ap.add_argument('--stop', type=int, default=4)
    ap.add_argument('--ts', action='store_true')
    ap.add_argument('--list', action='store_true')
    ap.add_argument('--opt', default='')
    ap.add_argument('-o', default='cdna_kernels/%s.s' % NAME)
    args = ap.parse_args()
    for kv in filter(None, args.opt.split(',')):
        k_, v_ = kv.split('='); OPT[k_] = int(v_)
    body, hi, names = gen(args.stop, args.ts)
    import subprocess, re, tempfile, os
    with tempfile.TemporaryDirectory() as td:
        open(td + '/a.s', 'w').write(wrap(body.replace('CODE_BYTES', '0x7000').replace('KERNEL_START', NAME + '_kernel'), args.list))
        subprocess.run(['clang', '-x', 'assembler', '-target', 'amdgcn-amd-amdhsa', '-mcpu=gfx950', '-c', td + '/a.s', '-o', td + '/a.o'], check=True)
        h = subprocess.run(['llvm-objdump', '-h', td + '/a.o'], capture_output=True, text=True).stdout
        size = int(re.search(r'\.text\s+([0-9a-f]+)', h).group(1), 16)
    print('code bytes', size)
    txt = wrap(body.replace('CODE_BYTES', str(size - 64)).replace('KERNEL_START', NAME + '_kernel'), args.list)
    if names: txt += '; stamps: ' + ' '.join(names) + '\n'
    open(args.o, 'w').write(txt)
    print('vgpr hi', hi, 'lines', body.count('\n'), names)
```

```python
import sys, math, struct
sys.path.insert(0, 'gen')
from asmlib import Asm, weave, spread

NAME = 'sequential_preLN__linear_attn_block__mixer_channel_mlp__prompt'

OFF_KV = 23 << 20
OFF_CA = 65536
OFF_CB = 73728
OFF_C2 = 75776
OFF_C3 = 79872
OFF_CP = 81920
ZBYTES = 86016
OFF_O = 1 << 20
OFF_H = 5 << 20
OFF_HST = 8 << 20
OFF_G = 9 << 20
OFF_W2P = 17 << 20
OFF_W1P = OFF_W2P + 540 * 4096
OFF_TS = 24 << 20
WS_REC = 32 << 20

LOG2E = 1.4426950408889634
def f2u(x): return struct.unpack('<I', struct.pack('<f', x))[0]
def fhex(x): return '0x%08x' % f2u(x)

class VA:
    def __init__(self, start, limit=256):
        self.cur = start; self.limit = limit; self.hi = start
    def a(self, n=1, al=1):
        self.cur = (self.cur + al - 1) // al * al
        r = self.cur; self.cur += n
        assert self.cur <= self.limit, 'out of VGPRs'
        self.hi = max(self.hi, self.cur)
        return r
    def mark(self): return self.cur
    def reset(self, m): self.cur = m

def v(r, n=1): return f'v{r}' if n == 1 else f'v[{r}:{r+n-1}]'
def s(r, n=1): return f's{r}' if n == 1 else f's[{r}:{r+n-1}]'

P_X, P_WQKV, P_WO, P_BX, P_W1, P_B1, P_W2, P_B2, P_OUT, P_DBG, P_WS = range(4, 26, 2)
S_W = 26; S_RT1 = 27; S_HP = 28; S_GRP = 29; S_MEM = 30; S_CT = 31
R_X = 32; R_WQ = 36; R_WO = 40; R_W1 = 44; R_W2 = 48; R_WS = 52; R_OUT = 56; R_DBG = 60; R_B1 = 64; R_B2 = 68
T0 = 72
S_MG = 80; S_KH = 81; S_T = 82; S_STILE = 83; S_CM = 84; S_CO = 85; S_CS = 86; S_RB = 87; S_ODD = 88; S_MD = 89
M_A = 90; M_B = 92; M_C = 94; M_D = 96
S_TS = 98
S_U0 = 100; S_U1 = 101

def srd(a, r, ptr, add, nrec):
    if add is None:
        a(f's_mov_b32 {s(r)}, {s(ptr)}\ns_mov_b32 {s(r+1)}, {s(ptr+1)}')
    else:
        a(f's_add_u32 {s(r)}, {s(ptr)}, {add}\ns_addc_u32 {s(r+1)}, {s(ptr+1)}, 0')
    a(f's_mov_b32 {s(r+2)}, {nrec}\ns_mov_b32 {s(r+3)}, 0x20000')

def mask64(a, r, val):
    a(f's_mov_b32 {s(r)}, 0x{val & 0xffffffff:08x}\ns_mov_b32 {s(r+1)}, 0x{val >> 32:08x}')

def lanemask(f):
    m = 0
    for l in range(64):
        if f(l): m |= 1 << l
    return m

MF = 'v_mfma_f32_16x16x32_bf16'
SLOT = 40960
OPT = {}

def gen(stop_after=4, ts=False):
    QXOR = OPT.get('qxor', 1)
    KVS = OPT.get('kvs', 1024)
    a = Asm()
    va = VA(1)
    vL = va.a(); vL16 = va.a(); vRO = va.a(); vONE = va.a(4, 4)
    vHR = va.a(6, 2)
    vDUM = va.a(); vD10 = va.a()
    vTmp = va.a(8, 4)
    base_mark = va.mark()
    vXR = va.a(6, 2)
    xr_mark = va.mark()
    t0, t1, t2, t3, t4, t5, t6, t7 = range(vTmp, vTmp + 8)
    names = []
    RT = ['start', 'p1loop', 'sigA', 'syncB', 'drained2', 'sync2', 'drained3', 'sync3', 'end']
    def stamp_txt(name, key='fine3'):
        if not ts or not OPT.get(key): return ''
        idx = len(names); names.append(name)
        return f';@opt on\ns_memtime {s(S_TS,2)}\ns_waitcnt lgkmcnt(0)\nv_writelane_b32 v0, {s(S_TS)}, {idx}\n'
    def stamp(name, idx=None):
        if not ts: return
        if idx is None:
            idx = len(names); names.append(name)
        a(f''';@opt on
s_memtime {s(S_TS,2)}
s_waitcnt lgkmcnt(0)
v_writelane_b32 v0, {s(S_TS)}, {idx}
;@opt off''')
        if name in RT:
            a(f';@opt on\ns_memrealtime {s(S_TS,2)}\ns_waitcnt lgkmcnt(0)\nv_writelane_b32 v0, {s(S_TS)}, {63 - RT.index(name)}\n;@opt off')
        return idx

    a(f'''s_cmp_ge_u32 s2, 256
s_cbranch_scc1 L_end
s_load_dwordx16 s[4:19], s[0:1], 0
s_load_dwordx4 s[20:23], s[0:1], 64
s_load_dwordx2 s[24:25], s[0:1], 80
s_getpc_b64 {s(T0+6,2)}
s_lshr_b32 {s(S_T)}, s2, 3
v_lshrrev_b32 {v(t0)}, 5, v0
s_lshl_b32 {s(T0+4)}, {s(S_T)}, 11
v_lshl_add_u32 {v(t1)}, {v(t0)}, 7, {s(T0+4)}
v_min_u32 {v(t1)}, CODE_BYTES, {v(t1)}
s_mov_b32 exec_lo, 1
s_mov_b32 exec_hi, 1
global_load_dword {v(vDUM)}, {v(t1)}, {s(T0+6,2)}
s_mov_b64 exec, -1
v_lshrrev_b32 {v(t0)}, 6, v0
v_and_b32 {v(vL)}, 63, v0
v_readfirstlane_b32 {s(S_W)}, {v(t0)}
s_and_b32 {s(T0)}, s2, 7
s_and_b32 {s(S_RT1)}, {s(T0)}, 3
s_lshl_b32 {s(S_RT1)}, {s(S_RT1)}, 2
s_and_b32 {s(T0+2)}, {s(S_T)}, 3
s_add_u32 {s(S_RT1)}, {s(S_RT1)}, {s(T0+2)}
s_lshr_b32 {s(S_HP)}, {s(T0)}, 2
s_lshl_b32 {s(S_HP)}, {s(S_HP)}, 3
s_lshr_b32 {s(T0+3)}, {s(S_T)}, 2
s_add_u32 {s(S_HP)}, {s(S_HP)}, {s(T0+3)}
s_and_b32 {s(S_MG)}, {s(S_W)}, 3
s_lshr_b32 {s(S_KH)}, {s(S_W)}, 2
v_lshlrev_b32 {v(vL16)}, 4, {v(vL)}
s_mov_b32 s3, 1
s_cmp_ge_u32 {s(S_W)}, 4
;@save p1
s_cbranch_scc1 L_p1c''')

    def late_ids():
        a(f'''s_and_b32 {s(T0)}, s2, 7
s_lshl_b32 {s(S_GRP)}, {s(T0)}, 1
s_and_b32 {s(T0+4)}, {s(S_T)}, 1
s_add_u32 {s(S_GRP)}, {s(S_GRP)}, {s(T0+4)}
s_lshr_b32 {s(S_MEM)}, {s(S_T)}, 1
s_and_b32 {s(S_CT)}, {s(S_MEM)}, 7
s_and_b32 {s(S_ODD)}, {s(S_CT)}, 1
s_lshl_b32 {s(S_STILE)}, {s(S_GRP)}, 3
s_lshr_b32 {s(T0+4)}, {s(S_MEM)}, 3
s_lshl_b32 {s(T0+4)}, {s(T0+4)}, 2
s_add_u32 {s(S_STILE)}, {s(S_STILE)}, {s(T0+4)}
s_add_u32 {s(S_STILE)}, {s(S_STILE)}, {s(S_MG)}
s_lshl_b32 {s(T0+4)}, {s(S_ODD)}, 5
s_lshl_b32 {s(T0+5)}, {s(S_KH)}, 6
s_add_u32 {s(S_CM)}, {s(T0+4)}, {s(T0+5)}
s_xor_b32 {s(T0+5)}, {s(T0+5)}, 64
s_add_u32 {s(S_CO)}, {s(T0+4)}, {s(T0+5)}
s_cmp_eq_u32 {s(S_ODD)}, 0
s_cselect_b32 {s(S_CS)}, 128, 0
s_mul_i32 {s(S_RB)}, {s(S_STILE)}, 20480
s_mul_i32 {s(T0+4)}, {s(S_CT)}, 160
s_add_u32 {s(S_RB)}, {s(S_RB)}, {s(T0+4)}
s_lshl_b32 {s(S_MD)}, {s(S_W)}, 10
s_sub_u32 {s(T0+5)}, 819200, {s(T0+4)}
s_sub_u32 {s(T0+6)}, 1280, {s(T0+4)}''')
        srd(a, R_WO, P_WO, s(T0+4), s(T0+5))
        srd(a, R_B2, P_B2, s(T0+4), s(T0+6))
        srd(a, R_DBG, P_DBG, None, 256)
        srd(a, R_OUT, P_OUT, None, 2621440)
        for i in range(4): a(f'v_mov_b32 {v(vONE+i)}, 0x3f803f80')
        a(f'''v_and_b32 {v(t0)}, 15, {v(vL)}
v_mul_u32_u24 {v(t0)}, 1280, {v(t0)}
v_lshrrev_b32 {v(t1)}, 4, {v(vL)}
v_lshl_add_u32 {v(vRO)}, {v(t1)}, 3, {v(t0)}''')

    SA = 32768; RK, RV = 16384, 24576
    SP = 131072; MISC = 155648; FLG = MISC; ST = MISC + 1024; PKS = 3 * SA + 24576
    WQPOS = [SP + 8192 * q for q in range(3)] + [2 * SA + 8192 * q for q in range(4)] + [3 * SA + 8192 * q for q in range(3)]
    KVR = 0; WO = 0; XRL = 106496
    F_WQ, F_KVR, F_DRA, F_DRB, F_PB, F_PK, F_GA, F_H1 = 0, 12, 16, 20, 24, 28, 32, 36
    OOR = WS_REC
    S_LB = 0
    SLP = OPT.get('sleep', 2)
    ool = []

    def phi4(x, tmp, cL, cE6L, e6v, pk=1):
        if not pk:
            return ([f'v_fma_f32 {v(tmp+i)}, {v(x+i)}, {v(cL)}, {v(cE6L)}' for i in range(4)] + [f'v_exp_f32 {v(tmp+i)}, {v(tmp+i)} clamp' for i in range(4)]
                    + [f'v_max_f32 {v(x+i)}, {v(e6v)}, {v(x+i)}' for i in range(4)] + [f'v_add_f32 {v(x+i)}, {v(x+i)}, {v(tmp+i)}' for i in range(4)])
        L = [f'v_pk_fma_f32 {v(tmp+i,2)}, {v(x+i,2)}, {v(cL,2)}, {v(cE6L,2)} op_sel_hi:[1,0,0]' for i in (0, 2)]
        L += [f'v_exp_f32 {v(tmp+i)}, {v(tmp+i)} clamp' for i in range(4)]
        L += [f'v_max_f32 {v(x+i)}, {v(e6v)}, {v(x+i)}' for i in range(4)]
        L += [f'v_pk_add_f32 {v(x+i,2)}, {v(x+i,2)}, {v(tmp+i,2)}' for i in (0, 2)]
        return L
    mk = lambda r, f: f's_mov_b32 {s(r)}, 0x{lanemask(f) & 0xffffffff:08x}\ns_mov_b32 {s(r+1)}, 0x{lanemask(f) >> 32:08x}'

    def larrive(vFL, off):
        a(f's_mov_b64 exec, 1\nds_add_u32 {v(vFL)}, {v(vFL+1)} offset:{off}\ns_mov_b64 exec, -1')
    def lwait(vFL, off, tag, tmp):
        a(f''';@opt on
s_waitcnt lgkmcnt(0)
s_mov_b32 {s(S_LB)}, 0x1000000
L_lw{tag}:
ds_read_b32 {v(tmp)}, {v(vFL)} offset:{off}
s_sub_u32 {s(S_LB)}, {s(S_LB)}, 1
s_cselect_b32 {s(S_LB+1)}, 0, 4
s_waitcnt lgkmcnt(0)
v_readfirstlane_b32 {s(T0+7)}, {v(tmp)}
s_cmp_lt_u32 {s(T0+7)}, {s(S_LB+1)}
s_cbranch_scc1 L_lw{tag}
;@clearl''')
    caddr = lambda dst, idx, base: f's_lshl_b32 {s(dst)}, {s(idx)}, 7\ns_add_u32 {s(dst)}, {s(dst)}, {base}'
    ssig = lambda off: f's_atomic_add s3, {s(P_WS,2)}, {s(off)}'
    def last_signals(vFL, off, tag, tmp, idx, base, wait='s_waitcnt vmcnt(0)'):
        a(f'''{caddr(S_LB+1, idx, base)}
s_mov_b64 exec, 1
{wait}
ds_add_rtn_u32 {v(tmp)}, {v(vFL)}, {v(vFL+1)} offset:{off}
s_mov_b64 exec, -1
s_waitcnt lgkmcnt(0)
v_readfirstlane_b32 {s(T0+7)}, {v(tmp)}
s_cmp_lg_u32 {s(T0+7)}, 3
s_cbranch_scc1 L_ls{tag}
{ssig(S_LB+1)}
L_ls{tag}:''')
    def gpoll(tag, off):
        return f'''s_waitcnt lgkmcnt(0)
s_mov_b32 {s(T0+7)}, 0x400000
L_{tag}_p:
s_mov_b32 {s(S_LB)}, 0
s_atomic_add {s(S_LB)}, {s(P_WS,2)}, {s(off)} glc
s_sub_u32 {s(T0+7)}, {s(T0+7)}, 1
s_cselect_b32 {s(S_LB+1)}, 0, 16
s_waitcnt lgkmcnt(0)
s_cmp_ge_u32 {s(S_LB)}, {s(S_LB+1)}
s_cbranch_scc1 L_{tag}_d
s_sleep {SLP}
s_branch L_{tag}_p
L_{tag}_d:'''

    def x_addrs(aX):
        a(f"""v_lshrrev_b32 {v(t4)}, 4, {v(vL)}
v_and_b32 {v(t7)}, 15, {v(vL)}
s_lshl_b32 {s(T0+4)}, {s(S_MG)}, 12
v_lshrrev_b32 {v(t0)}, 1, {v(t7)}
v_xor_b32 {v(t0)}, {v(t0)}, {v(t4)}
v_lshlrev_b32 {v(t0)}, 4, {v(t0)}
v_lshl_add_u32 {v(t0)}, {v(t7)}, 7, {v(t0)}
v_add_u32 {v(aX)}, {s(T0+4)}, {v(t0)}
v_xor_b32 {v(aX+1)}, 64, {v(aX)}
v_add_u32 {v(aX+2)}, {2*SA}, {v(aX)}
v_add_u32 {v(aX+3)}, {2*SA}, {v(aX+1)}""")
    def w_addrs(rA, rB, rC, xor, base):
        g_, r_, c_, s_ = t4, t5, t6, t7
        a(f"""v_lshrrev_b32 {v(g_)}, 4, {v(vL)}
v_bfe_u32 {v(r_)}, {v(vL)}, 2, 2
v_and_b32 {v(c_)}, 3, {v(vL)}
v_lshl_add_u32 {v(t0)}, {v(g_)}, 3, {v(r_)}
v_lshlrev_b32 {v(t0)}, 7, {v(t0)}
v_and_b32 {v(t1)}, 1, {v(g_)}
v_lshlrev_b32 {v(t1)}, 1, {v(t1)}
v_lshrrev_b32 {v(t2)}, 1, {v(r_)}
v_or_b32 {v(t1)}, {v(t1)}, {v(t2)}
v_lshlrev_b32 {v(t1)}, 5, {v(t1)}
v_and_b32 {v(s_)}, 1, {v(c_)}
v_mul_u32_u24 {v(s_)}, 40, {v(s_)}
s_xor_b32 {s(T0+4)}, {s(S_HP)}, {xor}
s_and_b32 {s(T0+4)}, {s(T0+4)}, 3
s_lshl_b32 {s(T0+4)}, {s(T0+4)}, 4
s_mov_b32 {s(T0+5)}, {base}
v_lshl_add_u32 {v(t2)}, {v(c_)}, 3, {s(T0+4)}
v_xor_b32 {v(t3)}, {v(t2)}, {v(t1)}
v_add3_u32 {v(rA)}, {v(t3)}, {v(t0)}, {s(T0+5)}
v_add_u32 {v(t2)}, 40, {v(t2)}
v_xor_b32 {v(t3)}, {v(t2)}, {v(t1)}
v_add3_u32 {v(rB)}, {v(t3)}, {v(t0)}, {s(T0+5)}
v_add3_u32 {v(t2)}, {v(s_)}, {s(T0+4)}, 32
v_xor_b32 {v(t3)}, {v(t2)}, {v(t1)}
v_add3_u32 {v(rC)}, {v(t3)}, {v(t0)}, {s(T0+5)}""")

    va.reset(xr_mark)
    acc2 = va.a(20, 4); O2 = va.a(32, 4); OS2 = va.a(8, 4)
    WP = [va.a(20, 4) for _ in range(8)]
    aM = va.a(3); vL8 = va.a()
    aS = O2; axr_ = O2 + 3
    axw = vHR; axr = vHR + 1; vL4b = vHR + 2
    XC0 = WO + 38400
    E0, E1, E2, E3, E4, E5, E6, E7 = 36, 37, 38, 39, 6, 7, 10, 11
    S_T0 = S_U0; S_O3 = S_U1; S_W1 = E6
    RRB = 3 * SLOT
    S_HX, S_GP, S_MXl, S_HS, S_C3, S_R0, S_R1, S_P0 = range(R_W1, R_W1 + 8); S_W2 = E3
    def p2_scalars():
        a(f'''s_lshl_b32 {s(T0+2)}, {s(S_STILE)}, 4
s_lshl_b32 {s(T0+3)}, {s(S_KH)}, 3
s_add_u32 {s(T0+2)}, {s(T0+2)}, {s(T0+3)}
s_mul_i32 {s(T0+2)}, {s(T0+2)}, 1280
s_add_u32 {s(T0+2)}, {s(T0+2)}, {OFF_O}
s_mul_i32 {s(S_T0)}, {s(S_HP)}, 7
s_mul_i32 {s(T0+4)}, {s(S_HP)}, 6
s_add_u32 {s(T0+4)}, {s(T0+4)}, 12
s_cmp_lt_u32 {s(S_HP)}, 12
s_cselect_b32 {s(S_T0)}, {s(S_T0)}, {s(T0+4)}
s_add_u32 {s(S_W1)}, {s(S_T0)}, {s(S_W)}
s_lshl_b32 {s(S_W1)}, {s(S_W1)}, 10
s_add_u32 {s(S_W1)}, {s(S_W1)}, {OFF_W1P}''')
        a(f'''s_and_b32 {s(S_O3)}, {s(S_T0)}, 1
s_lshl_b32 {s(T0+4)}, {s(S_T0)}, 5
s_sub_u32 {s(T0+6)}, 3456, {s(T0+4)}''')
        srd(a, R_B1, P_B1, s(T0+4), s(T0+6))
        a(f'''s_mul_i32 {s(E0)}, {s(S_CT)}, 5
s_add_u32 {s(E0)}, {s(E0)}, 1
s_lshr_b32 {s(E0)}, {s(E0)}, 1
s_mul_i32 {s(E1)}, {s(S_STILE)}, 20
s_add_u32 {s(E0)}, {s(E0)}, {s(E1)}
s_cmp_eq_u32 {s(S_ODD)}, 0
s_cselect_b32 {s(E1)}, 2, -1
s_add_u32 {s(E1)}, {s(E1)}, {s(E0)}
s_lshl_b32 {s(E1)}, {s(E1)}, 10
s_lshl_b32 {s(E2)}, {s(S_ODD)}, 9
s_add_u32 {s(E1)}, {s(E1)}, {s(E2)}
s_add_u32 {s(E1)}, {s(E1)}, {OFF_H}
s_cmp_lg_u32 {s(S_KH)}, 0
s_cselect_b32 {s(E1)}, {OOR}, {s(E1)}
s_cselect_b32 {s(E5)}, 0, 1.0
s_add_u32 {s(E0)}, {s(E0)}, {s(S_KH)}
s_lshl_b32 {s(E0)}, {s(E0)}, 10
s_add_u32 {s(E0)}, {s(E0)}, {OFF_H}
s_lshl_b32 {s(E2)}, {s(S_STILE)}, 3
s_add_u32 {s(E2)}, {s(E2)}, {s(S_CT)}
s_lshl_b32 {s(E2)}, {s(E2)}, 8
s_lshl_b32 {s(T0+3)}, {s(S_KH)}, 7
s_add_u32 {s(E2)}, {s(E2)}, {s(T0+3)}
s_add_u32 {s(E2)}, {s(E2)}, {OFF_HST}
s_mul_i32 {s(E3)}, {s(S_CT)}, 5120
s_mul_i32 {s(T0+3)}, {s(S_W)}, 40960
s_add_u32 {s(E3)}, {s(E3)}, {s(T0+3)}
s_add_u32 {s(E3)}, {s(E3)}, {OFF_W2P}
s_mul_i32 {s(E7)}, {s(S_W)}, 5120
s_lshl_b32 {s(S_C3)}, {s(S_O3)}, 5
s_lshl_b32 {s(T0+6)}, {s(S_MG)}, 6
s_add_u32 {s(S_C3)}, {s(S_C3)}, {s(T0+6)}
s_cmp_eq_u32 {s(S_C3)}, 224
s_cselect_b32 {s(S_C3)}, 0, {s(S_C3)}
s_lshl_b32 {s(S_P0)}, {s(S_C3)}, 5
s_lshl_b32 {s(S_HX)}, {s(S_RT1)}, 3
s_lshl_b32 {s(T0+6)}, {s(S_KH)}, 2
s_add_u32 {s(S_HX)}, {s(S_HX)}, {s(T0+6)}
s_mul_i32 {s(S_GP)}, {s(S_HX)}, 54
s_mul_i32 {s(S_HX)}, {s(S_HX)}, 20
s_add_u32 {s(S_HX)}, {s(S_HX)}, {s(S_MG)}
s_lshl_b32 {s(S_HX)}, {s(S_HX)}, 10
s_add_u32 {s(S_HX)}, {s(S_HX)}, {OFF_H}
s_mul_i32 {s(S_MXl)}, {s(S_KH)}, 20480
s_lshl_b32 {s(T0+6)}, {s(S_MG)}, 10
s_add_u32 {s(S_MXl)}, {s(S_MXl)}, {s(T0+6)}
s_lshl_b32 {s(T0+6)}, {s(S_T0)}, 5
s_add_u32 {s(T0+6)}, {s(T0+6)}, {s(S_C3)}
s_lshr_b32 {s(T0+7)}, {s(T0+6)}, 6
s_add_u32 {s(S_GP)}, {s(S_GP)}, {s(T0+7)}
s_lshl_b32 {s(S_GP)}, {s(S_GP)}, 10
s_bfe_u32 {s(T0+7)}, {s(T0+6)}, 0x10005
s_lshl_b32 {s(T0+7)}, {s(T0+7)}, 9
s_add_u32 {s(S_GP)}, {s(S_GP)}, {s(T0+7)}
s_add_u32 {s(S_GP)}, {s(S_GP)}, {OFF_G}
s_cmp_ge_u32 {s(S_HP)}, 12
s_cselect_b32 {s(T0+6)}, {OOR}, {s(S_GP)}
s_cmp_eq_u32 {s(S_MG)}, 3
s_cselect_b32 {s(S_GP)}, {s(T0+6)}, {s(S_GP)}
s_lshl_b32 {s(S_HS)}, {s(S_RT1)}, 3
s_add_u32 {s(S_HS)}, {s(S_HS)}, {s(S_W)}
s_lshl_b32 {s(S_HS)}, {s(S_HS)}, 11
s_add_u32 {s(S_HS)}, {s(S_HS)}, {OFF_HST}
s_lshl_b32 {s(S_R0)}, {s(S_W)}, 7
s_add_u32 {s(S_R0)}, {s(S_R0)}, {RRB}
s_lshl_b32 {s(S_R1)}, {s(S_KH)}, 9
s_add_u32 {s(S_R1)}, {s(S_R1)}, {RRB}''')
    def p2_setup():
        g_, r_, c_ = t4, t5, t6
        a(f'''v_lshrrev_b32 {v(g_)}, 4, {v(vL)}
v_bfe_u32 {v(r_)}, {v(vL)}, 2, 2
v_and_b32 {v(c_)}, 3, {v(vL)}
v_lshl_add_u32 {v(t0)}, {v(g_)}, 2, {v(r_)}
v_mul_u32_u24 {v(t0)}, 160, {v(t0)}
v_lshl_add_u32 {v(t0)}, {v(c_)}, 3, {v(t0)}
v_mul_u32_u24 {v(t1)}, 20, {v(r_)}
v_add3_u32 {v(t1)}, {v(t1)}, {v(g_)}, 16
v_mul_u32_u24 {v(t1)}, 160, {v(t1)}
v_lshl_add_u32 {v(t1)}, {v(c_)}, 3, {v(t1)}
s_xor_b32 {s(T0+4)}, {s(S_KH)}, 1
s_mul_i32 {s(T0+4)}, {s(T0+4)}, 51200''')
        for i, sc in enumerate((S_CM, S_CO, S_CS)):
            a(f's_add_u32 {s(T0+5)}, {s(T0+4)}, {s(sc)}\nv_add_u32 {v(aM+i)}, {s(T0+5)}, {v(t0)}\nv_add_u32 {v(aS+i)}, {s(T0+5)}, {v(t1)}')
        a(f'''s_mul_i32 {s(T0+5)}, {s(S_MG)}, 3072
s_add_u32 {s(T0+5)}, {s(T0+5)}, {XC0}
s_add_u32 {s(T0+6)}, {s(T0+5)}, {s(T0+4)}
v_add_u32 {v(axw)}, {s(T0+6)}, {v(vL16)}
s_sub_u32 {s(T0+6)}, 51200, {s(T0+4)}
s_add_u32 {s(T0+6)}, {s(T0+6)}, {s(T0+5)}
v_add_u32 {v(axr)}, {s(T0+6)}, {v(vL16)}
v_lshlrev_b32 {v(vL8)}, 3, {v(vL)}
v_lshlrev_b32 {v(vL4b)}, 2, {v(vL)}
v_and_b32 {v(t2)}, 15, {v(vL)}
v_mul_u32_u24 {v(t2)}, 160, {v(t2)}
v_lshl_add_u32 {v(t2)}, {v(g_)}, 3, {v(t2)}
s_mul_i32 {s(T0+4)}, {s(S_MG)}, 2560
s_add_u32 {s(T0+4)}, {s(T0+4)}, {XRL}
s_add_u32 {s(T0+5)}, {s(T0+4)}, {s(S_CM)}
v_add_u32 {v(axr_)}, {s(T0+5)}, {v(t2)}
s_add_u32 {s(T0+5)}, {s(T0+4)}, {s(S_CS)}
v_add_u32 {v(axr_+1)}, {s(T0+5)}, {v(t2)}''')
    tl = [(0, 0), (0, 32), (1, 0), (1, 32), (2, 0)]
    WB_ = lambda kind, j: WP[j % 6] if kind == 'm' else WP[6 + j]
    def wread(kind, j):
        buf = WB_(kind, j); L = []
        for t, (ai, ci) in enumerate(tl):
            for jh in range(2):
                if kind == 'm': ad_, off = aM + ai, j * 6400 + jh * 3200 + ci
                else: ad_, off = aS + ai, j * 25600 + jh * 12800 + ci
                L.append(f'ds_read_b64_tr_b16 {v(buf+4*t+2*jh,2)}, {v(ad_)} offset:{off}')
        return L
    def preread(): return [x for j in range(2) for x in wread('s', j)] + [x for j in range(6) for x in wread('m', j)]

    p1_mark = base_mark
    va.reset(base_mark)
    vX = va.a(4); vW = va.a(6); aX = vHR; vFL = vHR + 4
    a(f"""v_lshrrev_b32 {v(t0)}, 3, {v(vL)}
v_and_b32 {v(t1)}, 7, {v(vL)}
v_lshrrev_b32 {v(t2)}, 4, {v(vL)}
s_lshl_b32 {s(T0+4)}, {s(S_MG)}, 5
v_add_u32 {v(t3)}, {s(T0+4)}, {v(t0)}
v_mul_u32_u24 {v(t3)}, 1280, {v(t3)}
v_xor_b32 {v(vX)}, {v(t1)}, {v(t2)}
v_lshl_add_u32 {v(vX)}, {v(vX)}, 4, {v(t3)}
v_xor_b32 {v(vX+1)}, 64, {v(vX)}
v_add_u32 {v(vX+1)}, {8*1280-1024}, {v(vX+1)}
v_add_u32 {v(vX+2)}, {16*1280-2048}, {v(vX)}
v_add_u32 {v(vX+3)}, {16*1280-2048}, {v(vX+1)}
s_mul_i32 {s(T0+6)}, {s(S_RT1)}, 163840""")
    S_MX = M_C; S_MW = M_C + 1; S_SX = M_D; S_SW = M_D + 1; S_CH = S_U1
    a(f's_lshl_b32 {s(S_MX)}, {s(S_MG)}, 12\ns_lshl_b32 {s(S_MW)}, {s(S_MG)}, 11')
    a(f"""s_mul_i32 {s(S_CH)}, {s(T0+2)}, 3
s_add_u32 {s(S_CH)}, {s(S_CH)}, {s(T0+3)}
s_and_b32 {s(T0+7)}, {s(T0)}, 3
s_add_u32 {s(S_CH)}, {s(S_CH)}, {s(T0+7)}
s_lshr_b32 {s(T0+7)}, {s(T0)}, 2
s_lshl_b32 {s(T0+7)}, {s(T0+7)}, 1
s_add_u32 {s(S_CH)}, {s(S_CH)}, {s(T0+7)}
s_cmp_ge_u32 {s(S_CH)}, 10
s_cselect_b32 {s(T0+7)}, 10, 0
s_sub_u32 {s(S_CH)}, {s(S_CH)}, {s(T0+7)}
s_cmp_ge_u32 {s(S_CH)}, 10
s_cselect_b32 {s(T0+7)}, 10, 0
s_sub_u32 {s(S_CH)}, {s(S_CH)}, {s(T0+7)}
s_lshl_b32 {s(T0+4)}, {s(S_MG)}, 4
v_add_u32 {v(t3)}, {s(T0+4)}, {v(t0)}
v_mul_u32_u24 {v(t3)}, 3840, {v(t3)}
v_and_b32 {v(t2)}, 1, {v(t2)}
v_lshlrev_b32 {v(t2)}, 1, {v(t2)}
v_xor_b32 {v(t1)}, {v(t1)}, {v(t2)}
v_lshl_add_u32 {v(t3)}, {v(t1)}, 4, {v(t3)}
v_xor_b32 {v(t0)}, 64, {v(t3)}
v_add_u32 {v(t0)}, {8*3840-1024}, {v(t0)}
s_mul_i32 {s(T0+5)}, {s(S_HP)}, 80
s_and_b32 {s(T0+5)}, {s(T0+5)}, 0xffffffc0
s_add_u32 {s(T0+5)}, {s(T0+5)}, 1280
v_add_u32 {v(vW)}, {s(T0+5)}, {v(t3)}
v_add_u32 {v(vW+1)}, {s(T0+5)}, {v(t0)}
s_add_u32 {s(T0+5)}, {s(T0+5)}, 1280
v_xor_b32 {v(t1)}, 16, {v(t3)}
v_xor_b32 {v(t2)}, 16, {v(t0)}
v_add_u32 {v(vW+2)}, {s(T0+5)}, {v(t1)}
v_add_u32 {v(vW+3)}, {s(T0+5)}, {v(t2)}
s_waitcnt lgkmcnt(0)""")
    srd(a, R_X, P_X, s(T0+6), 163840)
    srd(a, R_WQ, P_WQKV, None, 2457600)
    adv = f's_add_u32 {s(S_CH)}, {s(S_CH)}, 1\ns_cmp_eq_u32 {s(S_CH)}, 10\ns_cselect_b32 {s(S_CH)}, 0, {s(S_CH)}'
    def p1_dma(c):
        sl = c % 4
        L = [f's_lshl_b32 {s(S_SX)}, {s(S_CH)}, 7\ns_mul_i32 {s(S_SW)}, {s(S_CH)}, 245760\ns_add_u32 m0, {s(S_MX)}, {sl*SA}\n{adv}\n'
             f'buffer_load_dwordx4 {v(vX)}, {s(R_X,4)}, {s(S_SX)} offen lds']
        for i in range(1, 4):
            L.append(f'buffer_load_dwordx4 {v(vX+i)}, {s(R_X,4)}, {s(S_SX)} offen offset:{1024*i} lds')
        for sec in range(2):
            L[-1] += f'\ns_add_u32 m0, {s(S_MW)}, {RK + 8192*sec + sl*SA}'
            for b in range(2):
                tg = f';@tag c{c}\n' if (sec == 1 and b == 1) else ''
                L.append(f'{tg}buffer_load_dwordx4 {v(vW+2*sec+b)}, {s(R_WQ,4)}, {s(S_SW)} offen offset:{1024*b} lds')
        return L
    def wq_dma(qs):
        L = []
        for q in qs:
            L.append(f's_mul_i32 {s(S_SW)}, {s(S_CH)}, 245760\ns_add_u32 m0, {s(S_MW)}, {WQPOS[q]}\n{adv}\n'
                     f'buffer_load_dwordx4 {v(vW+4)}, {s(R_WQ,4)}, {s(S_SW)} offen lds')
            L.append(f';@tag q{q}\nbuffer_load_dwordx4 {v(vW+5)}, {s(R_WQ,4)}, {s(S_SW)} offen offset:1024 lds')
        return L
    stamp('start')
    a(p1_dma(0))
    a(f"""s_xor_b32 {s(T0+5)}, {s(S_HP)}, {QXOR}
s_mul_i32 {s(T0+5)}, {s(T0+5)}, 80
s_and_b32 {s(T0+5)}, {s(T0+5)}, 0xffffffc0
v_add_u32 {v(vW+4)}, {s(T0+5)}, {v(t3)}
v_add_u32 {v(vW+5)}, {s(T0+5)}, {v(t0)}""")
    x_addrs(aX)
    for i in range(4): a(f'v_mov_b32 {v(vONE+i)}, 0x3f803f80')
    aQ = va.a(6); aST = va.a(); zp = va.a(2); aTW = zp + 1
    XR = va.a(160, 4); gram = va.a(8, 4); rsum = va.a(8, 4)
    lmark = va.mark()
    ltouch = f'''v_min_u32 {v(t0)}, 31, {v(vL)}
v_mul_lo_u32 {v(t0)}, {v(t0)}, {s(S_U0)}
v_lshlrev_b32 {v(t1)}, 7, {v(vL)}
buffer_load_dword {v(vDUM)}, {v(t1)}, {s(R_B1,4)}, {s(P_BX)} offen
buffer_load_dword {v(vDUM)}, {v(t0)}, {s(R_W2,4)}, {s(P_BX+1)} offen'''
    i_ls = stamp('loopstart')
    NQ8 = OPT.get('nq8', 0); NQ1 = OPT.get('nq1', 2)
    a(p1_dma(1))
    for i in range(10):
        a(f';@wait c{i}\ns_barrier')
        sl = i % 4
        for j in range(2):
            for m in range(2): a(f'ds_read_b128 {v(XR+16*i+8*j+4*m,4)}, {v(aX+2*(sl>>1)+j)} offset:{(sl&1)*SA + 2048*m}')
        M = []
        for j in range(2):
            z = (i == 0 and j == 0)
            for m in range(2):
                x = v(XR + 16 * i + 8 * j + 4 * m, 4)
                M.append(f'{MF} {v(gram+4*m,4)}, {x}, {x}, {0 if z else v(gram+4*m,4)}')
                M.append(f'{MF} {v(rsum+4*m,4)}, {v(vONE,4)}, {x}, {0 if z else v(rsum+4*m,4)}')
        D_ = p1_dma(i + 2) if i <= 7 else []
        if i == 6: a(f'buffer_load_dword {v(vD10)}, {v(zp)}, {s(R_DBG,4)}, 0 offen sc1')
        a(D_[:2]); a(weave(M, D_[2:]))
        if i == 0:
            srd(a, R_WS, P_WS, None, WS_REC)
            late_ids()
        if i == 1:
            w_addrs(aQ + 1, aQ + 2, aQ, QXOR, 2 * SA)
            for k in range(3): a(f'v_add_u32 {v(aQ+3+k)}, {SP-2*SA}, {v(aQ+k)}')
            a(mk(M_A, lambda l: (l & 3) == 1)); a(mk(M_B, lambda l: (l & 3) == 2)); a(mk(T0+2, lambda l: (l & 3) == 3))
            a(mk(T0, lambda l: ((l & 15) >> 2) == (l >> 4)))
            a(f"""v_and_b32 {v(t0)}, 15, {v(vL)}
v_lshlrev_b32 {v(t0)}, 2, {v(t0)}
s_lshl_b32 {s(T0+4)}, {s(S_MG)}, 7
s_add_u32 {s(T0+4)}, {s(T0+4)}, {ST}
v_add_u32 {v(aST)}, {s(T0+4)}, {v(t0)}
v_mov_b32 {v(zp)}, 0
v_mov_b32 {v(vFL)}, {FLG}
v_mov_b32 {v(vFL+1)}, 1
""")
        if i == 2:
            a(f'''s_lshl_b32 {s(T0+5)}, {s(S_T)}, 2
s_add_u32 {s(T0+5)}, {s(T0+5)}, {s(S_MG)}
s_lshl_b32 {s(P_BX)}, {s(T0+5)}, 13
s_lshl_b32 {s(T0+6)}, s2, 2
s_add_u32 {s(T0+6)}, {s(T0+6)}, {s(S_MG)}
s_movk_i32 {s(S_U0)}, 3456
s_movk_i32 {s(P_BX+1)}, {(1<<16)//27+1}
s_cmp_lt_u32 {s(T0+6)}, 540
s_cselect_b32 {s(R_W2)}, {s(P_W2)}, {s(P_W1)}
s_cselect_b32 {s(R_W2+1)}, {s(P_W2+1)}, {s(P_W1+1)}
s_mov_b32 {s(R_W2+2)}, 2211840
s_mov_b32 {s(R_W2+3)}, 0x20000
s_cselect_b32 {s(S_U0)}, 1280, {s(S_U0)}
s_cselect_b32 {s(T0+5)}, 0, 540
s_cselect_b32 {s(P_BX+1)}, {(1<<16)//10+1}, {s(P_BX+1)}
s_sub_u32 {s(T0+5)}, {s(T0+6)}, {s(T0+5)}
s_mul_i32 {s(P_BX+1)}, {s(P_BX+1)}, {s(T0+5)}
s_lshr_b32 {s(P_BX+1)}, {s(P_BX+1)}, 16
s_mul_i32 {s(P_BX+1)}, {s(P_BX+1)}, {s(S_U0)}
s_mul_i32 {s(P_BX+1)}, {s(P_BX+1)}, 31
s_lshl_b32 {s(T0+5)}, {s(T0+5)}, 7
s_add_u32 {s(P_BX+1)}, {s(P_BX+1)}, {s(T0+5)}''')
            srd(a, R_B1, P_WO, None, 819200)
        if i == OPT.get('lt', 1) - 20: a(ltouch)
        if i == OPT.get('wq0at', 7): a(wq_dma(range(3)))
        if i == OPT.get('lt', 1) - 10: a(ltouch)
        if i == 8: a(wq_dma(range(3, 3 + NQ8)))
    tmp = vTmp
    a(f's_mov_b32 {s(T0+4)}, {fhex(1/640)}\ns_mov_b32 {s(T0+5)}, {fhex(1e-5)}')
    SS = []
    for m in range(2):
        G = gram + 4 * m; sm = rsum + 4 * m; sq = tmp + 4 * m + 1; o = tmp + 4 * m + 2
        SS.append(f"""v_cndmask_b32 {v(sq)}, {v(G)}, {v(G+1)}, {s(M_A,2)}
v_cndmask_b32 {v(sq)}, {v(sq)}, {v(G+2)}, {s(M_B,2)}
v_cndmask_b32 {v(sq)}, {v(sq)}, {v(G+3)}, {s(T0+2,2)}
v_mul_f32 {v(sm)}, {s(T0+4)}, {v(sm)}
v_mul_f32 {v(sq)}, {s(T0+4)}, {v(sq)}
v_fma_f32 {v(sq)}, -{v(sm)}, {v(sm)}, {v(sq)}
v_max_f32 {v(sq)}, 0, {v(sq)}
v_add_f32 {v(sq)}, {s(T0+5)}, {v(sq)}
v_rsq_f32 {v(o)}, {v(sq)}
v_mul_f32 {v(o+1)}, -{v(sm)}, {v(o)}""".split('\n'))
    for x, y in zip(*SS): a(x); a(y)
    a(f's_mov_b64 exec, {s(T0,2)}')
    for m in range(2):
        a(f'ds_write2_b32 {v(aST)}, {v(tmp+4*m+2)}, {v(tmp+4*m+3)} offset0:{16*m} offset1:{128+16*m}')
    a('s_mov_b64 exec, -1')
    a(f"""v_readfirstlane_b32 {s(T0+4)}, {v(vD10)}
s_cmp_ge_u32 {s(T0+4)}, {ZBYTES//1024}
s_cbranch_scc1 L_zok
s_mov_b32 {s(T0+5)}, 0x400000
L_zpoll:
buffer_load_dword {v(vD10)}, {v(zp)}, {s(R_DBG,4)}, 0 offen sc1
s_waitcnt vmcnt(0)
v_readfirstlane_b32 {s(T0+4)}, {v(vD10)}
s_sub_u32 {s(T0+5)}, {s(T0+5)}, 1
s_cmp_eq_u32 {s(T0+5)}, 0
s_cbranch_scc1 L_zok
s_cmp_lt_u32 {s(T0+4)}, {ZBYTES//1024}
s_cbranch_scc1 L_zpoll
L_zok:""")
    a(wq_dma(range(3 + NQ8, 3 + NQ8 + NQ1)))
    a('s_waitcnt lgkmcnt(0)')
    i_le = stamp('p1loop')
    a('s_barrier')
    QD = wq_dma(range(3 + NQ8 + NQ1, 10))
    va.reset(gram)
    stt = vX
    for m in range(2):
        a(f'ds_read2_b32 {v(stt+2*m,2)}, {v(aST)} offset0:{16*m} offset1:{128+16*m}')
    acc = va.a(24, 4); csq = va.a(12, 4); fq = [va.a(12, 4), vTmp - 0]
    fq[1] = None
    fq1 = [vTmp, vTmp + 4, vW + 0]
    assert vW % 2 == 0
    FQ = lambda b, t: (fq[0] + 4 * t) if b == 0 else fq1[t]
    def qreads(n):
        q = n >> 1; pos = WQPOS[q]; st_ = 3 if pos >= SP else 0; off = pos - (SP if pos >= SP else 2 * SA) + 4096 * (n & 1)
        return [f'ds_read_b64_tr_b16 {v(FQ(n&1,t)+2*jh,2)}, {v(aQ+st_+t)} offset:{off + 512*jh}' for t in range(3) for jh in range(2)]
    groups = {0: (2, 0), 6: (6, 4), 14: (9, 8)}
    def qsync(n):
        ql, fo = groups[n]
        if OPT.get('fine'): stamp(f'q{n}a')
        a(f';@wait q{ql}'); larrive(vFL, F_WQ + fo); lwait(vFL, F_WQ + fo, f'q{n}', vD10)
        if OPT.get('fine'): stamp(f'q{n}b')
    LT = OPT.get('lt', 1)
    if LT == 2: a(ltouch)
    if LT: a(QD); QD = []
    if LT == 1: a(ltouch)
    if LT == 3: a(ltouch.split('\n')[2:4])
    if LT == 5: a(ltouch.split('\n')[0:2] + ltouch.split('\n')[4:])
    if OPT.get('holdb', 0): lwait(vFL, F_KVR, 'hb', vD10)
    qsync(0)
    a(qreads(0))
    for n in range(20):
        M = []
        for t in range(3):
            for m in range(2):
                d = v(acc + (2 * t + m) * 4, 4)
                M.append(f'{MF} {d}, {v(FQ(n&1,t),4)}, {v(XR+8*n+4*m,4)}, {d if n else 0}')
            M.append(f'{MF} {v(csq+4*t,4)}, {v(FQ(n&1,t),4)}, {v(vONE,4)}, {v(csq+4*t,4) if n else 0}')
        if n + 1 in groups:
            a(QD); QD = []
            a(M[:3]); qsync(n + 1); a(weave(M[3:], qreads(n + 1)))
        elif n < 19:
            k = OPT.get('qdper', 3); a(weave(M, qreads(n + 1) + QD[:k])); QD = QD[k:]
        else: a(M)
    larrive(vFL, F_PB)
    stamp('passB')
    va.reset(XR)
    kc = va.a(6, 2); cL, cE6L, e6v = kc, kc + 2, kc + 4
    tmp = va.a(16, 4); pk = va.a(12, 4); kvr = va.a(16, 4); fr = va.a(12, 4); Dq = va.a(32, 4); O = va.a(8, 4); tt = va.a(8, 2); cden = va.a(4, 4)
    aPA = va.a(); aSB = va.a(); vL4 = va.a(); OS = va.a(2)
    a(f"""v_mov_b32 {v(cL)}, {fhex(LOG2E)}
v_mov_b32 {v(cE6L)}, {fhex(-1e-6*LOG2E)}
v_mov_b32 {v(e6v)}, {fhex(1e-6)}
v_mov_b32 {v(cden)}, {fhex(1e-6)}
v_mov_b32 {v(cden+1)}, {fhex(1e-6)}
v_mov_b32 {v(cden+2)}, 0
v_mov_b32 {v(cden+3)}, 0
v_lshlrev_b32 {v(vL4)}, 2, {v(vL)}
s_xor_b32 {s(T0+2)}, {s(S_HP)}, {QXOR}
s_lshl_b32 {s(T0)}, {s(S_MG)}, 1
s_lshl_b32 {s(T0+1)}, {s(S_RT1)}, 3
s_add_u32 {s(T0)}, {s(T0)}, {s(T0+1)}
s_lshl_b32 {s(T0)}, {s(T0)}, 4
s_add_u32 {s(T0)}, {s(T0)}, {s(T0+2)}
s_mul_i32 {s(T0)}, {s(T0)}, 1280
s_add_u32 {s(T0)}, {s(T0)}, {OFF_O}
s_add_u32 {s(T0+1)}, {s(T0)}, {16*1280}
s_lshl_b32 {s(T0+3)}, {s(T0+2)}, 7
s_add_u32 {s(T0+3)}, {s(T0+3)}, {OFF_CA}
s_lshl_b32 {s(T0+2)}, {s(T0+2)}, 12
s_add_u32 {s(T0+2)}, {s(T0+2)}, {OFF_KV}""")
    a(mk(M_A, lambda l: (l >> 4) == 0)); a(mk(M_B, lambda l: (l >> 4) == 1))
    a(mk(M_C, lambda l: ((l >> 4) == 0 and (l & 1) == 0) or ((l >> 4) == 1 and (l & 1) == 1)))
    a(mk(M_D, lambda l: (l & 1) == 0))
    dst = {1: 0, 0: 2, 2: 4}
    for t in range(3):
        c = csq + 4 * t
        for m in range(2):
            for i in (0, 2):
                a(f'v_pk_fma_f32 {v(tmp+8*m+i,2)}, {v(stt+2*m,2)}, {v(c+i,2)}, {v(e6v,2)} op_sel:[1,0,0] op_sel_hi:[1,1,0]')
        for m in range(2):
            x = acc + (2 * t + m) * 4
            for i in (0, 2):
                a(f'v_pk_fma_f32 {v(x+i,2)}, {v(x+i,2)}, {v(stt+2*m,2)}, {v(tmp+8*m+i,2)} op_sel_hi:[1,0,1]')
        P = [phi4(acc + (2 * t + m) * 4, tmp + 8 * m + 4, cL, cE6L, e6v) for m in range(2)]
        for x, y in zip(*P): a(x); a(y)
        for m in range(2):
            x = acc + (2 * t + m) * 4; o = pk + 6 * m + dst[t]
            a(f'v_cvt_pk_bf16_f32 {v(o)}, {v(x)}, {v(x+1)}\nv_cvt_pk_bf16_f32 {v(o+1)}, {v(x+2)}, {v(x+3)}')
    stamp('qepi')
    a(f's_cmp_lg_u32 {s(S_W)}, 0\ns_cbranch_scc1 L_sA_o\n;@opt on'); a(gpoll('sA', T0+3))
    a(f'v_mov_b32 {v(tmp)}, 4\nds_write_b32 {v(vFL)}, {v(tmp)} offset:{F_GA}\ns_branch L_sA_j\nL_sA_o:')
    lwait(vFL, F_GA, 'ga', tmp)
    a('L_sA_j:')
    stamp('syncA')
    for b in (3, 2, 0, 1):
        a(f'buffer_load_dwordx4 {v(kvr+4*b,4)}, {v(vL16)}, {s(R_WS,4)}, {s(T0+2)} offen offset:{1024*b} sc1')
    M0, M1, EM, XX = kvr, kvr + 4, kvr + 8, kvr + 12
    em, xx, tx = tt, tt + 2, tt + 4; f = fr
    for i in range(2): a(f'v_cvt_pk_bf16_f32 {v(xx+i)}, {v(XX+2*i)}, {v(XX+2*i+1)}')
    for i in range(2): a(f'v_cvt_pk_bf16_f32 {v(em+i)}, {v(EM+2*i)}, {v(EM+2*i+1)}')
    for i in range(2): a(f'v_permlane32_swap_b32 {v(xx+i)}, {v(tx+i)}')
    for i in range(2): a(f'v_cndmask_b32 {v(tx+i)}, 0, {v(tx+i)}, {s(M_C,2)}')
    for i in range(2):
        a(f'v_cndmask_b32 {v(f+8+i)}, {v(tx+i)}, {v(em+i)}, {s(M_D,2)}')
        a(f'v_cndmask_b32 {v(f+10+i)}, {v(em+i)}, {v(tx+i)}, {s(M_D,2)}')
    for i in range(2):
        a(f'v_cndmask_b32 {v(f+2+i)}, 0, {v(xx+i)}, {s(M_A,2)}')
        a(f'v_cndmask_b32 {v(f+4+i)}, 0, {v(xx+i)}, {s(M_B,2)}')
    X0 = lambda m: v(pk + 6 * m, 4); X1 = lambda m: v(pk + 6 * m + 2, 4)
    for m in range(2):
        a(f'{MF} {v(Dq+16*m+8,4)}, {v(f+8,4)}, {X0(m)}, {v(cden,4)}\n{MF} {v(Dq+16*m+12,4)}, {v(f+8,4)}, {X1(m)}, {v(cden,4)}')
    for i in range(2): a(f'v_cvt_pk_bf16_f32 {v(f+i)}, {v(M0+2*i)}, {v(M0+2*i+1)}')
    for i in range(2): a(f'v_cvt_pk_bf16_f32 {v(f+6+i)}, {v(M1+2*i)}, {v(M1+2*i+1)}')
    for m in range(2):
        a(f'{MF} {v(Dq+16*m,4)}, {v(f,4)}, {X0(m)}, 0\n{MF} {v(Dq+16*m+4,4)}, {v(f+4,4)}, {X1(m)}, 0')
    for m in range(2):
        d = Dq + 16 * m
        a(f'v_rcp_f32 {v(tt+4*m)}, {v(d+8)}\nv_rcp_f32 {v(tt+4*m+1)}, {v(d+13)}')
    for m in range(2):
        d = Dq + 16 * m
        a(f'v_mul_f32 {v(tt+4*m+2)}, {v(tt+4*m)}, {v(d+10)}\nv_mul_f32 {v(tt+4*m+3)}, {v(tt+4*m+1)}, {v(d+15)}')
        a(f'v_cvt_pk_bf16_f32 {v(OS+m)}, {v(tt+4*m+2)}, {v(tt+4*m+3)}')
        a(f'buffer_store_dword {v(OS+m)}, {v(vL4)}, {s(R_WS,4)}, {s(T0+m)} offen offset:1024 sc1')
    for m in range(2):
        d = Dq + 16 * m
        for i in (0, 2): a(f'v_pk_mul_f32 {v(d+i,2)}, {v(d+i,2)}, {v(tt+4*m,2)} op_sel_hi:[1,0]')
        for i in (4, 6): a(f'v_pk_mul_f32 {v(d+i,2)}, {v(tt+4*m,2)}, {v(d+i,2)} op_sel:[1,0] op_sel_hi:[1,1]')
        for i in range(4): a(f'v_cvt_pk_bf16_f32 {v(O+4*m+i)}, {v(d+2*i)}, {v(d+2*i+1)}')
        a(f'buffer_store_dwordx4 {v(O+4*m,4)}, {v(vL16)}, {s(R_WS,4)}, {s(T0+m)} offen sc1')
    stamp('ost')
    p2_setup()
    p2_scalars()
    last_signals(vFL, F_DRB, 'B', vD10, S_RT1, OFF_CB)
    stamp('sigB')
    a('s_branch L_p1join')

    va.reset(base_mark)
    a('L_p1c:\n;@restore p1')
    stamp('start', 0)
    aX = vHR; vFL = vHR + 4
    a(f'v_mov_b32 {v(t0)}, 0\nv_mov_b32 {v(t1)}, 0\nv_mov_b32 {v(t2)}, 0\nv_mov_b32 {v(t3)}, 0\nv_mov_b32 {v(vFL)}, {FLG}\nv_mov_b32 {v(vFL+1)}, 1')
    a(f'ds_write_b128 {v(vFL)}, {v(t0,4)}\nds_write_b128 {v(vFL)}, {v(t0,4)} offset:16\nds_write_b128 {v(vFL)}, {v(t0,4)} offset:32')
    for i in range(4): a(f'v_mov_b32 {v(vONE+i)}, 0x3f803f80')
    x_addrs(aX)
    aT = va.a(10)
    w_addrs(aT, aT + 1, aT + 4, 0, RK)
    a(f"""v_xor_b32 {v(aT+2)}, 16, {v(aT)}
v_xor_b32 {v(aT+3)}, 16, {v(aT+1)}
v_xor_b32 {v(t0)}, 16, {v(aT+4)}
v_add_u32 {v(aT+2)}, {RV-RK}, {v(aT+2)}
v_add_u32 {v(aT+3)}, {RV-RK}, {v(aT+3)}
v_add_u32 {v(t0)}, {RV-RK}, {v(t0)}
v_cmp_lt_u32 vcc, 1, {v(t6)}
v_cndmask_b32 {v(aT+4)}, {v(aT+4)}, {v(t0)}, vcc""")
    for i in range(5): a(f'v_add_u32 {v(aT+5+i)}, {2*SA}, {v(aT+i)}')
    raw = va.a(32, 4); vPK = va.a(4); PKO = P_BX; PKI = P_BX + 1; S_GW = S_U1; S_PK2 = M_D
    kc = va.a(6, 2); cL, cE6L, e6v, zv = kc, kc + 2, kc + 4, kc + 5
    aST = va.a(); aW1 = va.a(); aW2 = va.a(); aRD = va.a(); aAT = va.a(); aSA = va.a(); vDW = va.a(5); aTW = va.a(3)
    def rawloads():
        for r in range(4):
            a(f'buffer_load_dwordx4 {v(raw+4*r,4)}, {v(vPK)}, {s(R_W2,4)}, {s(PKO)} offen')
            if r < 3: a(f's_add_u32 {s(PKO)}, {s(PKO)}, {s(PKI)}')
        a(f'''s_lshl_b32 {s(S_PK2)}, {s(S_MG)}, 8
s_xor_b32 {s(T0+5)}, s2, 0xe0
s_add_u32 {s(S_PK2)}, {s(S_PK2)}, {s(T0+5)}
s_add_u32 {s(T0+5)}, {s(S_PK2)}, 484
s_mul_i32 {s(PKO)}, {s(T0+5)}, {(1<<16)//27+1}
s_lshr_b32 {s(PKO)}, {s(PKO)}, 16
s_mul_i32 {s(PKO)}, {s(PKO)}, {31*3456}
s_lshl_b32 {s(T0+5)}, {s(T0+5)}, 7
s_add_u32 {s(PKO)}, {s(PKO)}, {s(T0+5)}
s_cmp_ge_u32 {s(S_PK2)}, 56
s_cselect_b32 {s(PKO)}, 0x1000000, {s(PKO)}''')
        for r in range(4):
            a(f'buffer_load_dwordx4 {v(raw+16+4*r,4)}, {v(vPK+1)}, {s(R_W1,4)}, {s(PKO)} offen')
            if r < 3: a(f's_add_u32 {s(PKO)}, {s(PKO)}, {8*3456}')
    def setupA():
        a('s_waitcnt lgkmcnt(0)')
        srd(a, R_WS, P_WS, None, WS_REC)
        a(f"""s_lshl_b32 {s(S_GW)}, s2, 2
s_add_u32 {s(S_GW)}, {s(S_GW)}, {s(S_MG)}
s_lshl_b32 {s(T0+4)}, {s(S_GW)}, 10
s_add_u32 {s(T0+5)}, {s(T0+4)}, {OFF_KV}
s_cmp_lt_u32 {s(S_GW)}, 64
s_cselect_b32 {s(T0+4)}, {s(T0+5)}, {s(T0+4)}
s_cmp_ge_u32 {s(S_GW)}, {ZBYTES//1024}
s_cselect_b32 {s(T0+4)}, {OOR}, {s(T0+4)}
v_mov_b32 {v(t0)}, 0
v_mov_b32 {v(t1)}, 0
v_mov_b32 {v(t2)}, 0
v_mov_b32 {v(t3)}, 0
buffer_store_dwordx4 {v(t0,4)}, {v(vL16)}, {s(R_WS,4)}, {s(T0+4)} offen sc1""")
        a(f'''v_lshrrev_b32 {v(t4)}, 3, {v(vL)}
v_and_b32 {v(t5)}, 7, {v(vL)}
v_lshlrev_b32 {v(t5)}, 4, {v(t5)}
s_movk_i32 {s(T0+4)}, 3456
s_movk_i32 {s(PKO)}, {(1<<16)//27+1}
s_cmp_lt_u32 {s(S_GW)}, 540
s_cselect_b32 {s(R_W2)}, {s(P_W2)}, {s(P_W1)}
s_cselect_b32 {s(R_W2+1)}, {s(P_W2+1)}, {s(P_W1+1)}
s_mov_b32 {s(R_W2+2)}, 2211840
s_mov_b32 {s(R_W2+3)}, 0x20000
s_cselect_b32 {s(T0+4)}, 1280, {s(T0+4)}
s_cselect_b32 {s(T0+5)}, 0, 540
s_cselect_b32 {s(PKO)}, {(1<<16)//10+1}, {s(PKO)}
v_mad_u32_u24 {v(vPK)}, {v(t4)}, {s(T0+4)}, {v(t5)}
s_lshl_b32 {s(PKI)}, {s(T0+4)}, 3
s_sub_u32 {s(T0+5)}, {s(S_GW)}, {s(T0+5)}
s_mul_i32 {s(PKO)}, {s(PKO)}, {s(T0+5)}
s_lshr_b32 {s(PKO)}, {s(PKO)}, 16
s_mul_i32 {s(PKO)}, {s(PKO)}, {s(T0+4)}
s_mul_i32 {s(PKO)}, {s(PKO)}, 31
s_lshl_b32 {s(T0+5)}, {s(T0+5)}, 7
s_add_u32 {s(PKO)}, {s(PKO)}, {s(T0+5)}
s_movk_i32 {s(T0+4)}, 3456
v_mad_u32_u24 {v(vPK+1)}, {v(t4)}, {s(T0+4)}, {v(t5)}''')
        assert all((j * ((1<<16)//10+1)) >> 16 == j // 10 for j in range(540)) and all((j * ((1<<16)//27+1)) >> 16 == j // 27 for j in range(540))
        srd(a, R_W1, P_W1, None, 2211840)
        srd(a, R_B1, P_B1, None, 3456)
        srd(a, R_X, P_B2, None, 1280)
        a(f'''v_lshlrev_b32 {v(t4)}, 7, {v(vL)}
s_cmp_lg_u32 {s(S_W)}, 4
s_cbranch_scc1 L_ntb
buffer_load_dword {v(vDUM)}, {v(t4)}, {s(R_B1,4)}, 0 offen
buffer_load_dword {v(vDUM)}, {v(t4)}, {s(R_X,4)}, 0 offen
L_ntb:''')
    def setupC():
        late_ids()
        if OPT.get('tlb', 1):
            srd(a, R_WQ, P_W2, None, 2211840)
            a(f'''s_lshl_b32 {s(T0+4)}, {s(S_T)}, 2
s_add_u32 {s(T0+4)}, {s(T0+4)}, {s(S_MG)}
s_cmp_lg_u32 {s(T0+4)}, {OPT.get('tlbw', 33)}
s_cbranch_scc1 L_ntlb
v_lshlrev_b32 {v(t0)}, 20, {v(vL)}
v_mov_b32 {v(t1)}, 0
s_mov_b64 exec, 0xaaaaaa
buffer_atomic_add {v(t1)}, {v(t0)}, {s(R_WS,4)}, 0 offen offset:4
s_mov_b64 exec, 7
buffer_load_dword {v(vDUM)}, {v(t0)}, {s(R_OUT,4)}, 0 offen
buffer_load_dword {v(vDUM)}, {v(t0)}, {s(R_W1,4)}, 0 offen
buffer_load_dword {v(vDUM)}, {v(t0)}, {s(R_WQ,4)}, 0 offen
buffer_load_dword {v(vDUM)}, {v(t0)}, {s(R_WO,4)}, 0 offen
s_mov_b64 exec, -1
L_ntlb:''')
        a(mk(M_A, lambda l: (l & 15) >= 8)); a(mk(M_B, lambda l: (l >> 4) == 1)); a(mk(M_C, lambda l: ((l & 15) >> 2) & 1))
        a(f"""v_mov_b32 {v(cL)}, {fhex(LOG2E)}
v_mov_b32 {v(cE6L)}, {fhex(-1e-6*LOG2E)}
v_mov_b32 {v(e6v)}, {fhex(1e-6)}
v_cndmask_b32 {v(zv)}, {v(e6v)}, 0, {s(M_A,2)}
s_lshl_b32 {s(T0+4)}, {s(S_MG)}, 7
s_add_u32 {s(T0+4)}, {s(T0+4)}, {ST}
v_and_b32 {v(t0)}, 48, {v(vL)}
v_add_u32 {v(aST)}, {s(T0+4)}, {v(t0)}
s_mul_i32 {s(T0+4)}, {s(S_MG)}, 5120
s_add_u32 {s(T0+4)}, {s(T0+4)}, {KVR}
v_add_u32 {v(aW1)}, {s(T0+4)}, {v(vL16)}
v_and_b32 {v(t1)}, 3, {v(vL)}
v_bfe_u32 {v(t2)}, {v(vL)}, 2, 2
v_lshl_add_u32 {v(t1)}, {v(t1)}, 2, {v(t2)}
v_add_u32 {v(t1)}, {v(t1)}, {v(t0)}
v_lshl_add_u32 {v(aW2)}, {v(t1)}, 4, {s(T0+4)}
s_lshl_b32 {s(T0+4)}, {s(S_MG)}, 10
v_lshl_add_u32 {v(aRD)}, {v(vL)}, 2, {s(T0+4)}
s_lshl_b32 {s(T0+5)}, {s(S_HP)}, 12
s_add_u32 {s(T0+5)}, {s(T0+5)}, {OFF_KV}
v_add_u32 {v(aAT)}, {s(T0+5)}, {v(aRD)}
s_lshl_b32 {s(T0+4)}, {s(S_MG)}, 11
s_add_u32 {s(T0+4)}, {s(T0+4)}, {PKS}
v_add_u32 {v(vPK+2)}, {s(T0+4)}, {v(vL16)}
v_lshrrev_b32 {v(t0)}, 2, {v(vL)}
v_lshlrev_b32 {v(t0)}, 7, {v(t0)}
v_and_b32 {v(t1)}, 3, {v(vL)}
v_lshl_add_u32 {v(t0)}, {v(t1)}, 3, {v(t0)}
v_add_u32 {v(vPK+3)}, {s(T0+4)}, {v(t0)}
s_lshl_b32 {s(S_U0)}, {s(S_GW)}, 12
s_add_u32 {s(S_U0)}, {s(S_U0)}, {OFF_W2P}
s_lshl_b32 {s(T0+4)}, {s(S_MG)}, 6
v_add_u32 {v(t0)}, {s(T0+4)}, {v(vL)}
s_movk_i32 {s(T0+4)}, 1120""")
        for j in range(5):
            a(f'''v_mul_u32_u24 {v(t1)}, 6554, {v(t0)}
v_lshrrev_b32 {v(t1)}, 16, {v(t1)}
v_lshlrev_b32 {v(t2)}, 4, {v(t0)}
v_mad_u32_u24 {v(vDW+j)}, {v(t1)}, {s(T0+4)}, {v(t2)}
v_add_u32 {v(t0)}, 256, {v(t0)}''')
        srd(a, R_B1, P_WO, None, 819200)
        srd(a, R_X, P_W2, None, 2211840)
        srd(a, R_WQ, P_WQKV, None, 2457600)
        a(f'''s_lshl_b32 {s(T0+4)}, {s(S_RT1)}, 3
s_lshr_b32 {s(T0+5)}, {s(S_HP)}, 1
s_add_u32 {s(T0+4)}, {s(T0+4)}, {s(T0+5)}
s_mul_i32 {s(T0+5)}, {s(T0+4)}, 43
s_lshr_b32 {s(T0+5)}, {s(T0+5)}, 8
s_mul_i32 {s(T0+5)}, {s(T0+5)}, 6
s_sub_u32 {s(T0+3)}, {s(T0+4)}, {s(T0+5)}
s_and_b32 {s(T0+5)}, {s(S_HP)}, 7
s_bitcmp1_b32 0xa5, {s(T0+5)}
s_cselect_b32 {s(T0+3)}, {s(T0+3)}, 63
s_lshl_b32 {s(T0+4)}, {s(T0+4)}, 2
s_add_u32 {s(T0+4)}, {s(T0+4)}, {s(S_MG)}
s_mul_i32 {s(T0)}, {s(T0+4)}, {34*128}
s_mul_i32 {s(T0+1)}, {s(T0+4)}, {13*128}
v_min_u32 {v(aTW)}, 33, {v(vL)}
v_lshlrev_b32 {v(aTW)}, 7, {v(aTW)}
v_min_u32 {v(aTW+1)}, 12, {v(vL)}
s_mul_i32 {s(T0+5)}, {s(T0+4)}, 13
v_add_u32 {v(t0)}, {s(T0+5)}, {v(aTW+1)}
v_lshlrev_b32 {v(aTW+1)}, 7, {v(aTW+1)}
v_mul_u32_u24 {v(t1)}, 6554, {v(t0)}
v_lshrrev_b32 {v(t1)}, 16, {v(t1)}
v_lshlrev_b32 {v(t0)}, 7, {v(t0)}
s_movk_i32 {s(T0+5)}, 2560
v_mad_u32_u24 {v(aTW+2)}, {v(t1)}, {s(T0+5)}, {v(t0)}''')
        assert all((u * 43) >> 8 == u // 6 for u in range(128)) and all((u * 6554) >> 16 == u // 10 for u in range(6700))
    acc = va.a(40, 4); csa = va.a(20, 4); pkf = va.a(16, 4)
    fX = [va.a(8, 4), va.a(8, 4)]; fW = [va.a(20, 4), va.a(20, 4)]
    A_ = lambda t, m: acc + (t * 2 + m) * 4
    zsig = f"""s_cmp_ge_u32 {s(S_GW)}, {ZBYTES//1024}
s_cbranch_scc1 L_nozsig
v_mov_b32 {v(t0)}, 0
s_mov_b64 exec, 1
buffer_atomic_add {v(vFL+1)}, {v(t0)}, {s(R_DBG,4)}, 0 offen sc1
s_mov_b64 exec, -1
L_nozsig:"""
    def packjob(rw, dst):
        for hf in range(2):
            for r in range(2): a(f'ds_write_b128 {v(vPK+2)}, {v(rw+8*hf+4*r,4)} offset:{1024*r}')
            for t in range(4): a(f'ds_read_b64_tr_b16 {v(pkf+4*t+2*hf,2)}, {v(vPK+3)} offset:{32*t}')
        for t in range(4):
            a(f'buffer_store_dwordx4 {v(pkf+4*t,4)}, {v(vL16)}, {s(R_WS,4)}, {dst} offen offset:{1024*t} sc1')
    if OPT.get('sa', 0) < 0: setupA()
    if OPT.get('sc', 1) < 0: setupC()
    stamp('loopstart', i_ls)
    def reads(n):
        sl = (n // 2) % 4; j = n & 1; b = n & 1
        L = [f'ds_read_b128 {v(fX[b]+4*m,4)}, {v(aX+2*(sl>>1)+j)} offset:{(sl&1)*SA + 2048*m}' for m in range(2)]
        for t in range(5):
            for jh in range(2):
                L.append(f'ds_read_b64_tr_b16 {v(fW[b]+4*t+2*jh,2)}, {v(aT+5*(sl>>1)+t)} offset:{(sl&1)*SA + 4096*j + 512*jh}')
        return L
    def mfmas(n):
        b = n & 1; L = []
        for t in ((0, 1, 2, 3, 4) if n < 19 else (0, 4, 2, 1, 3)):
            L.append(f'{MF} {v(csa+4*t,4)}, {v(vONE,4)}, {v(fW[b]+4*t,4)}, {v(csa+4*t,4) if n else 0}')
            for m in range(2):
                d = v(A_(t, m), 4)
                L.append(f'{MF} {d}, {v(fX[b]+4*m,4)}, {v(fW[b]+4*t,4)}, {d if n else 0}')
        return L
    a('s_waitcnt lgkmcnt(0)\ns_barrier')
    if OPT.get('fine'): stamp('b0')
    a(reads(0))
    PJ = OPT.get('pjat', 6)
    for n in range(20):
        if n & 1 and n < 19:
            if OPT.get('fine'): stamp(f'b{(n+1)//2}pre')
            a('s_barrier')
            if OPT.get('fine'): stamp(f'b{(n+1)//2}')
        a('s_waitcnt lgkmcnt(0)')
        a(weave(mfmas(n), reads(n + 1) if n < 19 else []))
        if n == OPT.get('sa', 0): setupA()
        if n == OPT.get('sc', 1): setupC()
        W0_ = OPT.get('wm0', 4)
        if OPT.get('warm', 0) and W0_ <= n < W0_ + 12 and (n - W0_) % 2 == 0:
            a(f'''s_cmp_lg_u32 {s(T0+3)}, {(n-W0_)//2}
s_cbranch_scc1 L_wm{n}
buffer_load_dword {v(vDUM)}, {v(aTW+2)}, {s(R_WQ,4)}, 0 offen
buffer_load_dword {v(vDUM)}, {v(aTW+1)}, {s(R_B1,4)}, {s(T0+1)} offen
buffer_load_dword {v(vDUM)}, {v(aTW)}, {s(R_W1,4)}, {s(T0)} offen
buffer_load_dword {v(vDUM)}, {v(aTW)}, {s(R_X,4)}, {s(T0)} offen
L_wm{n}:''')
        if n == OPT.get('zs', 3):
            a('s_waitcnt vmcnt(0)')
            a(zsig)
    stamp('p1loop', i_le)
    a('s_setprio 1\ns_barrier')
    if OPT.get('fine'): stamp('B2')
    RAW = OPT.get('raw', 3)
    def cold():
        rawloads()
    stt = pkf; tmp = va.a(16, 4); op = fW[0] - 16; D = fW[0] + 8
    assert op == fX[0] and fW[1] == fW[0] + 20
    for m in range(2):
        a(f'ds_read_b128 {v(stt+8*m+4,4)}, {v(aST)} offset:{512+64*m}')
        a(f'ds_read_b128 {v(stt+8*m,4)}, {v(aST)} offset:{64*m}')
    if RAW == 1: cold()
    KA, KB, VA_, VB, KVC, KVCp = [v(op + 4 * i, 4) for i in range(6)]
    prods = [(KA, VA_), (KB, VB), (KVC, VA_), (KVC, VB), (KA, KVCp), (KB, KVCp), (KVC, KVCp)]
    PM = lambda i: f'{MF} {v(D+4*i,4)}, {prods[i][0]}, {prods[i][1]}, 0'
    for t in (0, 4, 2, 1, 3):
        cp = v(csa + 4 * t, 2)
        PKE = OPT.get('pke', 0)
        for m in range(2):
            tt_ = tmp + 8 * m
            if PKE:
                for i in (0, 2):
                    if t in (2, 3):
                        a(f'v_pk_mul_f32 {v(tt_+i,2)}, {cp}, {v(stt+8*m+4+i,2)}')
                    else:
                        zs = 1 if t == 4 else 0
                        a(f'v_pk_fma_f32 {v(tt_+i,2)}, {cp}, {v(stt+8*m+4+i,2)}, {v(e6v,2)} op_sel:[0,0,{zs}] op_sel_hi:[1,1,{zs}]')
            else:
                for i in range(4):
                    if t in (2, 3): a(f'v_mul_f32 {v(tt_+i)}, {v(csa+4*t)}, {v(stt+8*m+4+i)}')
                    else: a(f'v_fma_f32 {v(tt_+i)}, {v(csa+4*t)}, {v(stt+8*m+4+i)}, {v(zv if t == 4 else e6v)}')
        if t == 2: a(PM(4)); a(PM(6))
        if t == 1: a(PM(0)); a(PM(2))
        if t == 3: a(PM(5))
        for m in range(2):
            x = A_(t, m); tt_ = tmp + 8 * m
            if PKE:
                for i in (0, 2): a(f'v_pk_fma_f32 {v(x+i,2)}, {v(x+i,2)}, {v(stt+8*m+i,2)}, {v(tt_+i,2)}')
            else:
                for i in range(4): a(f'v_fma_f32 {v(x+i)}, {v(x+i)}, {v(stt+8*m+i)}, {v(tt_+i)}')
        if t == 4:
            for m in range(2):
                x = A_(t, m)
                a(f'v_cvt_pk_bf16_f32 {v(op+20+2*m)}, {v(x)}, {v(x+1)}\nv_cvt_pk_bf16_f32 {v(op+20+2*m+1)}, {v(x+2)}, {v(x+3)}')
        if t in (0, 1, 4):
            P = [phi4(A_(t, m), tmp + 8 * m + 4, cL, cE6L, e6v, PKE) for m in range(2)]
            for x, y in zip(*P): a(x); a(y)
        if t == 1: a(f'ds_write_b128 {v(aW1)}, {v(D,4)}')
        for m in range(2):
            x = A_(t, m)
            a(f'v_cvt_pk_bf16_f32 {v(op+4*t+2*m)}, {v(x)}, {v(x+1)}\nv_cvt_pk_bf16_f32 {v(op+4*t+2*m+1)}, {v(x+2)}, {v(x+3)}')
        if t == 4:
            for i in range(4): a(f'v_cndmask_b32 {v(op+20+i)}, {v(vONE)}, {v(op+20+i)}, {s(M_A,2)}')
    a(PM(3)); a(PM(1))
    for r in range(4): a(f'v_cndmask_b32 {v(D+16+r)}, {v(D+16+r)}, {v(D+20+r)}, {s(M_C,2)}')
    a(f'ds_write_b128 {v(aW2)}, {v(D+16,4)} offset:2048')
    for r in range(4): a(f'v_cndmask_b32 {v(D+8+r)}, {v(D+8+r)}, {v(D+12+r)}, {s(M_B,2)}')
    a(f"""ds_write_b128 {v(aW1)}, {v(D+8,4)} offset:3072
ds_write_b128 {v(aW2)}, {v(D+24,4)} offset:3584
ds_write_b128 {v(aW1)}, {v(D+4,4)} offset:1024""")
    if OPT.get('fine'): stamp('kvepi')
    larrive(vFL, F_KVR); lwait(vFL, F_KVR, 'kvr', vD10)
    if OPT.get('fine'): stamp('kvr')
    rd = acc
    for p in range(4):
        for hh in range(2): a(f'ds_read2st64_b32 {v(rd+4*p+2*hh,2)}, {v(aRD)} offset0:{p*20+2*hh} offset1:{p*20+2*hh+1}')
    for hh in (0, 2):
        a(f'v_pk_add_f32 {v(rd+hh,2)}, {v(rd+hh,2)}, {v(rd+4+hh,2)}\nv_pk_add_f32 {v(rd+8+hh,2)}, {v(rd+8+hh,2)}, {v(rd+12+hh,2)}')
    for hh in (0, 2):
        a(f'v_pk_add_f32 {v(rd+hh,2)}, {v(rd+hh,2)}, {v(rd+8+hh,2)}')
        for k in range(2): a(f'buffer_atomic_add_f32 {v(rd+hh+k)}, {v(aAT)}, {s(R_WS,4)}, 0 offen offset:{(hh+k)*256}')
    stamp('atomics')
    if RAW == 2: cold()
    a(f'''s_lshl_b32 {s(T0+6)}, {s(S_MG)}, 10
s_mul_i32 {s(T0+4)}, {s(S_MG)}, 20480
s_sub_u32 {s(T0+4)}, {s(S_RB)}, {s(T0+4)}
s_mul_i32 {s(T0+5)}, {s(S_CT)}, 160
s_sub_u32 {s(T0+5)}, {64*1280}, {s(T0+5)}''')
    srd(a, R_X, P_X, s(T0+4), s(T0+5))
    last_signals(vFL, F_DRA, 'A', vD10, S_HP, OFF_CA, ';@wait at')
    a('s_setprio 0')
    stamp('sigA')
    if RAW == 3: cold()
    THR = OPT.get('thr', 6)
    def wodma(H, ns, thr=THR):
        for n in ns:
            a(f's_add_u32 m0, {s(T0+6)}, {WO + (1-H)*51200 + n*4096}\ns_mov_b32 {s(T0+4)}, {H*320*1280 + (n//5)*128*1280}\n;@tag h{H}\n'
              f'buffer_load_dwordx4 {v(vDW + n%5)}, {s(R_WO,4)}, {s(T0+4)} offen lds')
            if thr is not None: a(f's_waitcnt vmcnt({thr})')
    wodma(1, [12] + list(range(5, 12)))
    larrive(vFL, F_PK)
    lwait(vFL, F_DRA, 'dra', vD10)
    wodma(1, range(5))
    lwait(vFL, F_PK, 'z12', vD10)
    lwait(vFL, F_PB, 'pb', vD10)
    wodma(0, range(13))
    larrive(vFL, F_H1)
    for n in range(3): a(f's_add_u32 m0, {s(T0+6)}, {XRL + n*4096}\ns_nop 0\nbuffer_load_dwordx4 {v(vDW+n)}, {s(R_X,4)}, 0 offen lds')
    packjob(raw, s(S_U0))
    a(f's_cmp_ge_u32 {s(S_PK2)}, 56\ns_cbranch_scc1 L_pk2b\ns_lshl_b32 {s(T0+4)}, {s(S_PK2)}, 12\ns_add_u32 {s(T0+4)}, {s(T0+4)}, {OFF_W2P + 1024*4096}')
    packjob(raw + 16, s(T0+4))
    a(';@opt off\nL_pk2b:')
    if OPT.get('fine'): stamp('packed')
    assert THR <= 7
    lwait(vFL, F_H1, 'h1', vD10)
    p2_setup()
    a(preread())
    p2_scalars()

    va.reset(xr_mark)
    a('L_p1join:\n;@clearv\n;@clearl')

    def wave_block(tag, cmp, body, other=None):
        a(f'{cmp}\ns_cbranch_scc1 L_{tag}_e\n;@opt on')
        a(body)
        if other is not None:
            a(f's_branch L_{tag}_j\nL_{tag}_e:'); a(other); a(f';@opt off\nL_{tag}_j:')
        else:
            a(f';@opt off\nL_{tag}_e:')
    def signal(tag, idx, base):
        wave_block(tag + 'sig', f's_cmp_lg_u32 {s(S_W)}, 7', [caddr(S_LB+1, idx, base), ssig(S_LB+1)])
    def poll(tag, idx, base):
        wave_block(tag + 'pol', f's_cmp_lg_u32 {s(S_W)}, 7', [caddr(T0+4, idx, base), gpoll(tag, T0+4)])
        a('s_waitcnt lgkmcnt(0)\ns_barrier')

    if stop_after < 2:
        a('s_waitcnt vmcnt(0)\ns_barrier')
    if stop_after >= 2:
        O = O2; OS = OS2; vL4 = vL4b
        a('s_waitcnt vmcnt(0)\ns_barrier')
        stamp('wolanded')
        wave_block('pks', f's_cmp_lg_u32 {s(S_W)}, 6', [caddr(T0+4, S_RT1, OFF_CP), f'''s_waitcnt lgkmcnt(0)
s_mov_b32 {s(S_LB)}, 1
s_atomic_add {s(S_LB)}, {s(P_WS,2)}, {s(T0+4)} glc
s_waitcnt lgkmcnt(0)
s_cmp_lg_u32 {s(S_LB)}, 15
s_cbranch_scc1 L_pks_e'''] + [f's_atomic_add s3, {s(P_WS,2)}, {OFF_CP + 2048 + 128*r}' for r in range(8)])
        a(f'ds_read_b64 {v(vXR,2)}, {v(axr_)}\nds_read_b64 {v(vXR+2,2)}, {v(axr_)} offset:32\nds_read_b64 {v(vXR+4,2)}, {v(axr_+1)}')
        wave_block('lpre', f's_cmp_ge_u32 {s(S_W)}, 4', preread())
        own = [acc2, acc2 + 4, acc2 + 16]
        for i in range(6):
            o = own[i // 2] + 2 * (i & 1)
            a(f'v_lshlrev_b32 {v(o)}, 16, {v(vXR+i)}\nv_and_b32 {v(o+1)}, 0xffff0000, {v(vXR+i)}')
        for i in range(4): a(f'v_mul_f32 {v(acc2+16+i)}, {s(E5)}, {v(acc2+16+i)}')
        poll('sB', S_GRP, OFF_CB)
        stamp('syncB')
        for j in range(8):
            o = (j % 3) * 1280
            a(f'buffer_load_dwordx4 {v(O+4*j,4)}, {v(vL16)}, {s(R_WS,4)}, {s(T0+2)} offen offset:{o} sc1')
            a(f'buffer_load_dword {v(OS+j)}, {v(vL4)}, {s(R_WS,4)}, {s(T0+2)} offen offset:{o+1024} sc1')
            if j % 3 == 2: a(f's_add_u32 {s(T0+2)}, {s(T0+2)}, 3840')
        a(stamp_txt('oiss', 'fine2'))
        W1POS = [106496 + 7168 * i for i in range(8)] + [7168 * i for i in range(5)] + [51200 + 7168 * i for i in range(5)] + [XC0, XC0 + 51200]
        def w1dma(kss, group=False):
            L = [f's_add_u32 m0, {s(S_MD)}, {W1POS[ks]}\ns_add_u32 {s(T0+4)}, {s(S_W1)}, {ks*110592}\n;@tag w1_{ks}\n'
                 f'buffer_load_dwordx4 {v(vL16)}, {s(R_WS,4)}, {s(T0+4)} offen sc1 lds' for ks in kss]
            if group: return L
            return [f's_cbranch_vccz L_w1s{ks}\n{x}\nL_w1s{ks}:' for ks, x in zip(kss, L)]
        a(stamp_txt('scal', 'fine2'))
        NA = OPT.get('nw1a', 9)
        steps = [('m', 0), ('m', 1), ('m', 2), ('m', 3), ('s', 0), ('m', 4), ('m', 5), ('m', 6), ('m', 7), ('s', 1)]
        WD = w1dma(range(NA)) if stop_after >= 3 else []
        W0 = 7
        for n, (kind, j) in enumerate(steps):
            X = v(O + 4 * j, 4) if kind == 'm' else v(OS + 4 * j, 4)
            order = range(5) if n < 9 else (2, 3, 4, 0, 1)
            M = [f'{MF} {v(acc2+4*t,4)}, {v(WB_(kind,j)+4*t,4)}, {X}, {v(acc2+4*t,4) if (n or t in (0, 1, 4)) else 0}' for t in order]
            F = wread('m', 5 + n) if n in (1, 2) else []
            if n >= W0:
                k = OPT.get('wdk', 2); F = F + WD[:k]; WD = WD[k:]
            if n == 7 and W0 == 7:
                wave_block('sPpol', f's_cmp_lg_u32 {s(S_W)}, 0', [f's_and_b32 {s(T0+5)}, s2, 7', caddr(T0+4, T0+5, OFF_CP + 2048), gpoll('sP', T0+4)])
            if n == W0: a(f's_cmp_lg_u32 {s(S_W)}, 7\ns_cselect_b64 vcc, -1, 0\ns_waitcnt vmcnt(0)')
            if n == 7: a('s_waitcnt lgkmcnt(0)\ns_barrier')
            a(stamp_txt(f'n{n}', 'fine2'))
            a(spread(M, F))
        stamp('p2mm')
        rcv = WP[0]; xf = WP[1]
        for i in range(3): a(f'ds_write_b128 {v(axw)}, {v(acc2+8+4*i,4)} offset:{1024*i}')
        a(WD)
        a('s_waitcnt lgkmcnt(0)\ns_barrier')
        for i in range(3): a(f'ds_read_b128 {v(rcv+4*i,4)}, {v(axr)} offset:{1024*i}')
        for i in range(3):
            for hh in (0, 2):
                a(f'v_pk_add_f32 {v(own[i]+hh,2)}, {v(own[i]+hh,2)}, {v(rcv+4*i+hh,2)}')
            for hh in range(2):
                a(f'v_cvt_pk_bf16_f32 {v(vHR+2*i+hh)}, {v(own[i]+2*hh)}, {v(own[i]+2*hh+1)}')
            if i == 1: a(f'buffer_store_dwordx4 {v(vHR,4)}, {v(vL16)}, {s(R_WS,4)}, {s(E0)} offen sc1')
        a(f'buffer_store_dwordx2 {v(vHR+4,2)}, {v(vL8)}, {s(R_WS,4)}, {s(E1)} offen sc1')
        for i in range(6):
            a(f'v_lshlrev_b32 {v(xf+2*i)}, 16, {v(vHR+i)}\nv_and_b32 {v(xf+2*i+1)}, 0xffff0000, {v(vHR+i)}')
        sm = rcv; sq = rcv + 2; p = rcv + 4; q = rcv + 6
        a(f'v_pk_add_f32 {v(sm,2)}, {v(xf+8,2)}, {v(xf+10,2)}\nv_pk_mul_f32 {v(sq,2)}, {v(xf+8,2)}, {v(xf+8,2)}')
        a(f'v_pk_fma_f32 {v(sq,2)}, {v(xf+10,2)}, {v(xf+10,2)}, {v(sq,2)}')
        for i in range(4): a(f'v_mul_f32 {v(sm+i)}, {s(E5)}, {v(sm+i)}')
        for i in (0, 2, 4, 6):
            a(f'v_pk_add_f32 {v(sm,2)}, {v(sm,2)}, {v(xf+i,2)}\nv_pk_fma_f32 {v(sq,2)}, {v(xf+i,2)}, {v(xf+i,2)}, {v(sq,2)}')
        def xg_reduce(p, q):
            return f'''v_mov_b32 {v(q)}, {v(p)}
v_mov_b32 {v(q+1)}, {v(p+1)}
v_permlane32_swap_b32 {v(p)}, {v(q)}
v_permlane32_swap_b32 {v(p+1)}, {v(q+1)}
v_pk_add_f32 {v(p,2)}, {v(p,2)}, {v(q,2)}
v_mov_b32 {v(q)}, {v(p)}
v_mov_b32 {v(q+1)}, {v(p+1)}
v_permlane16_swap_b32 {v(p)}, {v(q)}
v_permlane16_swap_b32 {v(p+1)}, {v(q+1)}
v_pk_add_f32 {v(p,2)}, {v(p,2)}, {v(q,2)}'''
        a(f'v_add_f32 {v(p)}, {v(sm)}, {v(sm+1)}\nv_add_f32 {v(p+1)}, {v(sq)}, {v(sq+1)}')
        a(xg_reduce(p, q))
        a(f's_mov_b64 exec, 0xffff\nbuffer_store_dwordx2 {v(p,2)}, {v(vL8)}, {s(R_WS,4)}, {s(E2)} offen sc1\ns_mov_b64 exec, -1')
        stamp('p2st')

    if stop_after >= 3:
        va.reset(base_mark)
        W = va.a(160, 4); cs3 = va.a(8, 4); bt = va.a(8, 4); acc3 = [va.a(8, 4), va.a(8, 4)]
        fX = [va.a(4, 4) for _ in range(4)]; u = va.a(8, 4); gp = va.a(4, 4); rr = va.a(8, 2); kk = va.a(2)
        aP = fX[0]; aXl = vONE
        a(f'''v_lshrrev_b32 {v(t0)}, 4, {v(vL)}
v_lshlrev_b32 {v(t0)}, 3, {v(t0)}
buffer_load_dwordx2 {v(u,2)}, {v(t0)}, {s(R_B1,4)}, {s(S_C3)} offen
buffer_load_dwordx2 {v(u+2,2)}, {v(t0)}, {s(R_B1,4)}, {s(S_C3)} offen offset:32''')
        def w1pre(kss):
            R = []; M = []
            for ks in kss:
                pos = W1POS[ks]
                wi, base = (2, 106496) if pos >= 106496 else ((1, 56000) if pos >= 56000 else (0, 0))
                for t in range(2):
                    R.append(f'ds_read_b128 {v(W+8*ks+4*t,4)}, {v(aP+wi)} offset:{pos-base+1024*t}')
                    M.append(f'{MF} {v(cs3+4*t,4)}, {v(W+8*ks+4*t,4)}, {v(vONE,4)}, {v(cs3+4*t,4) if ks else 0}')
            a(R[:6]); k = 6
            for m in M:
                a(m); a(R[k:k+1]); k += 1
        NB = min(18, NA + OPT.get('nw1b', 5)); NPA = min(NA, OPT.get('npa', 10))
        a(f'v_add_u32 {v(aP)}, {s(S_P0)}, {v(vL16)}\nv_add_u32 {v(aP+1)}, 56000, {v(aP)}\nv_add_u32 {v(aP+2)}, 106496, {v(aP)}')
        a(';@opt on\ns_waitcnt vmcnt(5)\ns_barrier')
        wave_block('w1b', f's_cmp_eq_u32 {s(S_W)}, 7', w1dma(range(NA, NB), True))
        w1pre(range(NPA))
        wave_block('w1d', f's_cmp_eq_u32 {s(S_W)}, 7', [f's_waitcnt vmcnt({NB-NA})'], ['s_waitcnt vmcnt(0)'])
        a('s_barrier\n;@clearv')
        stamp('drained2')
        signal('s2', S_GRP, OFF_C2)
        wave_block('w1c', f's_cmp_eq_u32 {s(S_W)}, 7', w1dma(range(NB, 20), True))
        w1pre(range(NPA, NA))
        NC = (NB + 20) // 2
        a(f';@opt on\ns_waitcnt vmcnt({20-NC})\ns_barrier')
        w1pre(range(NA, NC))
        a('s_waitcnt vmcnt(0)\ns_barrier')
        wave_block('s2e', f's_cmp_lg_u32 {s(S_W)}, 7', [caddr(T0+4, S_RT1, OFF_C2), f's_mov_b32 {s(S_LB)}, 0\ns_atomic_add {s(S_LB)}, {s(P_WS,2)}, {s(T0+4)} glc'])
        w1pre(range(NC, 20))
        c0 = math.sqrt(2 / math.pi); K1 = -2 * LOG2E * c0; K2 = K1 * 0.044715
        a(f'v_mov_b32 {v(kk)}, {fhex(K2)}\nv_mov_b32 {v(kk+1)}, {fhex(K1)}')
        for i in range(4):
            a(f'v_lshlrev_b32 {v(bt+2*i)}, 16, {v(u+i)}\nv_and_b32 {v(bt+2*i+1)}, 0xffff0000, {v(u+i)}')
        XS = [0, SLOT, 0, SLOT]
        SL4 = {0: 2 * SLOT, 1: 3 * SLOT, 2: 0, 3: SLOT, 4: 2 * SLOT, 5: 3 * SLOT, 6: 0}
        a(f'''s_mul_i32 {s(T0+6)}, {s(S_KH)}, 20480
v_add_u32 {v(aXl)}, {s(T0+6)}, {v(vL16)}
v_add_u32 {v(aXl+1)}, {SLOT}, {v(aXl)}
v_add_u32 {v(vD10)}, 3072, {v(vL16)}
v_lshlrev_b32 {v(aXl+3)}, 3, {v(vL)}
v_add_u32 {v(aXl+2)}, {s(T0+6)}, {v(aXl+3)}
v_and_b32 {v(t0)}, 15, {v(vL)}
v_lshl_add_u32 {v(t5)}, {v(t0)}, 3, {s(S_R0)}
v_lshl_add_u32 {v(t6)}, {v(t0)}, 3, {s(S_R1)}
s_mov_b32 {s(E1)}, {fhex(1/640)}
s_mov_b32 {s(E2)}, {fhex(1e-5)}''')
        stamp('w1pre')
        wave_block('s2pol', f's_cmp_lg_u32 {s(S_W)}, 7', [f's_waitcnt lgkmcnt(0)\ns_cmp_ge_u32 {s(S_LB)}, 16\ns_cbranch_scc1 L_s2pol_e', gpoll('s2', T0+4)])
        a('s_waitcnt lgkmcnt(0)\ns_barrier')
        stamp('sync2')
        def xdma(j, rounds=range(5)):
            return [f's_add_u32 m0, {s(S_MXl)}, {XS[j] + r*4096}\ns_add_u32 {s(T0+4)}, {s(S_HX)}, {j*20480 + r*4096}\n;@tag x{j}_{r}\n'
                    f'buffer_load_dwordx4 {v(vL16)}, {s(R_WS,4)}, {s(T0+4)} offen sc1 lds' for r in rounds]
        def w2dma(c):
            skip = f's_cmp_ge_u32 {s(S_W)}, 6\ns_cselect_b32 {s(E5)}, {OOR}, {s(E5)}\n' if c == 6 else ''
            L = [f's_add_u32 m0, {s(E7)}, {SL4[c]}\ns_add_u32 {s(E5)}, {s(S_W2)}, {c*8*40960}\n{skip}'
                 f'buffer_load_dwordx4 {v(vL16)}, {s(R_WS,4)}, {s(E5)} offen sc1 lds']
            L += [f's_add_u32 m0, {s(E7)}, {SL4[c]}\ns_nop 0\nbuffer_load_dwordx4 {v(vL16)}, {s(R_WS,4)}, {s(E5)} offen offset:{1024*t} sc1 lds' for t in (1, 2, 3)]
            L.append(f's_add_u32 m0, {s(E7)}, {SL4[c] + 3072}\ns_nop 0\n;@tag sc{c}\nbuffer_load_dwordx4 {v(vD10)}, {s(R_WS,4)}, {s(E5)} offen offset:1024 sc1 lds')
            return L
        hs = acc3[1]
        a(xdma(0, [0, 1]))
        for i in range(4):
            a(f'buffer_load_dwordx2 {v(hs+2*i,2)}, {v(aXl+3)}, {s(R_WS,4)}, {s(S_HS)} offen offset:{512*i} sc1')
        a(xdma(0, [2, 3, 4]))
        a(';@wait x0_0\ns_barrier')
        a(stamp_txt('x0'))
        p = hs; q = hs + 2
        stats = (f'''v_pk_add_f32 {v(hs,2)}, {v(hs,2)}, {v(hs+2,2)}
v_pk_add_f32 {v(hs+4,2)}, {v(hs+4,2)}, {v(hs+6,2)}
v_pk_add_f32 {v(p,2)}, {v(hs,2)}, {v(hs+4,2)}
''' + xg_reduce(p, q) + f'''
v_mul_f32 {v(p)}, {s(E1)}, {v(p)}
v_mul_f32 {v(p+1)}, {s(E1)}, {v(p+1)}
v_fma_f32 {v(p+1)}, -{v(p)}, {v(p)}, {v(p+1)}
v_max_f32 {v(p+1)}, 0, {v(p+1)}
v_add_f32 {v(q)}, {s(E2)}, {v(p+1)}
v_rsq_f32 {v(q)}, {v(q)}
v_mul_f32 {v(q+1)}, {v(q)}, {v(q)}
v_fma_f32 {v(q+1)}, {v(q+1)}, {v(p+1)}, {s(E2)}
v_rsq_f32 {v(q+1)}, {v(q+1)}
v_mul_f32 {v(hs+4)}, {v(q)}, {v(q+1)}
v_mul_f32 {v(hs+5)}, -{v(p)}, {v(hs+4)}
;@tag rrw
ds_write_b64 {v(t5)}, {v(hs+4,2)}''').split('\n')
        stats = stats[:-2] + [stats[-2] + '\n' + stats[-1]]
        def xread(n):
            j, ks = divmod(n, 20)
            if ks % 5 == 2:
                o = (XS[j] + ks * 1024) // 512
                return f'ds_read2st64_b64 {v(fX[n&3],4)}, {v(aXl+2)} offset0:{o} offset1:{o+1}'
            return f'ds_read_b128 {v(fX[n&3],4)}, {v(aXl + XS[j]//SLOT)} offset:{ks*1024}'
        def epi(j, packed):
            x = acc3[j & 1]; r0 = rr + 2 * j; L = []
            if packed:
                r = v(r0, 2); P4 = (0, 2, 4, 6)
                L += [f'v_pk_fma_f32 {v(u+i,2)}, {r}, {v(cs3+i,2)}, {v(bt+i,2)} op_sel:[1,0,0] op_sel_hi:[1,1,1]' for i in P4]
                L += [f'v_pk_fma_f32 {v(x+i,2)}, {v(x+i,2)}, {r}, {v(u+i,2)} op_sel_hi:[1,0,1]' for i in P4]
                L += [f'v_pk_mul_f32 {v(u+i,2)}, {v(x+i,2)}, {v(x+i,2)}' for i in P4]
                L += [f'v_pk_fma_f32 {v(u+i,2)}, {v(u+i,2)}, {v(kk,2)}, {v(kk,2)} op_sel:[0,0,1] op_sel_hi:[1,0,1]' for i in P4]
                L += [f'v_pk_mul_f32 {v(u+i,2)}, {v(u+i,2)}, {v(x+i,2)}' for i in P4]
                L += [f'v_exp_f32 {v(u+i)}, {v(u+i)}' for i in range(8)]
                L += [f'v_pk_add_f32 {v(u+i,2)}, {v(u+i,2)}, 1.0 op_sel_hi:[1,0]' for i in P4]
                L += [f'v_rcp_f32 {v(u+i)}, {v(u+i)}' for i in range(8)]
                L += [f'v_pk_mul_f32 {v(x+i,2)}, {v(x+i,2)}, {v(u+i,2)}' for i in P4]
            else:
                R8 = range(8)
                L += [f'v_fma_f32 {v(u+i)}, {v(cs3+i)}, {v(r0+1)}, {v(bt+i)}' for i in R8]
                L += [f'v_fma_f32 {v(x+i)}, {v(x+i)}, {v(r0)}, {v(u+i)}' for i in R8]
                L += [f'v_mul_f32 {v(u+i)}, {v(x+i)}, {v(x+i)}' for i in R8]
                L += [f'v_fma_f32 {v(u+i)}, {v(u+i)}, {v(kk)}, {v(kk+1)}' for i in R8]
                L += [f'v_mul_f32 {v(u+i)}, {v(u+i)}, {v(x+i)}' for i in R8]
                L += [f'v_exp_f32 {v(u+i)}, {v(u+i)}' for i in R8]
                L += [f'v_add_f32 {v(u+i)}, 1.0, {v(u+i)}' for i in R8]
                L += [f'v_rcp_f32 {v(u+i)}, {v(u+i)}' for i in R8]
                L += [f'v_mul_f32 {v(x+i)}, {v(x+i)}, {v(u+i)}' for i in R8]
            L += [f'v_cvt_pk_bf16_f32 {v(gp+i)}, {v(x+2*i)}, {v(x+2*i+1)}' for i in range(4)]
            L.append(f'''s_cmp_eq_u32 {s(S_MG)}, 3
s_cbranch_scc1 L_g{j}s
buffer_store_dwordx4 {v(gp,4)}, {v(vL16)}, {s(R_WS,4)}, {s(S_GP)} offen sc1
s_branch L_g{j}b
L_g{j}s:
buffer_store_dwordx2 {v(gp,2)}, {v(aXl+3)}, {s(R_WS,4)}, {s(S_GP)} offen sc1
L_g{j}b:
s_add_u32 {s(S_GP)}, {s(S_GP)}, {54*1024}''')
            return L
        if OPT.get('prio3', 1): a(f's_cmp_lt_u32 {s(S_W)}, 4\ns_cbranch_scc1 L_pr3\ns_setprio 1\nL_pr3:')
        for n in range(3): a(xread(n))
        for j in range(4):
            M = []
            for ks in range(20):
                n = 20 * j + ks
                pre = ''
                nx = n + 3
                if nx < 80:
                    jx, kx = divmod(nx, 20)
                    if jx == 0 and kx in (4, 8): pre = stamp_txt(f'x0_{kx}a') + f';@wait x0_{1 if kx == 4 else 4}\ns_barrier\n' + stamp_txt(f'x0_{kx}b')
                    if jx > 0 and kx == 0: pre = stamp_txt(f'x{jx}a') + f';@wait x{jx}_4\n;@lwait rrw\ns_barrier\n' + stamp_txt(f'x{jx}b')
                    if jx == 1 and kx == 0: pre += '\n'.join(f'ds_read_b64 {v(rr+2*i,2)}, {v(t6)} offset:{128*i}' for i in range(4)) + '\n'
                for t in range(2):
                    d = v(acc3[j & 1] + 4 * t, 4)
                    ins = f'{MF} {d}, {v(W+8*ks+4*t,4)}, {v(fX[n&3],4)}, {d if ks else 0}'
                    if t == 1 and nx < 80: ins += '\n' + pre + xread(nx)
                    M.append(ins)
            W4 = stop_after >= 4
            TW = []
            if j == 0:
                M = spread(M, xdma(1) + TW, start=2, end=14)
                a(spread(M, stats, start=10, end=36))
            else:
                M[3] += '\ns_barrier'
                D_ = (xdma(j + 1) if j < 3 else []) + TW + (w2dma(j - 1) if W4 else [])
                M = spread(M, D_, start=4, end=OPT.get('d3end', 26) if j < 3 else 14)
                a(spread(M, epi(j - 1, OPT.get('pk3', 0)) if not OPT.get('noepi') else [], start=4, end=len(M) - OPT.get('e3end', 2)))
        stamp('p3mm')
        a(epi(3, 1))
        stamp('p3st')

    if stop_after >= 4:
        va.reset(base_mark)
        b2r = va.a(6, 2); aW = va.a(12); axw = va.a(); axr = va.a(); vL8 = aXl + 3
        NX = OPT.get('nx', 12)
        acc4 = va.a(20, 4); X4 = va.a(4 * NX, 4); WB = [va.a(20, 4) for _ in range(6)]
        a(f"""v_lshrrev_b32 {v(t0)}, 4, {v(vL)}
v_lshlrev_b32 {v(t0)}, 3, {v(t0)}
buffer_load_dwordx2 {v(b2r,2)}, {v(t0)}, {s(R_B2,4)}, {s(S_CM)} offen
buffer_load_dwordx2 {v(b2r+2,2)}, {v(t0)}, {s(R_B2,4)}, {s(S_CM)} offen offset:32
buffer_load_dwordx2 {v(b2r+4,2)}, {v(t0)}, {s(R_B2,4)}, {s(S_CS)} offen
s_mul_i32 {s(T0+6)}, {s(S_KH)}, 5120""")
        for i, sc in enumerate((S_CM, S_CO, S_CS)):
            a(f's_lshl_b32 {s(T0+7)}, {s(sc)}, 5\ns_add_u32 {s(T0+7)}, {s(T0+7)}, {s(T0+6)}\nv_add_u32 {v(aW+i)}, {s(T0+7)}, {v(vL16)}')
            for sl in (2, 1, 3): a(f'v_add_u32 {v(aW+3*sl+i)}, {sl*SLOT}, {v(aW+i)}')
        tl = [(0, 0), (0, 1024), (1, 0), (1, 1024), (2, 0)]
        wbuf = lambda i: WB[i] if i < 4 else WB[4 + (i & 1)]
        def w2read(i):
            c = i // 4; off = (i % 4) * 10240
            return [f'ds_read_b128 {v(wbuf(i)+4*t,4)}, {v(aW+3*(SL4[c]//SLOT)+ai)} offset:{off+ci}' for t, (ai, ci) in enumerate(tl)]
        for i in range(4): a(w2read(i))
        S_GX = T0
        XCH4 = SLOT
        a(f"""s_mul_i32 {s(S_GX)}, {s(S_STILE)}, 54
s_add_u32 {s(S_GX)}, {s(S_GX)}, {s(S_KH)}
s_lshl_b32 {s(S_GX)}, {s(S_GX)}, 10
s_add_u32 {s(S_GX)}, {s(S_GX)}, {OFF_G}
s_mul_i32 {s(T0+6)}, {s(S_W)}, 3072
v_add_u32 {v(axw)}, {s(T0+6)}, {v(vL16)}
s_xor_b32 {s(T0+6)}, {s(S_W)}, 4
s_mul_i32 {s(T0+6)}, {s(T0+6)}, 3072
v_add_u32 {v(axr)}, {s(T0+6)}, {v(vL16)}
s_add_u32 {s(T0+1)}, {s(S_RB)}, {s(S_CM)}
s_add_u32 {s(T0+2)}, {s(S_RB)}, {s(S_CS)}
s_cmp_lg_u32 {s(S_KH)}, 0
s_cselect_b32 {s(T0+2)}, 0x4000000, {s(T0+2)}
s_cselect_b32 {s(T0+3)}, 0, 1.0
s_cselect_b64 vcc, -1, 0
{caddr(S_LB+1, S_RT1, OFF_C3)}
{caddr(T0+5, S_GRP, OFF_C3)}
s_waitcnt lgkmcnt(0)
s_barrier""")
        stamp('drained3')
        wave_block('s3sig', f's_cmp_lg_u32 {s(S_W)}, 7', [ssig(S_LB+1)])
        a(w2read(4))
        a(w2dma(3))
        if OPT.get('sc4early', 1): a(w2dma(4))
        own = [acc4, acc4 + 4, acc4 + 16]; bf = X4
        for i in range(6):
            o = own[i // 2] + 2 * (i & 1)
            a(f'v_lshlrev_b32 {v(o)}, 16, {v(vHR+i)}\nv_and_b32 {v(o+1)}, 0xffff0000, {v(vHR+i)}')
            a(f'v_lshlrev_b32 {v(bf)}, 16, {v(b2r+i)}\nv_and_b32 {v(bf+1)}, 0xffff0000, {v(b2r+i)}')
            a(f'v_pk_add_f32 {v(o,2)}, {v(o,2)}, {v(bf,2)}')
        for i in range(4): a(f'v_mul_f32 {v(acc4+16+i)}, {s(T0+3)}, {v(acc4+16+i)}')
        a(f'''v_and_b32 {v(t1)}, 15, {v(vL)}
v_mul_u32_u24 {v(t1)}, 1280, {v(t1)}
v_bfe_u32 {v(t2)}, {v(vL)}, 4, 1
v_lshl_add_u32 {v(t1)}, {v(t2)}, 5, {v(t1)}
v_lshrrev_b32 {v(t2)}, 5, {v(vL)}
v_lshl_add_u32 {v(t1)}, {v(t2)}, 4, {v(t1)}''')
        wave_block('s3pol', f's_cmp_lg_u32 {s(S_W)}, 7', [gpoll('s3', T0+5)])
        a('s_barrier')
        stamp('sync3')
        def xload(i):
            x = f'buffer_load_dwordx4 {v(X4+4*(i%NX),4)}, {v(vL16)}, {s(R_WS,4)}, {s(S_GX)} offen offset:{(i&1)*2048} sc1'
            for kh in range(2):
                if (2 * i + kh) % 7 == 3 and 2 * i + kh < 42:
                    y = '\n'.join(f'buffer_load_dwordx2 {v(X4+4*(i%NX)+2*hf,2)}, {v(vL8)}, {s(R_WS,4)}, {s(S_GX)} offen offset:{(i&1)*2048+512*hf} sc1' for hf in range(2))
                    x = f's_cbranch_vcc{"z" if kh else "nz"} L_xn{i}\n;@save xs\n{y}\ns_branch L_xj{i}\nL_xn{i}:\n{x}\nL_xj{i}:'
            if i & 1: x += f'\ns_add_u32 {s(S_GX)}, {s(S_GX)}, 4096'
            return x
        NP = OPT.get('np', 6)
        nxt = [0]
        def xl(k):
            L = []
            for _ in range(k):
                if nxt[0] < 27: L.append(xload(nxt[0])); nxt[0] += 1
            return L
        a(xl(NP))
        for i in range(27):
            F = []
            nx = i + 1
            if nx >= 5 and nx < 27:
                if nx % 4 == 0 and nx > 8:
                    c = nx // 4
                    a(stamp_txt(f'sc{c}a') + f';@wait sc{c}\ns_barrier\n' + stamp_txt(f'sc{c}b'))
                    if c in (3, 4): F += w2dma(c + 2)
                if nx == 6 and not OPT.get('sc4early', 1): F += w2dma(4)
                F = w2read(nx) + F
            order = range(5) if i < 26 else (2, 3, 4, 0, 1)
            M = [f'{MF} {v(acc4+4*t,4)}, {v(wbuf(i)+4*t,4)}, {v(X4+4*(i%NX),4)}, {v(acc4+4*t,4) if (i or t in (0, 1, 4)) else 0}' for t in order]
            a(spread(M, F))
            a(xl(min(2, i + 1 + NX - nxt[0])))
        stamp('p4mm')
        rcv = WB[0]; bf = WB[2]
        for i in range(3): a(f'ds_write_b128 {v(axw)}, {v(acc4+8+4*i,4)} offset:{XCH4+1024*i}')
        a('s_waitcnt lgkmcnt(0)\ns_barrier')
        for i in range(3): a(f'ds_read_b128 {v(rcv+4*i,4)}, {v(axr)} offset:{XCH4+1024*i}')
        for i in range(3):
            for hh in (0, 2):
                a(f'v_pk_add_f32 {v(own[i]+hh,2)}, {v(own[i]+hh,2)}, {v(rcv+4*i+hh,2)}')
            for hh in range(2):
                a(f'v_cvt_pk_bf16_f32 {v(bf+2*i+hh)}, {v(own[i]+2*hh)}, {v(own[i]+2*hh+1)}')
            if i == 1:
                a(f'v_permlane16_swap_b32 {v(bf)}, {v(bf+2)}\nv_permlane16_swap_b32 {v(bf+1)}, {v(bf+3)}')
                a(f'buffer_store_dwordx4 {v(bf,4)}, {v(t1)}, {s(R_OUT,4)}, {s(T0+1)} offen\ns_cbranch_vccnz L_fin')
        a(f'buffer_store_dwordx2 {v(bf+4,2)}, {v(vRO)}, {s(R_OUT,4)}, {s(T0+2)} offen\nL_fin:')
        stamp('end')
    if ts:
        a(f'''s_lshl_b32 {s(S_TS)}, s2, 3
s_add_u32 {s(S_TS)}, {s(S_TS)}, {s(S_W)}
s_lshl_b32 {s(S_TS)}, {s(S_TS)}, 8
s_add_u32 {s(S_TS)}, {s(S_TS)}, {OFF_TS}
v_lshlrev_b32 {v(t7)}, 2, {v(vL)}
buffer_store_dword v0, {v(t7)}, {s(R_WS,4)}, {s(S_TS)} offen''')
    a('L_end:\ns_endpgm\n;@clearv\n;@clearl')
    for blk in ool:
        a(blk); a(';@clearv\n;@clearl')
    body = a.finalize()
    return body, va.hi, names

def wrap(body, listmode=False):
    ref = open('cdna_kernels/%s.s.ref' % NAME).read().split('\n')
    hdr = [l for l in ref if l.startswith(';') and '@launch' not in l]
    kn = NAME + '_kernel'
    nv = 256
    launch = (f'; @launch kernel={kn} grid=(256,1,1) block=(512,1,1) lds=163840' if listmode
              else '; @launch grid=(256,1,1) block=(512,1,1) lds=163840')
    return '\n'.join(hdr) + '\n' + launch + '\n' + f'''.amdgcn_target "amdgcn-amd-amdhsa--gfx950"
.text
.globl {kn}
.p2align 8
.type {kn},@function
{kn}:
{body}.section .rodata,"a"
.p2align 6
.amdhsa_kernel {kn}
  .amdhsa_next_free_vgpr {nv}
  .amdhsa_next_free_sgpr 102
  .amdhsa_accum_offset {nv}
  .amdhsa_group_segment_fixed_size 0
  .amdhsa_kernarg_size 88
  .amdhsa_user_sgpr_count 2
  .amdhsa_user_sgpr_kernarg_segment_ptr 1
  .amdhsa_system_sgpr_workgroup_id_x 1
.end_amdhsa_kernel
'''

if __name__ == '__main__':
    import argparse
    ap = argparse.ArgumentParser()
    ap.add_argument('--stop', type=int, default=4)
    ap.add_argument('--ts', action='store_true')
    ap.add_argument('--list', action='store_true')
    ap.add_argument('--opt', default='')
    ap.add_argument('-o', default='cdna_kernels/%s.s' % NAME)
    args = ap.parse_args()
    for kv in filter(None, args.opt.split(',')):
        k_, v_ = kv.split('='); OPT[k_] = int(v_)
    body, hi, names = gen(args.stop, args.ts)
    import subprocess, re, tempfile, os
    with tempfile.TemporaryDirectory() as td:
        open(td + '/a.s', 'w').write(wrap(body.replace('CODE_BYTES', '0x7000').replace('KERNEL_START', NAME + '_kernel'), args.list))
        subprocess.run(['clang', '-x', 'assembler', '-target', 'amdgcn-amd-amdhsa', '-mcpu=gfx950', '-c', td + '/a.s', '-o', td + '/a.o'], check=True)
        h = subprocess.run(['llvm-objdump', '-h', td + '/a.o'], capture_output=True, text=True).stdout
        size = int(re.search(r'\.text\s+([0-9a-f]+)', h).group(1), 16)
    print('code bytes', size)
    txt = wrap(body.replace('CODE_BYTES', str(size - 64)).replace('KERNEL_START', NAME + '_kernel'), args.list)
    if names: txt += '; stamps: ' + ' '.join(names) + '\n'
    open(args.o, 'w').write(txt)
    print('vgpr hi', hi, 'lines', body.count('\n'), names)
```

```python
import sys, math, struct
sys.path.insert(0, 'gen')
from asmlib import Asm, weave, spread

NAME = 'sequential_preLN__linear_attn_block__mixer_channel_mlp__prompt'

OFF_KV = 23 << 20
OFF_CA = 65536
OFF_CB = 73728
OFF_C2 = 75776
OFF_C3 = 79872
OFF_CP = 81920
ZBYTES = 86016
OFF_O = 1 << 20
OFF_H = 5 << 20
OFF_HST = 8 << 20
OFF_G = 9 << 20
OFF_W2P = 17 << 20
OFF_W1P = OFF_W2P + 540 * 4096
OFF_W0P = 22 << 20
OFF_TS = 24 << 20
WS_REC = 32 << 20

LOG2E = 1.4426950408889634
def f2u(x): return struct.unpack('<I', struct.pack('<f', x))[0]
def fhex(x): return '0x%08x' % f2u(x)

class VA:
    def __init__(self, start, limit=256):
        self.cur = start; self.limit = limit; self.hi = start
    def a(self, n=1, al=1):
        self.cur = (self.cur + al - 1) // al * al
        r = self.cur; self.cur += n
        assert self.cur <= self.limit, 'out of VGPRs'
        self.hi = max(self.hi, self.cur)
        return r
    def mark(self): return self.cur
    def reset(self, m): self.cur = m

def v(r, n=1): return f'v{r}' if n == 1 else f'v[{r}:{r+n-1}]'
def s(r, n=1): return f's{r}' if n == 1 else f's[{r}:{r+n-1}]'

P_X, P_WQKV, P_WO, P_BX, P_W1, P_B1, P_W2, P_B2, P_OUT, P_DBG, P_WS = range(4, 26, 2)
S_W = 26; S_RT1 = 27; S_HP = 28; S_GRP = 29; S_MEM = 30; S_CT = 31
R_X = 32; R_WQ = 36; R_WO = 40; R_W1 = 44; R_W2 = 48; R_WS = 52; R_OUT = 56; R_DBG = 60; R_B1 = 64; R_B2 = 68
T0 = 72
S_MG = 80; S_KH = 81; S_T = 82; S_STILE = 83; S_CM = 84; S_CO = 85; S_CS = 86; S_RB = 87; S_ODD = 88; S_MD = 89
M_A = 90; M_B = 92; M_C = 94; M_D = 96
S_TS = 98
S_U0 = 100; S_U1 = 101

def srd(a, r, ptr, add, nrec):
    if add is None:
        a(f's_mov_b32 {s(r)}, {s(ptr)}\ns_mov_b32 {s(r+1)}, {s(ptr+1)}')
    else:
        a(f's_add_u32 {s(r)}, {s(ptr)}, {add}\ns_addc_u32 {s(r+1)}, {s(ptr+1)}, 0')
    a(f's_mov_b32 {s(r+2)}, {nrec}\ns_mov_b32 {s(r+3)}, 0x20000')

def mask64(a, r, val):
    a(f's_mov_b32 {s(r)}, 0x{val & 0xffffffff:08x}\ns_mov_b32 {s(r+1)}, 0x{val >> 32:08x}')

def lanemask(f):
    m = 0
    for l in range(64):
        if f(l): m |= 1 << l
    return m

MF = 'v_mfma_f32_16x16x32_bf16'
SLOT = 40960
OPT = {}

def gen(stop_after=4, ts=False):
    QXOR = OPT.get('qxor', 1)
    KVS = OPT.get('kvs', 1024)
    a = Asm()
    va = VA(1)
    vL = va.a(); vL16 = va.a(); vRO = va.a(); vONE = va.a(4, 4)
    vHR = va.a(6, 2)
    vDUM = va.a(); vD10 = va.a()
    vTmp = va.a(8, 4)
    base_mark = va.mark()
    vXR = va.a(6, 2)
    xr_mark = va.mark()
    t0, t1, t2, t3, t4, t5, t6, t7 = range(vTmp, vTmp + 8)
    names = []
    RT = ['start', 'p1loop', 'sigA', 'syncB', 'drained2', 'sync2', 'drained3', 'sync3', 'end']
    def stamp_txt(name, key='fine3'):
        if not ts or not OPT.get(key): return ''
        idx = len(names); names.append(name)
        return f';@opt on\ns_memtime {s(S_TS,2)}\ns_waitcnt lgkmcnt(0)\nv_writelane_b32 v0, {s(S_TS)}, {idx}\n'
    def stamp(name, idx=None):
        if not ts: return
        if idx is None:
            idx = len(names); names.append(name)
        a(f''';@opt on
s_memtime {s(S_TS,2)}
s_waitcnt lgkmcnt(0)
v_writelane_b32 v0, {s(S_TS)}, {idx}
;@opt off''')
        if name in RT:
            a(f';@opt on\ns_memrealtime {s(S_TS,2)}\ns_waitcnt lgkmcnt(0)\nv_writelane_b32 v0, {s(S_TS)}, {63 - RT.index(name)}\n;@opt off')
        return idx

    a(f'''s_cmp_ge_u32 s2, 256
s_cbranch_scc1 L_end
s_load_dwordx16 s[4:19], s[0:1], 0
s_load_dwordx4 s[20:23], s[0:1], 64
s_load_dwordx2 s[24:25], s[0:1], 80
s_getpc_b64 {s(T0+6,2)}
s_lshr_b32 {s(S_T)}, s2, 3
v_lshrrev_b32 {v(t0)}, 5, v0
s_lshl_b32 {s(T0+4)}, {s(S_T)}, 11
v_lshl_add_u32 {v(t1)}, {v(t0)}, 7, {s(T0+4)}
v_min_u32 {v(t1)}, CODE_BYTES, {v(t1)}
s_mov_b32 exec_lo, 1
s_mov_b32 exec_hi, 1
global_load_dword {v(vDUM)}, {v(t1)}, {s(T0+6,2)}
s_mov_b64 exec, -1
v_lshrrev_b32 {v(t0)}, 6, v0
v_and_b32 {v(vL)}, 63, v0
v_readfirstlane_b32 {s(S_W)}, {v(t0)}
s_and_b32 {s(T0)}, s2, 7
s_and_b32 {s(S_RT1)}, {s(T0)}, 3
s_lshl_b32 {s(S_RT1)}, {s(S_RT1)}, 2
s_and_b32 {s(T0+2)}, {s(S_T)}, 3
s_add_u32 {s(S_RT1)}, {s(S_RT1)}, {s(T0+2)}
s_lshr_b32 {s(S_HP)}, {s(T0)}, 2
s_lshl_b32 {s(S_HP)}, {s(S_HP)}, 3
s_lshr_b32 {s(T0+3)}, {s(S_T)}, 2
s_add_u32 {s(S_HP)}, {s(S_HP)}, {s(T0+3)}
s_and_b32 {s(S_MG)}, {s(S_W)}, 3
s_lshr_b32 {s(S_KH)}, {s(S_W)}, 2
v_lshlrev_b32 {v(vL16)}, 4, {v(vL)}
s_mov_b32 s3, 1
s_cmp_ge_u32 {s(S_W)}, 4
;@save p1
s_cbranch_scc1 L_p1c''')

    def late_ids():
        a(f'''s_and_b32 {s(T0)}, s2, 7
s_lshl_b32 {s(S_GRP)}, {s(T0)}, 1
s_and_b32 {s(T0+4)}, {s(S_T)}, 1
s_add_u32 {s(S_GRP)}, {s(S_GRP)}, {s(T0+4)}
s_lshr_b32 {s(S_MEM)}, {s(S_T)}, 1
s_and_b32 {s(S_CT)}, {s(S_MEM)}, 7
s_and_b32 {s(S_ODD)}, {s(S_CT)}, 1
s_lshl_b32 {s(S_STILE)}, {s(S_GRP)}, 3
s_lshr_b32 {s(T0+4)}, {s(S_MEM)}, 3
s_lshl_b32 {s(T0+4)}, {s(T0+4)}, 2
s_add_u32 {s(S_STILE)}, {s(S_STILE)}, {s(T0+4)}
s_add_u32 {s(S_STILE)}, {s(S_STILE)}, {s(S_MG)}
s_lshl_b32 {s(T0+4)}, {s(S_ODD)}, 5
s_lshl_b32 {s(T0+5)}, {s(S_KH)}, 6
s_add_u32 {s(S_CM)}, {s(T0+4)}, {s(T0+5)}
s_xor_b32 {s(T0+5)}, {s(T0+5)}, 64
s_add_u32 {s(S_CO)}, {s(T0+4)}, {s(T0+5)}
s_cmp_eq_u32 {s(S_ODD)}, 0
s_cselect_b32 {s(S_CS)}, 128, 0
s_mul_i32 {s(S_RB)}, {s(S_STILE)}, 20480
s_mul_i32 {s(T0+4)}, {s(S_CT)}, 160
s_add_u32 {s(S_RB)}, {s(S_RB)}, {s(T0+4)}
s_lshl_b32 {s(S_MD)}, {s(S_W)}, 10
s_sub_u32 {s(T0+5)}, 819200, {s(T0+4)}
s_sub_u32 {s(T0+6)}, 1280, {s(T0+4)}''')
        srd(a, R_WO, P_WO, s(T0+4), s(T0+5))
        srd(a, R_B2, P_B2, s(T0+4), s(T0+6))
        srd(a, R_DBG, P_DBG, None, 256)
        srd(a, R_OUT, P_OUT, None, 2621440)
        for i in range(4): a(f'v_mov_b32 {v(vONE+i)}, 0x3f803f80')
        a(f'''v_and_b32 {v(t0)}, 15, {v(vL)}
v_mul_u32_u24 {v(t0)}, 1280, {v(t0)}
v_lshrrev_b32 {v(t1)}, 4, {v(vL)}
v_lshl_add_u32 {v(vRO)}, {v(t1)}, 3, {v(t0)}''')

    SA = 32768; RK, RV = 16384, 24576
    SP = 131072; MISC = 155648; FLG = MISC; ST = MISC + 1024; PKS = 3 * SA + 24576
    WQPOS = [SP + 8192 * q for q in range(3)] + [2 * SA + 8192 * q for q in range(4)] + [3 * SA + 8192 * q for q in range(3)]
    KVR = 0; WO = 0; XRL = 106496
    F_WQ, F_KVR, F_DRA, F_DRB, F_PB, F_PK, F_GA, F_H1, F_H0, F_P2 = 0, 12, 16, 20, 24, 28, 32, 36, 40, 44
    OOR = WS_REC
    S_LB = 0
    SLP = OPT.get('sleep', 2)
    NTR = ' nt' if OPT.get('ntr', 1) else ''; NTX = ' nt' if OPT.get('ntx', 0) else ''; NTW = ' nt' if OPT.get('ntw', 0) else ''
    ool = []

    def phi4(x, tmp, cL, cE6L, e6v, pk=1):
        if not pk:
            return ([f'v_fma_f32 {v(tmp+i)}, {v(x+i)}, {v(cL)}, {v(cE6L)}' for i in range(4)] + [f'v_exp_f32 {v(tmp+i)}, {v(tmp+i)} clamp' for i in range(4)]
                    + [f'v_max_f32 {v(x+i)}, {v(e6v)}, {v(x+i)}' for i in range(4)] + [f'v_add_f32 {v(x+i)}, {v(x+i)}, {v(tmp+i)}' for i in range(4)])
        L = [f'v_pk_fma_f32 {v(tmp+i,2)}, {v(x+i,2)}, {v(cL,2)}, {v(cE6L,2)} op_sel_hi:[1,0,0]' for i in (0, 2)]
        L += [f'v_exp_f32 {v(tmp+i)}, {v(tmp+i)} clamp' for i in range(4)]
        L += [f'v_max_f32 {v(x+i)}, {v(e6v)}, {v(x+i)}' for i in range(4)]
        L += [f'v_pk_add_f32 {v(x+i,2)}, {v(x+i,2)}, {v(tmp+i,2)}' for i in (0, 2)]
        return L
    mk = lambda r, f: f's_mov_b32 {s(r)}, 0x{lanemask(f) & 0xffffffff:08x}\ns_mov_b32 {s(r+1)}, 0x{lanemask(f) >> 32:08x}'

    def larrive(vFL, off):
        a(f's_mov_b64 exec, 1\nds_add_u32 {v(vFL)}, {v(vFL+1)} offset:{off}\ns_mov_b64 exec, -1')
    def lwait(vFL, off, tag, tmp):
        a(f''';@opt on
s_waitcnt lgkmcnt(0)
s_mov_b32 {s(S_LB)}, 0x1000000
L_lw{tag}:
ds_read_b32 {v(tmp)}, {v(vFL)} offset:{off}
s_sub_u32 {s(S_LB)}, {s(S_LB)}, 1
s_cselect_b32 {s(S_LB+1)}, 0, 4
s_waitcnt lgkmcnt(0)
v_readfirstlane_b32 {s(T0+7)}, {v(tmp)}
s_cmp_lt_u32 {s(T0+7)}, {s(S_LB+1)}
s_cbranch_scc1 L_lw{tag}
;@clearl''')
    caddr = lambda dst, idx, base: f's_lshl_b32 {s(dst)}, {s(idx)}, 7\ns_add_u32 {s(dst)}, {s(dst)}, {base}'
    ssig = lambda off: f's_atomic_add s3, {s(P_WS,2)}, {s(off)}'
    def last_signals(vFL, off, tag, tmp, idx, base, wait='s_waitcnt vmcnt(0)'):
        a(f'''{caddr(S_LB+1, idx, base)}
s_mov_b64 exec, 1
{wait}
ds_add_rtn_u32 {v(tmp)}, {v(vFL)}, {v(vFL+1)} offset:{off}
s_mov_b64 exec, -1
s_waitcnt lgkmcnt(0)
v_readfirstlane_b32 {s(T0+7)}, {v(tmp)}
s_cmp_lg_u32 {s(T0+7)}, 3
s_cbranch_scc1 L_ls{tag}
{ssig(S_LB+1)}
L_ls{tag}:''')
    def gpoll(tag, off, tgt=16, pre='s_waitcnt lgkmcnt(0)'):
        return f'''{pre}
s_mov_b32 {s(T0+7)}, 0x400000
L_{tag}_p:
s_mov_b32 {s(S_LB)}, 0
s_atomic_add {s(S_LB)}, {s(P_WS,2)}, {s(off)} glc
s_sub_u32 {s(T0+7)}, {s(T0+7)}, 1
s_cselect_b32 {s(S_LB+1)}, 0, {tgt}
s_waitcnt lgkmcnt(0)
s_cmp_ge_u32 {s(S_LB)}, {s(S_LB+1)}
s_cbranch_scc1 L_{tag}_d
s_sleep {SLP}
s_branch L_{tag}_p
L_{tag}_d:'''

    def x_addrs(aX):
        a(f"""v_lshrrev_b32 {v(t4)}, 4, {v(vL)}
v_and_b32 {v(t7)}, 15, {v(vL)}
s_lshl_b32 {s(T0+4)}, {s(S_MG)}, 12
v_lshrrev_b32 {v(t0)}, 1, {v(t7)}
v_xor_b32 {v(t0)}, {v(t0)}, {v(t4)}
v_lshlrev_b32 {v(t0)}, 4, {v(t0)}
v_lshl_add_u32 {v(t0)}, {v(t7)}, 7, {v(t0)}
v_add_u32 {v(aX)}, {s(T0+4)}, {v(t0)}
v_xor_b32 {v(aX+1)}, 64, {v(aX)}
v_add_u32 {v(aX+2)}, {2*SA}, {v(aX)}
v_add_u32 {v(aX+3)}, {2*SA}, {v(aX+1)}""")
    def w_addrs(rA, rB, rC, xor, base):
        g_, r_, c_, s_ = t4, t5, t6, t7
        a(f"""v_lshrrev_b32 {v(g_)}, 4, {v(vL)}
v_bfe_u32 {v(r_)}, {v(vL)}, 2, 2
v_and_b32 {v(c_)}, 3, {v(vL)}
v_lshl_add_u32 {v(t0)}, {v(g_)}, 3, {v(r_)}
v_lshlrev_b32 {v(t0)}, 7, {v(t0)}
v_and_b32 {v(t1)}, 1, {v(g_)}
v_lshlrev_b32 {v(t1)}, 1, {v(t1)}
v_lshrrev_b32 {v(t2)}, 1, {v(r_)}
v_or_b32 {v(t1)}, {v(t1)}, {v(t2)}
v_lshlrev_b32 {v(t1)}, 5, {v(t1)}
v_and_b32 {v(s_)}, 1, {v(c_)}
v_mul_u32_u24 {v(s_)}, 40, {v(s_)}
s_xor_b32 {s(T0+4)}, {s(S_HP)}, {xor}
s_and_b32 {s(T0+4)}, {s(T0+4)}, 3
s_lshl_b32 {s(T0+4)}, {s(T0+4)}, 4
s_mov_b32 {s(T0+5)}, {base}
v_lshl_add_u32 {v(t2)}, {v(c_)}, 3, {s(T0+4)}
v_xor_b32 {v(t3)}, {v(t2)}, {v(t1)}
v_add3_u32 {v(rA)}, {v(t3)}, {v(t0)}, {s(T0+5)}
v_add_u32 {v(t2)}, 40, {v(t2)}
v_xor_b32 {v(t3)}, {v(t2)}, {v(t1)}
v_add3_u32 {v(rB)}, {v(t3)}, {v(t0)}, {s(T0+5)}
v_add3_u32 {v(t2)}, {v(s_)}, {s(T0+4)}, 32
v_xor_b32 {v(t3)}, {v(t2)}, {v(t1)}
v_add3_u32 {v(rC)}, {v(t3)}, {v(t0)}, {s(T0+5)}""")

    va.reset(xr_mark)
    acc2 = va.a(20, 4); O2 = va.a(32, 4); OS2 = va.a(8, 4)
    WP = [va.a(20, 4) for _ in range(8)]
    aM = va.a(3); vL8 = va.a()
    aS = O2; axr_ = O2 + 3
    axw = vHR; axr = vHR + 1; vL4b = vHR + 2
    XC0 = WO + 38912
    E0, E1, E2, E3, E4, E5, E6, E7 = 36, 37, 38, 39, 6, 7, 10, 11
    S_T0 = S_U0; S_O3 = S_U1; S_W1 = E6
    RRB = SLOT
    S_HX, S_GP, S_MXl, S_HS, S_C3, S_R0, S_R1, S_P0 = range(R_W1, R_W1 + 8); S_W2 = E3
    def p2_scalars():
        a(f'''s_lshl_b32 {s(T0+2)}, {s(S_STILE)}, 4
s_lshl_b32 {s(T0+3)}, {s(S_KH)}, 3
s_add_u32 {s(T0+2)}, {s(T0+2)}, {s(T0+3)}
s_mul_i32 {s(T0+2)}, {s(T0+2)}, 1280
s_add_u32 {s(T0+2)}, {s(T0+2)}, {OFF_O}
s_mul_i32 {s(S_T0)}, {s(S_HP)}, 7
s_mul_i32 {s(T0+4)}, {s(S_HP)}, 6
s_add_u32 {s(T0+4)}, {s(T0+4)}, 12
s_cmp_lt_u32 {s(S_HP)}, 12
s_cselect_b32 {s(S_T0)}, {s(S_T0)}, {s(T0+4)}
s_add_u32 {s(S_W1)}, {s(S_T0)}, {s(S_W)}
s_lshl_b32 {s(S_W1)}, {s(S_W1)}, 10
s_add_u32 {s(S_W1)}, {s(S_W1)}, {OFF_W1P}''')
        a(f'''s_and_b32 {s(S_O3)}, {s(S_T0)}, 1
s_lshl_b32 {s(T0+4)}, {s(S_T0)}, 5
s_sub_u32 {s(T0+6)}, 3456, {s(T0+4)}''')
        srd(a, R_B1, P_B1, s(T0+4), s(T0+6))
        a(f'''s_mul_i32 {s(E0)}, {s(S_CT)}, 5
s_add_u32 {s(E0)}, {s(E0)}, 1
s_lshr_b32 {s(E0)}, {s(E0)}, 1
s_mul_i32 {s(E1)}, {s(S_STILE)}, 20
s_add_u32 {s(E0)}, {s(E0)}, {s(E1)}
s_cmp_eq_u32 {s(S_ODD)}, 0
s_cselect_b32 {s(E1)}, 2, -1
s_add_u32 {s(E1)}, {s(E1)}, {s(E0)}
s_lshl_b32 {s(E1)}, {s(E1)}, 10
s_lshl_b32 {s(E2)}, {s(S_ODD)}, 9
s_add_u32 {s(E1)}, {s(E1)}, {s(E2)}
s_add_u32 {s(E1)}, {s(E1)}, {OFF_H}
s_cmp_lg_u32 {s(S_KH)}, 0
s_cselect_b32 {s(E1)}, {OOR}, {s(E1)}
s_cselect_b32 {s(E5)}, 0, 1.0
s_add_u32 {s(E0)}, {s(E0)}, {s(S_KH)}
s_lshl_b32 {s(E0)}, {s(E0)}, 10
s_add_u32 {s(E0)}, {s(E0)}, {OFF_H}
s_lshl_b32 {s(E2)}, {s(S_STILE)}, 3
s_add_u32 {s(E2)}, {s(E2)}, {s(S_CT)}
s_lshl_b32 {s(E2)}, {s(E2)}, 8
s_lshl_b32 {s(T0+3)}, {s(S_KH)}, 7
s_add_u32 {s(E2)}, {s(E2)}, {s(T0+3)}
s_add_u32 {s(E2)}, {s(E2)}, {OFF_HST}
s_mul_i32 {s(E3)}, {s(S_CT)}, 5120
s_mul_i32 {s(T0+3)}, {s(S_W)}, 40960
s_add_u32 {s(E3)}, {s(E3)}, {s(T0+3)}
s_add_u32 {s(E3)}, {s(E3)}, {OFF_W2P}
s_mul_i32 {s(E7)}, {s(S_W)}, 5120
s_lshl_b32 {s(S_C3)}, {s(S_O3)}, 5
s_lshl_b32 {s(T0+6)}, {s(S_MG)}, 6
s_add_u32 {s(S_C3)}, {s(S_C3)}, {s(T0+6)}
s_cmp_eq_u32 {s(S_C3)}, 224
s_cselect_b32 {s(S_C3)}, 0, {s(S_C3)}
s_lshl_b32 {s(S_P0)}, {s(S_C3)}, 5
s_lshl_b32 {s(S_HX)}, {s(S_RT1)}, 3
s_lshl_b32 {s(T0+6)}, {s(S_KH)}, 2
s_add_u32 {s(S_HX)}, {s(S_HX)}, {s(T0+6)}
s_mul_i32 {s(S_GP)}, {s(S_HX)}, 54
s_mul_i32 {s(S_HX)}, {s(S_HX)}, 20
s_add_u32 {s(S_HX)}, {s(S_HX)}, {s(S_MG)}
s_lshl_b32 {s(S_HX)}, {s(S_HX)}, 10
s_add_u32 {s(S_HX)}, {s(S_HX)}, {OFF_H}
s_mul_i32 {s(S_MXl)}, {s(S_KH)}, 20480
s_lshl_b32 {s(T0+6)}, {s(S_MG)}, 10
s_add_u32 {s(S_MXl)}, {s(S_MXl)}, {s(T0+6)}
s_lshl_b32 {s(T0+6)}, {s(S_T0)}, 5
s_add_u32 {s(T0+6)}, {s(T0+6)}, {s(S_C3)}
s_lshr_b32 {s(T0+7)}, {s(T0+6)}, 6
s_add_u32 {s(S_GP)}, {s(S_GP)}, {s(T0+7)}
s_lshl_b32 {s(S_GP)}, {s(S_GP)}, 10
s_bfe_u32 {s(T0+7)}, {s(T0+6)}, 0x10005
s_lshl_b32 {s(T0+7)}, {s(T0+7)}, 9
s_add_u32 {s(S_GP)}, {s(S_GP)}, {s(T0+7)}
s_add_u32 {s(S_GP)}, {s(S_GP)}, {OFF_G}
s_cmp_ge_u32 {s(S_HP)}, 12
s_cselect_b32 {s(T0+6)}, {OOR}, {s(S_GP)}
s_cmp_eq_u32 {s(S_MG)}, 3
s_cselect_b32 {s(S_GP)}, {s(T0+6)}, {s(S_GP)}
s_lshl_b32 {s(S_HS)}, {s(S_RT1)}, 3
s_add_u32 {s(S_HS)}, {s(S_HS)}, {s(S_W)}
s_lshl_b32 {s(S_HS)}, {s(S_HS)}, 11
s_add_u32 {s(S_HS)}, {s(S_HS)}, {OFF_HST}
s_lshl_b32 {s(S_R0)}, {s(S_W)}, 7
s_add_u32 {s(S_R0)}, {s(S_R0)}, {RRB}
s_lshl_b32 {s(S_R1)}, {s(S_KH)}, 9
s_add_u32 {s(S_R1)}, {s(S_R1)}, {RRB}''')
    def p2_setup():
        g_, r_, c_ = t4, t5, t6
        a(f'v_lshrrev_b32 {v(g_)}, 4, {v(vL)}\ns_xor_b32 {s(T0+4)}, {s(S_KH)}, 1\ns_mul_i32 {s(T0+4)}, {s(T0+4)}, 51200')
        for i, sc in enumerate((S_CM, S_CO, S_CS)):
            a(f's_lshl_b32 {s(T0+5)}, {s(sc)}, 5\ns_add_u32 {s(T0+5)}, {s(T0+5)}, {s(T0+4)}\nv_add_u32 {v(aM+i)}, {s(T0+5)}, {v(vL16)}')
        a(f'''s_movk_i32 {s(T0+7)}, 1024
s_mul_i32 {s(T0+5)}, {s(S_MG)}, 3072
s_add_u32 {s(T0+5)}, {s(T0+5)}, {XC0}
s_add_u32 {s(T0+6)}, {s(T0+5)}, {s(T0+4)}
v_add_u32 {v(axw)}, {s(T0+6)}, {v(vL16)}
s_sub_u32 {s(T0+6)}, 51200, {s(T0+4)}
s_add_u32 {s(T0+6)}, {s(T0+6)}, {s(T0+5)}
v_add_u32 {v(axr)}, {s(T0+6)}, {v(vL16)}
v_lshlrev_b32 {v(vL8)}, 3, {v(vL)}
v_mul_u32_u24 {v(vL4b)}, {1280-256}, {v(g_)}
v_add3_u32 {v(vL4b)}, {v(vL4b)}, {v(vL16)}, {s(T0+7)}
v_and_b32 {v(t2)}, 15, {v(vL)}
v_mul_u32_u24 {v(t2)}, 160, {v(t2)}
v_lshl_add_u32 {v(t2)}, {v(g_)}, 3, {v(t2)}
s_mul_i32 {s(T0+4)}, {s(S_MG)}, 2560
s_add_u32 {s(T0+4)}, {s(T0+4)}, {XRL}
s_add_u32 {s(T0+5)}, {s(T0+4)}, {s(S_CM)}
v_add_u32 {v(axr_)}, {s(T0+5)}, {v(t2)}
s_add_u32 {s(T0+5)}, {s(T0+4)}, {s(S_CS)}
v_add_u32 {v(axr_+1)}, {s(T0+5)}, {v(t2)}''')
    tl = [(0, 0), (0, 1024), (1, 0), (1, 1024), (2, 0)]
    WB_ = lambda kind, j: WP[j % 6] if kind == 'm' else WP[6 + j]
    def wread(kind, j):
        idx = (j if j < 6 else j + 2) if kind == 'm' else 6 + j
        return [f'ds_read_b128 {v(WB_(kind,j)+4*t,4)}, {v(aM+ai)} offset:{idx*5120+ci}' for t, (ai, ci) in enumerate(tl)]
    def xinit():
        a(f'ds_read_b64 {v(vXR,2)}, {v(axr_)}\nds_read_b64 {v(vXR+2,2)}, {v(axr_)} offset:32\nds_read_b64 {v(vXR+4,2)}, {v(axr_+1)}')
    own2 = [acc2, acc2 + 4, acc2 + 16]
    def xinit2():
        for i in range(6):
            o = own2[i // 2] + 2 * (i & 1)
            a(f'v_lshlrev_b32 {v(o)}, 16, {v(vXR+i)}\nv_and_b32 {v(o+1)}, 0xffff0000, {v(vXR+i)}')
        for i in range(4): a(f'v_mul_f32 {v(acc2+16+i)}, {s(E5)}, {v(acc2+16+i)}')
    def preread(): return [x for j in range(6) for x in wread('m', j)] + [x for j in range(2) for x in wread('s', j)]

    p1_mark = base_mark
    va.reset(base_mark)
    vX = va.a(4); vW = va.a(6); aX = vHR; vFL = vHR + 4
    a(f"""v_lshrrev_b32 {v(t0)}, 3, {v(vL)}
v_and_b32 {v(t1)}, 7, {v(vL)}
v_lshrrev_b32 {v(t2)}, 4, {v(vL)}
s_lshl_b32 {s(T0+4)}, {s(S_MG)}, 5
v_add_u32 {v(t3)}, {s(T0+4)}, {v(t0)}
v_mul_u32_u24 {v(t3)}, 1280, {v(t3)}
v_xor_b32 {v(vX)}, {v(t1)}, {v(t2)}
v_lshl_add_u32 {v(vX)}, {v(vX)}, 4, {v(t3)}
v_xor_b32 {v(vX+1)}, 64, {v(vX)}
v_add_u32 {v(vX+1)}, {8*1280-1024}, {v(vX+1)}
v_add_u32 {v(vX+2)}, {16*1280-2048}, {v(vX)}
v_add_u32 {v(vX+3)}, {16*1280-2048}, {v(vX+1)}
s_mul_i32 {s(T0+6)}, {s(S_RT1)}, 163840""")
    S_MX = M_C; S_MW = M_C + 1; S_SX = M_D; S_SW = M_D + 1; S_CH = S_U1
    a(f's_lshl_b32 {s(S_MX)}, {s(S_MG)}, 12\ns_lshl_b32 {s(S_MW)}, {s(S_MG)}, 11')
    a(f"""s_mul_i32 {s(S_CH)}, {s(T0+2)}, 3
s_add_u32 {s(S_CH)}, {s(S_CH)}, {s(T0+3)}
s_and_b32 {s(T0+7)}, {s(T0)}, 3
s_add_u32 {s(S_CH)}, {s(S_CH)}, {s(T0+7)}
s_lshr_b32 {s(T0+7)}, {s(T0)}, 2
s_lshl_b32 {s(T0+7)}, {s(T0+7)}, 1
s_add_u32 {s(S_CH)}, {s(S_CH)}, {s(T0+7)}
s_cmp_ge_u32 {s(S_CH)}, 10
s_cselect_b32 {s(T0+7)}, 10, 0
s_sub_u32 {s(S_CH)}, {s(S_CH)}, {s(T0+7)}
s_cmp_ge_u32 {s(S_CH)}, 10
s_cselect_b32 {s(T0+7)}, 10, 0
s_sub_u32 {s(S_CH)}, {s(S_CH)}, {s(T0+7)}
s_lshl_b32 {s(T0+4)}, {s(S_MG)}, 4
v_add_u32 {v(t3)}, {s(T0+4)}, {v(t0)}
v_mul_u32_u24 {v(t3)}, 3840, {v(t3)}
v_and_b32 {v(t2)}, 1, {v(t2)}
v_lshlrev_b32 {v(t2)}, 1, {v(t2)}
v_xor_b32 {v(t1)}, {v(t1)}, {v(t2)}
v_lshl_add_u32 {v(t3)}, {v(t1)}, 4, {v(t3)}
v_xor_b32 {v(t0)}, 64, {v(t3)}
v_add_u32 {v(t0)}, {8*3840-1024}, {v(t0)}
s_mul_i32 {s(T0+5)}, {s(S_HP)}, 80
s_and_b32 {s(T0+5)}, {s(T0+5)}, 0xffffffc0
s_add_u32 {s(T0+5)}, {s(T0+5)}, 1280
v_add_u32 {v(vW)}, {s(T0+5)}, {v(t3)}
v_add_u32 {v(vW+1)}, {s(T0+5)}, {v(t0)}
s_add_u32 {s(T0+5)}, {s(T0+5)}, 1280
v_xor_b32 {v(t1)}, 16, {v(t3)}
v_xor_b32 {v(t2)}, 16, {v(t0)}
v_add_u32 {v(vW+2)}, {s(T0+5)}, {v(t1)}
v_add_u32 {v(vW+3)}, {s(T0+5)}, {v(t2)}
s_waitcnt lgkmcnt(0)""")
    srd(a, R_X, P_X, s(T0+6), 163840)
    srd(a, R_WQ, P_WQKV, None, 2457600)
    adv = f's_add_u32 {s(S_CH)}, {s(S_CH)}, 1\ns_cmp_eq_u32 {s(S_CH)}, 10\ns_cselect_b32 {s(S_CH)}, 0, {s(S_CH)}'
    def p1_dma(c):
        sl = c % 4
        L = [f's_lshl_b32 {s(S_SX)}, {s(S_CH)}, 7\ns_mul_i32 {s(S_SW)}, {s(S_CH)}, 245760\ns_add_u32 m0, {s(S_MX)}, {sl*SA}\n{adv}\n'
             f'buffer_load_dwordx4 {v(vX)}, {s(R_X,4)}, {s(S_SX)} offen{NTX} lds']
        for i in range(1, 4):
            L.append(f'buffer_load_dwordx4 {v(vX+i)}, {s(R_X,4)}, {s(S_SX)} offen offset:{1024*i}{NTX} lds')
        for sec in range(2):
            L[-1] += f'\ns_add_u32 m0, {s(S_MW)}, {RK + 8192*sec + sl*SA}'
            for b in range(2):
                tg = f';@tag c{c}\n' if (sec == 1 and b == 1) else ''
                L.append(f'{tg}buffer_load_dwordx4 {v(vW+2*sec+b)}, {s(R_WQ,4)}, {s(S_SW)} offen offset:{1024*b}{NTW} lds')
        return L
    def wq_dma(qs):
        L = []
        for q in qs:
            L.append(f's_mul_i32 {s(S_SW)}, {s(S_CH)}, 245760\ns_add_u32 m0, {s(S_MW)}, {WQPOS[q]}\n{adv}\n'
                     f'buffer_load_dwordx4 {v(vW+4)}, {s(R_WQ,4)}, {s(S_SW)} offen{NTW} lds')
            L.append(f';@tag q{q}\nbuffer_load_dwordx4 {v(vW+5)}, {s(R_WQ,4)}, {s(S_SW)} offen offset:1024{NTW} lds')
        return L
    stamp('start')
    a(p1_dma(0))
    a(f"""s_xor_b32 {s(T0+5)}, {s(S_HP)}, {QXOR}
s_mul_i32 {s(T0+5)}, {s(T0+5)}, 80
s_and_b32 {s(T0+5)}, {s(T0+5)}, 0xffffffc0
v_add_u32 {v(vW+4)}, {s(T0+5)}, {v(t3)}
v_add_u32 {v(vW+5)}, {s(T0+5)}, {v(t0)}""")
    x_addrs(aX)
    for i in range(4): a(f'v_mov_b32 {v(vONE+i)}, 0x3f803f80')
    aQ = va.a(6); aST = va.a(); zp = va.a(2); aTW = zp + 1
    XR = va.a(160, 4); gram = va.a(8, 4); rsum = va.a(8, 4)
    lmark = va.mark()
    ltouch = f'''v_min_u32 {v(t0)}, 31, {v(vL)}
v_mul_lo_u32 {v(t0)}, {v(t0)}, {s(S_U0)}
v_lshlrev_b32 {v(t1)}, 7, {v(vL)}
buffer_load_dword {v(vDUM)}, {v(t1)}, {s(R_B1,4)}, {s(P_BX)} offen
buffer_load_dword {v(vDUM)}, {v(t0)}, {s(R_W2,4)}, {s(P_BX+1)} offen{NTR}'''
    i_ls = stamp('loopstart')
    NQ8 = OPT.get('nq8', 0); NQ1 = OPT.get('nq1', 2)
    a(p1_dma(1))
    for i in range(10):
        a(f';@wait c{i}\ns_barrier')
        sl = i % 4
        for j in range(2):
            for m in range(2): a(f'ds_read_b128 {v(XR+16*i+8*j+4*m,4)}, {v(aX+2*(sl>>1)+j)} offset:{(sl&1)*SA + 2048*m}')
        M = []
        for j in range(2):
            z = (i == 0 and j == 0)
            for m in range(2):
                x = v(XR + 16 * i + 8 * j + 4 * m, 4)
                M.append(f'{MF} {v(gram+4*m,4)}, {x}, {x}, {0 if z else v(gram+4*m,4)}')
                M.append(f'{MF} {v(rsum+4*m,4)}, {v(vONE,4)}, {x}, {0 if z else v(rsum+4*m,4)}')
        D_ = p1_dma(i + 2) if i <= 7 else []
        if i == 6: a(f'buffer_load_dword {v(vD10)}, {v(zp)}, {s(R_DBG,4)}, 0 offen sc1')
        a(D_[:2]); a(weave(M, D_[2:]))
        if i == 0:
            srd(a, R_WS, P_WS, None, WS_REC)
            late_ids()
        if i == 1:
            w_addrs(aQ + 1, aQ + 2, aQ, QXOR, 2 * SA)
            for k in range(3): a(f'v_add_u32 {v(aQ+3+k)}, {SP-2*SA}, {v(aQ+k)}')
            a(mk(M_A, lambda l: (l & 3) == 1)); a(mk(M_B, lambda l: (l & 3) == 2)); a(mk(T0+2, lambda l: (l & 3) == 3))
            a(mk(T0, lambda l: ((l & 15) >> 2) == (l >> 4)))
            a(f"""v_and_b32 {v(t0)}, 15, {v(vL)}
v_lshlrev_b32 {v(t0)}, 2, {v(t0)}
s_lshl_b32 {s(T0+4)}, {s(S_MG)}, 7
s_add_u32 {s(T0+4)}, {s(T0+4)}, {ST}
v_add_u32 {v(aST)}, {s(T0+4)}, {v(t0)}
v_mov_b32 {v(zp)}, 0
v_mov_b32 {v(vFL)}, {FLG}
v_mov_b32 {v(vFL+1)}, 1
""")
        if i == 2:
            a(f'''s_lshl_b32 {s(T0+5)}, {s(S_T)}, 2
s_add_u32 {s(T0+5)}, {s(T0+5)}, {s(S_MG)}
s_lshl_b32 {s(P_BX)}, {s(T0+5)}, 13
s_lshl_b32 {s(T0+6)}, s2, 2
s_add_u32 {s(T0+6)}, {s(T0+6)}, {s(S_MG)}
s_movk_i32 {s(S_U0)}, 3456
s_movk_i32 {s(P_BX+1)}, {(1<<16)//27+1}
s_cmp_lt_u32 {s(T0+6)}, 540
s_cselect_b32 {s(R_W2)}, {s(P_W2)}, {s(P_W1)}
s_cselect_b32 {s(R_W2+1)}, {s(P_W2+1)}, {s(P_W1+1)}
s_mov_b32 {s(R_W2+2)}, 2211840
s_mov_b32 {s(R_W2+3)}, 0x20000
s_cselect_b32 {s(S_U0)}, 1280, {s(S_U0)}
s_cselect_b32 {s(T0+5)}, 0, 540
s_cselect_b32 {s(P_BX+1)}, {(1<<16)//10+1}, {s(P_BX+1)}
s_sub_u32 {s(T0+5)}, {s(T0+6)}, {s(T0+5)}
s_mul_i32 {s(P_BX+1)}, {s(P_BX+1)}, {s(T0+5)}
s_lshr_b32 {s(P_BX+1)}, {s(P_BX+1)}, 16
s_mul_i32 {s(P_BX+1)}, {s(P_BX+1)}, {s(S_U0)}
s_mul_i32 {s(P_BX+1)}, {s(P_BX+1)}, 31
s_lshl_b32 {s(T0+5)}, {s(T0+5)}, 7
s_add_u32 {s(P_BX+1)}, {s(P_BX+1)}, {s(T0+5)}''')
            srd(a, R_B1, P_WO, None, 819200)
        if i == OPT.get('lt', 1) - 20: a(ltouch)
        if i == OPT.get('wq0at', 7): a(wq_dma(range(3)))
        if i == OPT.get('lt', 1) - 10: a(ltouch)
        if i == 8: a(wq_dma(range(3, 3 + NQ8)))
    tmp = vTmp
    a(f's_mov_b32 {s(T0+4)}, {fhex(1/640)}\ns_mov_b32 {s(T0+5)}, {fhex(1e-5)}')
    SS = []
    for m in range(2):
        G = gram + 4 * m; sm = rsum + 4 * m; sq = tmp + 4 * m + 1; o = tmp + 4 * m + 2
        SS.append(f"""v_cndmask_b32 {v(sq)}, {v(G)}, {v(G+1)}, {s(M_A,2)}
v_cndmask_b32 {v(sq)}, {v(sq)}, {v(G+2)}, {s(M_B,2)}
v_cndmask_b32 {v(sq)}, {v(sq)}, {v(G+3)}, {s(T0+2,2)}
v_mul_f32 {v(sm)}, {s(T0+4)}, {v(sm)}
v_mul_f32 {v(sq)}, {s(T0+4)}, {v(sq)}
v_fma_f32 {v(sq)}, -{v(sm)}, {v(sm)}, {v(sq)}
v_max_f32 {v(sq)}, 0, {v(sq)}
v_add_f32 {v(sq)}, {s(T0+5)}, {v(sq)}
v_rsq_f32 {v(o)}, {v(sq)}
v_mul_f32 {v(o+1)}, -{v(sm)}, {v(o)}""".split('\n'))
    for x, y in zip(*SS): a(x); a(y)
    a(f's_mov_b64 exec, {s(T0,2)}')
    for m in range(2):
        a(f'ds_write2_b32 {v(aST)}, {v(tmp+4*m+2)}, {v(tmp+4*m+3)} offset0:{16*m} offset1:{128+16*m}')
    a('s_mov_b64 exec, -1')
    a(f"""v_readfirstlane_b32 {s(T0+4)}, {v(vD10)}
s_cmp_ge_u32 {s(T0+4)}, {ZBYTES//1024}
s_cbranch_scc1 L_zok
s_mov_b32 {s(T0+5)}, 0x400000
L_zpoll:
buffer_load_dword {v(vD10)}, {v(zp)}, {s(R_DBG,4)}, 0 offen sc1
s_waitcnt vmcnt(0)
v_readfirstlane_b32 {s(T0+4)}, {v(vD10)}
s_sub_u32 {s(T0+5)}, {s(T0+5)}, 1
s_cmp_eq_u32 {s(T0+5)}, 0
s_cbranch_scc1 L_zok
s_cmp_lt_u32 {s(T0+4)}, {ZBYTES//1024}
s_cbranch_scc1 L_zpoll
L_zok:""")
    a(wq_dma(range(3 + NQ8, 3 + NQ8 + NQ1)))
    a('s_waitcnt lgkmcnt(0)')
    i_le = stamp('p1loop')
    a('s_barrier')
    QD = wq_dma(range(3 + NQ8 + NQ1, 10))
    va.reset(gram)
    stt = vX
    for m in range(2):
        a(f'ds_read2_b32 {v(stt+2*m,2)}, {v(aST)} offset0:{16*m} offset1:{128+16*m}')
    acc = va.a(24, 4); csq = va.a(12, 4); fq = [va.a(12, 4), vTmp - 0]
    fq[1] = None
    fq1 = [vTmp, vTmp + 4, vW + 0]
    assert vW % 2 == 0
    FQ = lambda b, t: (fq[0] + 4 * t) if b == 0 else fq1[t]
    def qreads(n):
        q = n >> 1; pos = WQPOS[q]; st_ = 3 if pos >= SP else 0; off = pos - (SP if pos >= SP else 2 * SA) + 4096 * (n & 1)
        return [f'ds_read_b64_tr_b16 {v(FQ(n&1,t)+2*jh,2)}, {v(aQ+st_+t)} offset:{off + 512*jh}' for t in range(3) for jh in range(2)]
    groups = {0: (2, 0), 6: (6, 4), 14: (9, 8)}
    def qsync(n):
        ql, fo = groups[n]
        if OPT.get('fine'): stamp(f'q{n}a')
        a(f';@wait q{ql}'); larrive(vFL, F_WQ + fo); lwait(vFL, F_WQ + fo, f'q{n}', vD10)
        if OPT.get('fine'): stamp(f'q{n}b')
    LT = OPT.get('lt', 5)
    if LT == 2: a(ltouch)
    if LT: a(QD); QD = []
    if LT == 1: a(ltouch)
    if LT == 3: a(ltouch.split('\n')[2:4])
    if LT == 5: a(ltouch.split('\n')[0:2] + ltouch.split('\n')[4:])
    if OPT.get('holdb', 0): lwait(vFL, F_KVR, 'hb', vD10)
    qsync(0)
    a(qreads(0))
    CSS = OPT.get('css', 0)
    if CSS:
        for r in range(csq, csq + 12): a(f'v_mov_b32 {v(r)}, 0')
    for n in range(20):
        M = []; C_ = []
        for t in range(3):
            for m in range(2):
                d = v(acc + (2 * t + m) * 4, 4)
                M.append(f'{MF} {d}, {v(FQ(n&1,t),4)}, {v(XR+8*n+4*m,4)}, {d if n else 0}')
            (C_ if CSS else M).append(f'{MF} {v(csq+4*t,4)}, {v(FQ(n&1,t),4)}, {v(vONE,4)}, {v(csq+4*t,4) if (n or CSS) else 0}')
        if n + 1 in groups:
            a(QD); QD = []
            a(M[:2]); qsync(n + 1); a(weave(M[2:], qreads(n + 1), per=2))
        elif n < 19:
            k = OPT.get('qdper', 3); a(weave(M, qreads(n + 1) + QD[:k])); QD = QD[k:]
        else: a(M)
        if CSS:
            a(f's_cmp_lg_u32 {s(S_MG)}, {n & 3}\ns_cbranch_scc1 L_cq{n}'); a(C_); a(f'L_cq{n}:')
    if CSS:
        CSX = MISC + 2048
        a(f'''v_and_b32 {v(t0)}, 48, {v(vL)}
v_add_u32 {v(t0)}, {CSX}, {v(t0)}
s_mul_i32 {s(T0+4)}, {s(S_MG)}, 192
v_add_u32 {v(t1)}, {s(T0+4)}, {v(t0)}
s_mov_b32 exec_lo, 0x10001
s_mov_b32 exec_hi, 0x10001''')
        for t in range(3): a(f'ds_write_b128 {v(t1)}, {v(csq+4*t,4)} offset:{64*t}')
        a('s_mov_b64 exec, -1')
    larrive(vFL, F_PB)
    if CSS:
        lwait(vFL, F_PB, 'cq', vD10)
        cp_ = XR + 36
        for w_ in range(4):
            for t in range(3): a(f'ds_read_b128 {v(cp_+12*w_+4*t,4)}, {v(t0)} offset:{192*w_+64*t}')
    stamp('passB')
    va.reset(XR)
    kc = va.a(6, 2); cL, cE6L, e6v = kc, kc + 2, kc + 4
    tmp = va.a(16, 4); pk = va.a(12, 4); kvr = va.a(16, 4); fr = va.a(12, 4); Dq = va.a(32, 4); O = va.a(8, 4); tt = va.a(8, 2); cden = va.a(4, 4)
    aPA = va.a(); aSB = va.a(); vL4 = va.a(); OS = va.a(2)
    a(f"""v_mov_b32 {v(cL)}, {fhex(LOG2E)}
v_mov_b32 {v(cE6L)}, {fhex(-1e-6*LOG2E)}
v_mov_b32 {v(e6v)}, {fhex(1e-6)}
v_mov_b32 {v(cden)}, {fhex(1e-6)}
v_mov_b32 {v(cden+1)}, {fhex(1e-6)}
v_mov_b32 {v(cden+2)}, 0
v_mov_b32 {v(cden+3)}, 0
v_lshlrev_b32 {v(vL4)}, 2, {v(vL)}
s_xor_b32 {s(T0+2)}, {s(S_HP)}, {QXOR}
s_lshl_b32 {s(T0)}, {s(S_MG)}, 1
s_lshl_b32 {s(T0+1)}, {s(S_RT1)}, 3
s_add_u32 {s(T0)}, {s(T0)}, {s(T0+1)}
s_lshl_b32 {s(T0)}, {s(T0)}, 4
s_add_u32 {s(T0)}, {s(T0)}, {s(T0+2)}
s_mul_i32 {s(T0)}, {s(T0)}, 1280
s_add_u32 {s(T0)}, {s(T0)}, {OFF_O}
s_add_u32 {s(T0+1)}, {s(T0)}, {16*1280}
s_lshl_b32 {s(T0+3)}, {s(T0+2)}, 7
s_add_u32 {s(T0+3)}, {s(T0+3)}, {OFF_CA}
s_lshl_b32 {s(T0+2)}, {s(T0+2)}, 12
s_add_u32 {s(T0+2)}, {s(T0+2)}, {OFF_KV}""")
    a(mk(M_A, lambda l: (l >> 4) == 0)); a(mk(M_B, lambda l: (l >> 4) == 1))
    a(mk(M_C, lambda l: ((l >> 4) == 0 and (l & 1) == 0) or ((l >> 4) == 1 and (l & 1) == 1)))
    a(mk(M_D, lambda l: (l & 1) == 0))
    if CSS:
        assert cp_ == kvr and Dq + 32 >= cp_ + 48
        for i in range(0, 12, 2):
            a(f'v_pk_add_f32 {v(cp_+i,2)}, {v(cp_+i,2)}, {v(cp_+12+i,2)}\nv_pk_add_f32 {v(cp_+24+i,2)}, {v(cp_+24+i,2)}, {v(cp_+36+i,2)}')
        for i in range(0, 12, 2): a(f'v_pk_add_f32 {v(csq+i,2)}, {v(cp_+i,2)}, {v(cp_+24+i,2)}')
    dst = {1: 0, 0: 2, 2: 4}
    for t in range(3):
        c = csq + 4 * t
        for m in range(2):
            for i in (0, 2):
                a(f'v_pk_fma_f32 {v(tmp+8*m+i,2)}, {v(stt+2*m,2)}, {v(c+i,2)}, {v(e6v,2)} op_sel:[1,0,0] op_sel_hi:[1,1,0]')
        for m in range(2):
            x = acc + (2 * t + m) * 4
            for i in (0, 2):
                a(f'v_pk_fma_f32 {v(x+i,2)}, {v(x+i,2)}, {v(stt+2*m,2)}, {v(tmp+8*m+i,2)} op_sel_hi:[1,0,1]')
        P = [phi4(acc + (2 * t + m) * 4, tmp + 8 * m + 4, cL, cE6L, e6v) for m in range(2)]
        for x, y in zip(*P): a(x); a(y)
        for m in range(2):
            x = acc + (2 * t + m) * 4; o = pk + 6 * m + dst[t]
            a(f'v_cvt_pk_bf16_f32 {v(o)}, {v(x)}, {v(x+1)}\nv_cvt_pk_bf16_f32 {v(o+1)}, {v(x+2)}, {v(x+3)}')
    stamp('qepi')
    lwait(vFL, F_GA, 'ga', tmp)
    stamp('syncA')
    for b in (3, 2, 0, 1):
        a(f'buffer_load_dwordx4 {v(kvr+4*b,4)}, {v(vL16)}, {s(R_WS,4)}, {s(T0+2)} offen offset:{1024*b} sc1')
    M0, M1, EM, XX = kvr, kvr + 4, kvr + 8, kvr + 12
    em, xx, tx = tt, tt + 2, tt + 4; f = fr
    for i in range(2): a(f'v_cvt_pk_bf16_f32 {v(xx+i)}, {v(XX+2*i)}, {v(XX+2*i+1)}')
    for i in range(2): a(f'v_cvt_pk_bf16_f32 {v(em+i)}, {v(EM+2*i)}, {v(EM+2*i+1)}')
    for i in range(2): a(f'v_permlane32_swap_b32 {v(xx+i)}, {v(tx+i)}')
    for i in range(2): a(f'v_cndmask_b32 {v(tx+i)}, 0, {v(tx+i)}, {s(M_C,2)}')
    for i in range(2):
        a(f'v_cndmask_b32 {v(f+8+i)}, {v(tx+i)}, {v(em+i)}, {s(M_D,2)}')
        a(f'v_cndmask_b32 {v(f+10+i)}, {v(em+i)}, {v(tx+i)}, {s(M_D,2)}')
    for i in range(2):
        a(f'v_cndmask_b32 {v(f+2+i)}, 0, {v(xx+i)}, {s(M_A,2)}')
        a(f'v_cndmask_b32 {v(f+4+i)}, 0, {v(xx+i)}, {s(M_B,2)}')
    X0 = lambda m: v(pk + 6 * m, 4); X1 = lambda m: v(pk + 6 * m + 2, 4)
    for m in range(2):
        a(f'{MF} {v(Dq+16*m+8,4)}, {v(f+8,4)}, {X0(m)}, {v(cden,4)}\n{MF} {v(Dq+16*m+12,4)}, {v(f+8,4)}, {X1(m)}, {v(cden,4)}')
    for i in range(2): a(f'v_cvt_pk_bf16_f32 {v(f+i)}, {v(M0+2*i)}, {v(M0+2*i+1)}')
    for i in range(2): a(f'v_cvt_pk_bf16_f32 {v(f+6+i)}, {v(M1+2*i)}, {v(M1+2*i+1)}')
    for m in range(2):
        a(f'{MF} {v(Dq+16*m,4)}, {v(f,4)}, {X0(m)}, 0\n{MF} {v(Dq+16*m+4,4)}, {v(f+4,4)}, {X1(m)}, 0')
    for m in range(2):
        d = Dq + 16 * m
        a(f'v_rcp_f32 {v(tt+4*m)}, {v(d+8)}\nv_rcp_f32 {v(tt+4*m+1)}, {v(d+13)}')
    for m in range(2):
        d = Dq + 16 * m
        a(f'v_mul_f32 {v(tt+4*m+2)}, {v(tt+4*m)}, {v(d+10)}\nv_mul_f32 {v(tt+4*m+3)}, {v(tt+4*m+1)}, {v(d+15)}')
        a(f'v_cvt_pk_bf16_f32 {v(OS+m)}, {v(tt+4*m+2)}, {v(tt+4*m+3)}')
        a(f'buffer_store_dword {v(OS+m)}, {v(vL4)}, {s(R_WS,4)}, {s(T0+m)} offen offset:1024 sc1')
    for m in range(2):
        d = Dq + 16 * m
        for i in (0, 2): a(f'v_pk_mul_f32 {v(d+i,2)}, {v(d+i,2)}, {v(tt+4*m,2)} op_sel_hi:[1,0]')
        for i in (4, 6): a(f'v_pk_mul_f32 {v(d+i,2)}, {v(tt+4*m,2)}, {v(d+i,2)} op_sel:[1,0] op_sel_hi:[1,1]')
        for i in range(4): a(f'v_cvt_pk_bf16_f32 {v(O+4*m+i)}, {v(d+2*i)}, {v(d+2*i+1)}')
        a(f'buffer_store_dwordx4 {v(O+4*m,4)}, {v(vL16)}, {s(R_WS,4)}, {s(T0+m)} offen sc1')
    stamp('ost')
    p2_setup()
    p2_scalars()
    last_signals(vFL, F_DRB, 'B', vD10, S_RT1, OFF_CB)
    stamp('sigB')
    JB = OPT.get('jb', 1)
    if JB: a('s_barrier')
    else: lwait(vFL, F_H0, 'h0l', vD10)
    xinit(); a(preread()); xinit2()
    a('s_branch L_p1join')

    va.reset(base_mark)
    a('L_p1c:\n;@restore p1')
    stamp('start', 0)
    aX = vHR; vFL = vHR + 4
    a(f'v_mov_b32 {v(t0)}, 0\nv_mov_b32 {v(t1)}, 0\nv_mov_b32 {v(t2)}, 0\nv_mov_b32 {v(t3)}, 0\nv_mov_b32 {v(vFL)}, {FLG}\nv_mov_b32 {v(vFL+1)}, 1')
    a(f'ds_write_b128 {v(vFL)}, {v(t0,4)}\nds_write_b128 {v(vFL)}, {v(t0,4)} offset:16\nds_write_b128 {v(vFL)}, {v(t0,4)} offset:32')
    for i in range(4): a(f'v_mov_b32 {v(vONE+i)}, 0x3f803f80')
    x_addrs(aX)
    aT = va.a(10)
    w_addrs(aT, aT + 1, aT + 4, 0, RK)
    a(f"""v_xor_b32 {v(aT+2)}, 16, {v(aT)}
v_xor_b32 {v(aT+3)}, 16, {v(aT+1)}
v_xor_b32 {v(t0)}, 16, {v(aT+4)}
v_add_u32 {v(aT+2)}, {RV-RK}, {v(aT+2)}
v_add_u32 {v(aT+3)}, {RV-RK}, {v(aT+3)}
v_add_u32 {v(t0)}, {RV-RK}, {v(t0)}
v_cmp_lt_u32 vcc, 1, {v(t6)}
v_cndmask_b32 {v(aT+4)}, {v(aT+4)}, {v(t0)}, vcc""")
    for i in range(5): a(f'v_add_u32 {v(aT+5+i)}, {2*SA}, {v(aT+i)}')
    raw = va.a(32, 4); vPK = va.a(4); PKO = P_BX; PKI = P_BX + 1; S_GW = S_U1; S_PK2 = M_D
    kc = va.a(6, 2); cL, cE6L, e6v, zv = kc, kc + 2, kc + 4, kc + 5
    aST = va.a(); aW1 = va.a(); aW2 = va.a(); aRD = va.a(); aAT = va.a(); aSA = va.a(); vDW = va.a(3); aTW = va.a()
    def rawloads():
        for r in range(4):
            a(f'buffer_load_dwordx4 {v(raw+4*r,4)}, {v(vPK)}, {s(R_W2,4)}, {s(PKO)} offen{NTR}')
            if r < 3: a(f's_add_u32 {s(PKO)}, {s(PKO)}, {s(PKI)}')
        a(f'''s_lshl_b32 {s(S_PK2)}, {s(S_MG)}, 8
s_xor_b32 {s(T0+5)}, s2, 0xe0
s_add_u32 {s(S_PK2)}, {s(S_PK2)}, {s(T0+5)}
s_add_u32 {s(T0+5)}, {s(S_PK2)}, 484
s_mul_i32 {s(PKO)}, {s(T0+5)}, {(1<<16)//27+1}
s_lshr_b32 {s(PKO)}, {s(PKO)}, 16
s_mul_i32 {s(PKO)}, {s(PKO)}, {31*3456}
s_lshl_b32 {s(T0+5)}, {s(T0+5)}, 7
s_add_u32 {s(PKO)}, {s(PKO)}, {s(T0+5)}
s_cmp_ge_u32 {s(S_PK2)}, 56
s_cselect_b32 {s(PKO)}, 0x1000000, {s(PKO)}''')
        for r in range(4):
            a(f'buffer_load_dwordx4 {v(raw+16+4*r,4)}, {v(vPK+1)}, {s(R_W1,4)}, {s(PKO)} offen{NTR}')
            if r < 3: a(f's_add_u32 {s(PKO)}, {s(PKO)}, {8*3456}')
    S_ZO = T0; S_WJ = T0 + 1; S_WS0 = T0 + 2; S_WI = T0 + 3
    def setupS():
        a('s_waitcnt lgkmcnt(0)')
        srd(a, R_WS, P_WS, None, WS_REC)
        late_ids()
        a(f"""s_lshl_b32 {s(S_GW)}, s2, 2
s_add_u32 {s(S_GW)}, {s(S_GW)}, {s(S_MG)}
s_lshl_b32 {s(S_ZO)}, {s(S_GW)}, 10
s_add_u32 {s(T0+5)}, {s(S_ZO)}, {OFF_KV}
s_cmp_lt_u32 {s(S_GW)}, 64
s_cselect_b32 {s(S_ZO)}, {s(T0+5)}, {s(S_ZO)}
s_cmp_ge_u32 {s(S_GW)}, {ZBYTES//1024}
s_cselect_b32 {s(S_ZO)}, {OOR}, {s(S_ZO)}""")
        a(f'''v_lshrrev_b32 {v(t4)}, 3, {v(vL)}
v_and_b32 {v(t5)}, 7, {v(vL)}
v_lshlrev_b32 {v(t5)}, 4, {v(t5)}
s_movk_i32 {s(T0+4)}, 3456
s_movk_i32 {s(PKO)}, {(1<<16)//27+1}
s_cmp_lt_u32 {s(S_GW)}, 540
s_cselect_b32 {s(R_W2)}, {s(P_W2)}, {s(P_W1)}
s_cselect_b32 {s(R_W2+1)}, {s(P_W2+1)}, {s(P_W1+1)}
s_mov_b32 {s(R_W2+2)}, 2211840
s_mov_b32 {s(R_W2+3)}, 0x20000
s_cselect_b32 {s(T0+4)}, 1280, {s(T0+4)}
s_cselect_b32 {s(T0+5)}, 0, 540
s_cselect_b32 {s(PKO)}, {(1<<16)//10+1}, {s(PKO)}
v_mad_u32_u24 {v(vPK)}, {v(t4)}, {s(T0+4)}, {v(t5)}
s_lshl_b32 {s(PKI)}, {s(T0+4)}, 3
s_sub_u32 {s(T0+5)}, {s(S_GW)}, {s(T0+5)}
s_mul_i32 {s(PKO)}, {s(PKO)}, {s(T0+5)}
s_lshr_b32 {s(PKO)}, {s(PKO)}, 16
s_mul_i32 {s(PKO)}, {s(PKO)}, {s(T0+4)}
s_mul_i32 {s(PKO)}, {s(PKO)}, 31
s_lshl_b32 {s(T0+5)}, {s(T0+5)}, 7
s_add_u32 {s(PKO)}, {s(PKO)}, {s(T0+5)}
s_movk_i32 {s(T0+4)}, 3456
v_mad_u32_u24 {v(vPK+1)}, {v(t4)}, {s(T0+4)}, {v(t5)}''')
        assert all((j * ((1<<16)//10+1)) >> 16 == j // 10 for j in range(540)) and all((j * ((1<<16)//27+1)) >> 16 == j // 27 for j in range(540))
        srd(a, R_W1, P_W1, None, 2211840)
        srd(a, R_B1, P_B1, None, 3456)
        srd(a, R_X, P_B2, None, 1280)
        srd(a, R_WQ, P_WO, None, 819200)
        a(mk(M_A, lambda l: (l & 15) >= 8)); a(mk(M_B, lambda l: (l >> 4) == 1)); a(mk(M_C, lambda l: ((l & 15) >> 2) & 1))
        a(f"""v_mov_b32 {v(cL)}, {fhex(LOG2E)}
v_mov_b32 {v(cE6L)}, {fhex(-1e-6*LOG2E)}
v_mov_b32 {v(e6v)}, {fhex(1e-6)}
v_cndmask_b32 {v(zv)}, {v(e6v)}, 0, {s(M_A,2)}
s_lshl_b32 {s(T0+4)}, {s(S_MG)}, 7
s_add_u32 {s(T0+4)}, {s(T0+4)}, {ST}
v_and_b32 {v(t0)}, 48, {v(vL)}
v_add_u32 {v(aST)}, {s(T0+4)}, {v(t0)}
s_mul_i32 {s(T0+4)}, {s(S_MG)}, 5120
s_add_u32 {s(T0+4)}, {s(T0+4)}, {KVR}
v_add_u32 {v(aW1)}, {s(T0+4)}, {v(vL16)}
v_and_b32 {v(t1)}, 3, {v(vL)}
v_bfe_u32 {v(t2)}, {v(vL)}, 2, 2
v_lshl_add_u32 {v(t1)}, {v(t1)}, 2, {v(t2)}
v_add_u32 {v(t1)}, {v(t1)}, {v(t0)}
v_lshl_add_u32 {v(aW2)}, {v(t1)}, 4, {s(T0+4)}
s_lshl_b32 {s(T0+4)}, {s(S_MG)}, 10
v_lshl_add_u32 {v(aRD)}, {v(vL)}, 2, {s(T0+4)}
s_lshl_b32 {s(T0+5)}, {s(S_HP)}, 12
s_add_u32 {s(T0+5)}, {s(T0+5)}, {OFF_KV}
v_add_u32 {v(aAT)}, {s(T0+5)}, {v(aRD)}
s_lshl_b32 {s(T0+4)}, {s(S_MG)}, 11
s_add_u32 {s(T0+4)}, {s(T0+4)}, {PKS}
v_add_u32 {v(vPK+2)}, {s(T0+4)}, {v(vL16)}
v_lshrrev_b32 {v(t0)}, 2, {v(vL)}
v_lshlrev_b32 {v(t0)}, 7, {v(t0)}
v_and_b32 {v(t1)}, 3, {v(vL)}
v_lshl_add_u32 {v(t0)}, {v(t1)}, 3, {v(t0)}
v_add_u32 {v(vPK+3)}, {s(T0+4)}, {v(t0)}
s_lshl_b32 {s(S_U0)}, {s(S_GW)}, 12
s_add_u32 {s(S_U0)}, {s(S_U0)}, {OFF_W2P}
s_lshl_b32 {s(T0+4)}, {s(S_MG)}, 6
v_add_u32 {v(t0)}, {s(T0+4)}, {v(vL)}
s_movk_i32 {s(T0+4)}, 1120""")
        for j in range(3):
            a(f'''v_mul_u32_u24 {v(t1)}, 6554, {v(t0)}
v_lshrrev_b32 {v(t1)}, 16, {v(t1)}
v_lshlrev_b32 {v(t2)}, 4, {v(t0)}
v_mad_u32_u24 {v(vDW+j)}, {v(t1)}, {s(T0+4)}, {v(t2)}
v_add_u32 {v(t0)}, 256, {v(t0)}''')
        a(f'''s_lshl_b32 {s(S_WJ)}, {s(S_RT1)}, 3
s_lshr_b32 {s(T0+5)}, {s(S_HP)}, 1
s_add_u32 {s(S_WJ)}, {s(S_WJ)}, {s(T0+5)}
s_lshl_b32 {s(S_WJ)}, {s(S_WJ)}, 1
s_add_u32 {s(S_WJ)}, {s(S_WJ)}, {s(S_MG)}
s_and_b32 {s(T0+5)}, {s(S_HP)}, 7
s_bitcmp1_b32 0xa5, {s(T0+5)}
s_cselect_b32 {s(S_WJ)}, {s(S_WJ)}, 999
s_cmp_ge_u32 {s(S_MG)}, 2
s_cselect_b32 {s(S_WJ)}, 999, {s(S_WJ)}
s_mul_i32 {s(T0+4)}, {s(S_WJ)}, 6554
s_lshr_b32 {s(T0+4)}, {s(T0+4)}, 16
s_mul_i32 {s(T0+5)}, {s(T0+4)}, 10
s_sub_u32 {s(S_WS0)}, {s(S_WJ)}, {s(T0+5)}
s_lshl_b32 {s(S_WS0)}, {s(S_WS0)}, 7
s_cmp_ge_u32 {s(T0+4)}, 10
s_cselect_b32 {s(T0+5)}, {320*1280}, 0
s_cselect_b32 {s(T0+6)}, 10, 0
s_add_u32 {s(S_WS0)}, {s(S_WS0)}, {s(T0+5)}
s_sub_u32 {s(T0+4)}, {s(T0+4)}, {s(T0+6)}
s_cmp_ge_u32 {s(T0+4)}, 8
s_cselect_b32 {s(T0+5)}, 2, 0
s_sub_u32 {s(T0+5)}, {s(T0+4)}, {s(T0+5)}
s_mul_i32 {s(T0+5)}, {s(T0+5)}, {40*1280}
s_sub_u32 {s(T0+6)}, {s(T0+4)}, 6
s_mul_i32 {s(T0+7)}, {s(T0+6)}, {160*1280}
s_add_u32 {s(T0+7)}, {s(T0+7)}, {16*1280}
v_lshrrev_b32 {v(t0)}, 3, {v(vL)}
v_and_b32 {v(t1)}, 3, {v(t0)}
v_mul_u32_u24 {v(t1)}, 20, {v(t1)}
v_lshrrev_b32 {v(t2)}, 5, {v(vL)}
v_add_u32 {v(t1)}, {v(t1)}, {v(t2)}
s_cmp_lt_u32 {s(T0+6)}, 2
s_cselect_b32 {s(T0+5)}, {s(T0+7)}, {s(T0+5)}
s_cselect_b32 {s(S_WI)}, 1, 0
s_cselect_b64 vcc, -1, 0
s_add_u32 {s(S_WS0)}, {s(S_WS0)}, {s(T0+5)}
v_cndmask_b32 {v(t0)}, {v(t0)}, {v(t1)}, vcc
v_mul_u32_u24 {v(t0)}, 1280, {v(t0)}
v_and_b32 {v(t1)}, 7, {v(vL)}
v_lshl_add_u32 {v(aTW)}, {v(t1)}, 4, {v(t0)}
v_mov_b32 {v(t0)}, 0
v_mov_b32 {v(t1)}, 0
v_mov_b32 {v(t2)}, 0
v_mov_b32 {v(t3)}, 0
v_lshlrev_b32 {v(t4)}, 7, {v(vL)}''')
    def setupV():
        a(f'''buffer_store_dwordx4 {v(t0,4)}, {v(vL16)}, {s(R_WS,4)}, {s(S_ZO)} offen sc1
s_cmp_lg_u32 {s(S_W)}, 7
s_cbranch_scc1 L_ntb
buffer_load_dword {v(vDUM)}, {v(t4)}, {s(R_B1,4)}, 0 offen
buffer_load_dword {v(vDUM)}, {v(t4)}, {s(R_X,4)}, 0 offen
L_ntb:
s_cmp_ge_u32 {s(S_WJ)}, 200
s_cbranch_scc1 L_nwj
s_cmp_lg_u32 {s(S_WI)}, 0
s_movk_i32 {s(T0+4)}, {8*1280}
s_cselect_b32 {s(T0+4)}, {2*1280}, {s(T0+4)}
s_movk_i32 {s(T0+5)}, {20*1280}
s_cselect_b32 {s(T0+5)}, {80*1280}, {s(T0+5)}
s_add_u32 {s(T0+6)}, {s(S_WS0)}, {s(T0+4)}
s_add_u32 {s(T0+7)}, {s(S_WS0)}, {s(T0+5)}
s_add_u32 {s(T0+4)}, {s(T0+7)}, {s(T0+4)}
buffer_load_dwordx4 {v(raw,4)}, {v(aTW)}, {s(R_WQ,4)}, {s(S_WS0)} offen{NTR}
buffer_load_dwordx4 {v(raw+4,4)}, {v(aTW)}, {s(R_WQ,4)}, {s(T0+6)} offen{NTR}
buffer_load_dwordx4 {v(raw+8,4)}, {v(aTW)}, {s(R_WQ,4)}, {s(T0+7)} offen{NTR}
buffer_load_dwordx4 {v(raw+12,4)}, {v(aTW)}, {s(R_WQ,4)}, {s(T0+4)} offen{NTR}
L_nwj:''')
    acc = va.a(40, 4); csa = va.a(20, 4); pkf = va.a(16, 4)
    fX = [va.a(8, 4), va.a(8, 4)]; fW = [va.a(20, 4), va.a(20, 4)]
    A_ = lambda t, m: acc + (t * 2 + m) * 4
    zsig = f'''s_cmp_ge_u32 {s(S_GW)}, {ZBYTES//1024}
s_cbranch_scc1 L_nozsig
v_mov_b32 {v(t0)}, 0
s_mov_b64 exec, 1
buffer_atomic_add {v(vFL+1)}, {v(t0)}, {s(R_DBG,4)}, 0 offen sc1
s_mov_b64 exec, -1
L_nozsig:'''
    def packjob(rw, dst, lo=0):
        for hf in range(2):
            for r in range(2): a(f'ds_write_b128 {v(vPK+2)}, {v(rw+8*hf+4*r,4)} offset:{lo+1024*r}')
            for t in range(4): a(f'ds_read_b64_tr_b16 {v(pkf+4*t+2*hf,2)}, {v(vPK+3)} offset:{lo+32*t}')
        for t in range(4):
            a(f'buffer_store_dwordx4 {v(pkf+4*t,4)}, {v(vL16)}, {s(R_WS,4)}, {dst} offen offset:{1024*t} sc1')
    setupS()
    if OPT.get('sv', 0) < 0: setupV()
    stamp('loopstart', i_ls)
    def reads(n):
        sl = (n // 2) % 4; j = n & 1; b = n & 1
        L = [f'ds_read_b128 {v(fX[b]+4*m,4)}, {v(aX+2*(sl>>1)+j)} offset:{(sl&1)*SA + 2048*m}' for m in range(2)]
        for t in range(5):
            for jh in range(2):
                L.append(f'ds_read_b64_tr_b16 {v(fW[b]+4*t+2*jh,2)}, {v(aT+5*(sl>>1)+t)} offset:{(sl&1)*SA + 4096*j + 512*jh}')
        return L
    def mfmas(n):
        b = n & 1; L = []
        for t in ((0, 1, 2, 3, 4) if n < 19 else (0, 4, 2, 1, 3)):
            L.append(f'{MF} {v(csa+4*t,4)}, {v(vONE,4)}, {v(fW[b]+4*t,4)}, {v(csa+4*t,4) if n else 0}')
            for m in range(2):
                d = v(A_(t, m), 4)
                L.append(f'{MF} {d}, {v(fX[b]+4*m,4)}, {v(fW[b]+4*t,4)}, {d if n else 0}')
        return L
    a('s_waitcnt lgkmcnt(0)\ns_barrier')
    if OPT.get('fine'): stamp('b0')
    a(reads(0))
    PJ = OPT.get('pjat', 6)
    for n in range(20):
        if n & 1 and n < 19:
            if OPT.get('fine'): stamp(f'b{(n+1)//2}pre')
            a('s_barrier')
            if OPT.get('fine'): stamp(f'b{(n+1)//2}')
        a('s_waitcnt lgkmcnt(0)')
        a(weave(mfmas(n), reads(n + 1) if n < 19 else []))
        if n == OPT.get('sv', 0): setupV()
        if n == OPT.get('zs', 3):
            a('s_waitcnt vmcnt(0)')
            a(zsig)
            a(f's_cmp_ge_u32 {s(S_WJ)}, 200\ns_cbranch_scc1 L_nwp\ns_lshl_b32 {s(T0+4)}, {s(S_WJ)}, 12\ns_add_u32 {s(T0+4)}, {s(T0+4)}, {OFF_W0P}')
            packjob(raw, s(T0+4), SP - PKS)
            a(';@opt off\nL_nwp:')
    stamp('p1loop', i_le)
    a('s_setprio 1\ns_waitcnt vmcnt(0)\ns_barrier')
    a(f'''s_cmp_ge_u32 {s(S_WJ)}, 200
s_cbranch_scc1 L_nws
s_cmp_lg_u32 {s(S_MG)}, 0
s_cbranch_scc1 L_nws
s_mov_b32 {s(T0+4)}, {OFF_CP + 3072}
s_mov_b64 exec, 0xff
buffer_atomic_add {v(vFL+1)}, {v(t4)}, {s(R_WS,4)}, {s(T0+4)} offen sc1
s_mov_b64 exec, -1
L_nws:''')
    if OPT.get('fine'): stamp('B2')
    RAW = OPT.get('raw', 3)
    def cold():
        rawloads()
    stt = pkf; tmp = va.a(16, 4); op = fW[0] - 16; D = fW[0] + 8
    assert op == fX[0] and fW[1] == fW[0] + 20
    for m in range(2):
        a(f'ds_read_b128 {v(stt+8*m+4,4)}, {v(aST)} offset:{512+64*m}')
        a(f'ds_read_b128 {v(stt+8*m,4)}, {v(aST)} offset:{64*m}')
    if RAW == 1: cold()
    KA, KB, VA_, VB, KVC, KVCp = [v(op + 4 * i, 4) for i in range(6)]
    prods = [(KA, VA_), (KB, VB), (KVC, VA_), (KVC, VB), (KA, KVCp), (KB, KVCp), (KVC, KVCp)]
    PM = lambda i: f'{MF} {v(D+4*i,4)}, {prods[i][0]}, {prods[i][1]}, 0'
    for t in (0, 4, 2, 1, 3):
        cp = v(csa + 4 * t, 2)
        PKE = OPT.get('pke', 0)
        for m in range(2):
            tt_ = tmp + 8 * m
            if PKE:
                for i in (0, 2):
                    if t in (2, 3):
                        a(f'v_pk_mul_f32 {v(tt_+i,2)}, {cp}, {v(stt+8*m+4+i,2)}')
                    else:
                        zs = 1 if t == 4 else 0
                        a(f'v_pk_fma_f32 {v(tt_+i,2)}, {cp}, {v(stt+8*m+4+i,2)}, {v(e6v,2)} op_sel:[0,0,{zs}] op_sel_hi:[1,1,{zs}]')
            else:
                for i in range(4):
                    if t in (2, 3): a(f'v_mul_f32 {v(tt_+i)}, {v(csa+4*t)}, {v(stt+8*m+4+i)}')
                    else: a(f'v_fma_f32 {v(tt_+i)}, {v(csa+4*t)}, {v(stt+8*m+4+i)}, {v(zv if t == 4 else e6v)}')
        if t == 2: a(PM(4)); a(PM(6))
        if t == 1: a(PM(0)); a(PM(2))
        if t == 3: a(PM(5))
        for m in range(2):
            x = A_(t, m); tt_ = tmp + 8 * m
            if PKE:
                for i in (0, 2): a(f'v_pk_fma_f32 {v(x+i,2)}, {v(x+i,2)}, {v(stt+8*m+i,2)}, {v(tt_+i,2)}')
            else:
                for i in range(4): a(f'v_fma_f32 {v(x+i)}, {v(x+i)}, {v(stt+8*m+i)}, {v(tt_+i)}')
        if t == 4:
            for m in range(2):
                x = A_(t, m)
                a(f'v_cvt_pk_bf16_f32 {v(op+20+2*m)}, {v(x)}, {v(x+1)}\nv_cvt_pk_bf16_f32 {v(op+20+2*m+1)}, {v(x+2)}, {v(x+3)}')
        if t in (0, 1, 4):
            P = [phi4(A_(t, m), tmp + 8 * m + 4, cL, cE6L, e6v, PKE) for m in range(2)]
            for x, y in zip(*P): a(x); a(y)
        if t == 1: a(f'ds_write_b128 {v(aW1)}, {v(D,4)}')
        for m in range(2):
            x = A_(t, m)
            a(f'v_cvt_pk_bf16_f32 {v(op+4*t+2*m)}, {v(x)}, {v(x+1)}\nv_cvt_pk_bf16_f32 {v(op+4*t+2*m+1)}, {v(x+2)}, {v(x+3)}')
        if t == 4:
            for i in range(4): a(f'v_cndmask_b32 {v(op+20+i)}, {v(vONE)}, {v(op+20+i)}, {s(M_A,2)}')
    a(PM(3)); a(PM(1))
    for r in range(4): a(f'v_cndmask_b32 {v(D+16+r)}, {v(D+16+r)}, {v(D+20+r)}, {s(M_C,2)}')
    a(f'ds_write_b128 {v(aW2)}, {v(D+16,4)} offset:2048')
    for r in range(4): a(f'v_cndmask_b32 {v(D+8+r)}, {v(D+8+r)}, {v(D+12+r)}, {s(M_B,2)}')
    a(f"""ds_write_b128 {v(aW1)}, {v(D+8,4)} offset:3072
ds_write_b128 {v(aW2)}, {v(D+24,4)} offset:3584
ds_write_b128 {v(aW1)}, {v(D+4,4)} offset:1024""")
    if OPT.get('fine'): stamp('kvepi')
    larrive(vFL, F_KVR); lwait(vFL, F_KVR, 'kvr', vD10)
    if OPT.get('fine'): stamp('kvr')
    rd = acc
    for p in range(4):
        for hh in range(2): a(f'ds_read2st64_b32 {v(rd+4*p+2*hh,2)}, {v(aRD)} offset0:{p*20+2*hh} offset1:{p*20+2*hh+1}')
    for hh in (0, 2):
        a(f'v_pk_add_f32 {v(rd+hh,2)}, {v(rd+hh,2)}, {v(rd+4+hh,2)}\nv_pk_add_f32 {v(rd+8+hh,2)}, {v(rd+8+hh,2)}, {v(rd+12+hh,2)}')
    for hh in (0, 2):
        a(f'v_pk_add_f32 {v(rd+hh,2)}, {v(rd+hh,2)}, {v(rd+8+hh,2)}')
        for k in range(2): a(f'buffer_atomic_add_f32 {v(rd+hh+k)}, {v(aAT)}, {s(R_WS,4)}, 0 offen offset:{(hh+k)*256}')
    a(f's_and_b32 {s(T0+5)}, s2, 7\n' + caddr(M_C, T0+5, OFF_CP + 3072) + f'\ns_mov_b32 {s(M_C+1)}, 0')
    if OPT.get('swa', 1): a(f's_cmp_lg_u32 {s(S_W)}, 4\ns_cbranch_scc1 L_w0_n\ns_atomic_add {s(M_C+1)}, {s(P_WS,2)}, {s(M_C)} glc\nL_w0_n:')
    stamp('atomics')
    if RAW == 2: cold()
    a(f'''s_lshl_b32 {s(T0+6)}, {s(S_MG)}, 10
s_mul_i32 {s(T0+4)}, {s(S_MG)}, 20480
s_sub_u32 {s(T0+4)}, {s(S_RB)}, {s(T0+4)}
s_mul_i32 {s(T0+5)}, {s(S_CT)}, 160
s_sub_u32 {s(T0+5)}, {64*1280}, {s(T0+5)}''')
    srd(a, R_X, P_X, s(T0+4), s(T0+5))
    last_signals(vFL, F_DRA, 'A', vD10, S_HP, OFF_CA, ';@wait at')
    a('s_setprio 0')
    stamp('sigA')
    if RAW == 3: cold()
    THR = OPT.get('thr', 5)
    a(f'''s_mul_i32 {s(T0)}, {s(S_MG)}, 5120
s_mul_i32 {s(T0+1)}, {s(S_MG)}, 40960
s_mul_i32 {s(T0+4)}, {s(S_CT)}, 5120
s_add_u32 {s(T0+1)}, {s(T0+1)}, {s(T0+4)}
s_add_u32 {s(T0+1)}, {s(T0+1)}, {OFF_W0P}
s_cmp_ge_u32 {s(S_MG)}, 2
s_cselect_b32 {s(T0+2)}, {20*40960}, 0
s_sub_u32 {s(T0+2)}, {s(T0+1)}, {s(T0+2)}
v_add_u32 {v(aTW)}, 3072, {v(vL16)}''')
    S_PA = M_A; S_PV = M_A + 1; S_PD = M_B
    a(f'''s_xor_b32 {s(S_PA)}, {s(S_HP)}, {QXOR}
s_lshl_b32 {s(S_PA)}, {s(S_PA)}, 7
s_add_u32 {s(S_PA)}, {s(S_PA)}, {OFF_CA}
s_mov_b32 {s(S_PV)}, 0
s_cmp_lg_u32 {s(S_W)}, 7
s_cselect_b32 {s(S_PD)}, 1, 0
v_mov_b32 {v(t5)}, 4''')
    pa_n = [0]
    def pa_step(final=False):
        k = pa_n[0]; pa_n[0] += 1
        a(f'''s_cmp_lg_u32 {s(S_PD)}, 0
s_cbranch_scc1 L_pa{k}
;@opt on''')
        if final:
            a(f's_waitcnt lgkmcnt(0)\ns_cmp_ge_u32 {s(S_PV)}, 16\ns_cbranch_scc1 L_paf'); a(gpoll('sA', S_PA)); a('L_paf:')
            a(f'ds_write_b32 {v(vFL)}, {v(t5)} offset:{F_GA}')
        else:
            a(f'''s_waitcnt lgkmcnt(0)
s_cmp_lt_u32 {s(S_PV)}, 16
s_cbranch_scc1 L_pq{k}
ds_write_b32 {v(vFL)}, {v(t5)} offset:{F_GA}
s_mov_b32 {s(S_PD)}, 1
s_branch L_pa{k}
L_pq{k}:
s_mov_b32 {s(S_PV)}, 0
s_atomic_add {s(S_PV)}, {s(P_WS,2)}, {s(S_PA)} glc''')
        a(f';@opt off\nL_pa{k}:')
    def wodma(r):
        if OPT.get('pas', 0) or r == 4: pa_step()
        src = f's_add_u32 {s(T0+4)}, {s(T0+1)}, {(4*r+10)*40960}' if r < 2 else (f's_add_u32 {s(T0+4)}, {s(T0+2)}, {18*40960}' if r == 2 else f's_add_u32 {s(T0+4)}, {s(T0+1)}, {(4*r-10)*40960}')
        a(f's_add_u32 m0, {s(T0)}, {WO + r*20480}\n{src}')
        for t in range(4): a(f'buffer_load_dwordx4 {v(vL16)}, {s(R_WS,4)}, {s(T0+4)} offen offset:{1024*t} sc1 lds')
        a(f's_add_u32 m0, {s(T0)}, {WO + r*20480 + 3072}\ns_nop 0\n;@tag r{r}\nbuffer_load_dwordx4 {v(aTW)}, {s(R_WS,4)}, {s(T0+4)} offen offset:1024 sc1 lds')
        a(f's_waitcnt vmcnt({THR})')
    a(f's_cmp_lg_u32 {s(S_W)}, 4\ns_cbranch_scc1 L_w0_o\ns_cmp_ge_u32 {s(M_C+1)}, 100\ns_cbranch_scc1 L_w0_k'); a(gpoll('sW', M_C, 100))
    a(f'L_w0_k:\nds_write_b32 {v(vFL)}, {v(t5)} offset:{F_PK}\ns_branch L_w0_j\nL_w0_o:')
    lwait(vFL, F_PK, 'w0', vD10)
    a('L_w0_j:')
    wodma(1); wodma(2)
    lwait(vFL, F_DRA, 'dra', vD10)
    wodma(0)
    lwait(vFL, F_PB, 'pb', vD10)
    wodma(3); wodma(4)
    for n in range(3): a(f's_add_u32 m0, {s(T0+6)}, {XRL + n*4096}\ns_nop 0\nbuffer_load_dwordx4 {v(vDW+n)}, {s(R_X,4)}, 0 offen lds')
    pa_step(True)
    a(';@wait r0')
    larrive(vFL, F_H1)
    packjob(raw, s(S_U0))
    a(f's_cmp_ge_u32 {s(S_PK2)}, 56\ns_cbranch_scc1 L_pk2b\ns_lshl_b32 {s(T0+4)}, {s(S_PK2)}, 12\ns_add_u32 {s(T0+4)}, {s(T0+4)}, {OFF_W2P + 1024*4096}')
    packjob(raw + 16, s(T0+4))
    a(';@opt off\nL_pk2b:')
    if not JB:
        a(';@wait wx'); larrive(vFL, F_H0)
    if OPT.get('fine'): stamp('packed')
    lwait(vFL, F_H1, 'h1', vD10)
    p2_setup()
    a(preread())
    p2_scalars()
    if JB:
        a('s_waitcnt vmcnt(0)\ns_barrier')
        xinit(); xinit2()
        a(f'''s_cmp_lg_u32 {s(S_W)}, 6
s_cbranch_scc1 L_pkd
{caddr(T0+4, S_RT1, OFF_CP)}
s_waitcnt lgkmcnt(0)
s_mov_b32 {s(S_LB)}, 1
s_atomic_add {s(S_LB)}, {s(P_WS,2)}, {s(T0+4)} glc
s_waitcnt lgkmcnt(0)
s_cmp_lg_u32 {s(S_LB)}, 15
s_cbranch_scc1 L_pkd
v_lshlrev_b32 {v(t0)}, 7, {v(vL)}
s_mov_b32 {s(T0+4)}, {OFF_CP + 2048}
s_mov_b64 exec, 0xff
buffer_atomic_add {v(vFL+1)}, {v(t0)}, {s(R_WS,4)}, {s(T0+4)} offen sc1
s_mov_b64 exec, -1
L_pkd:''')
    else:
        lwait(vFL, F_H0, 'h0c', vD10)
        xinit(); xinit2()
        a(f'''{caddr(T0+4, S_RT1, OFF_CP)}
s_mov_b64 exec, 1
s_waitcnt vmcnt(0)
ds_add_rtn_u32 {v(vD10)}, {v(vFL)}, {v(vFL+1)} offset:{F_P2}
s_mov_b64 exec, -1
s_waitcnt lgkmcnt(0)
v_readfirstlane_b32 {s(T0+7)}, {v(vD10)}
s_cmp_lg_u32 {s(T0+7)}, 3
s_cbranch_scc1 L_pkd
s_mov_b32 {s(S_LB)}, 1
s_atomic_add {s(S_LB)}, {s(P_WS,2)}, {s(T0+4)} glc
s_waitcnt lgkmcnt(0)
s_cmp_lg_u32 {s(S_LB)}, 15
s_cbranch_scc1 L_pkd
v_lshlrev_b32 {v(t0)}, 7, {v(vL)}
s_mov_b32 {s(T0+4)}, {OFF_CP + 2048}
s_mov_b64 exec, 0xff
buffer_atomic_add {v(vFL+1)}, {v(t0)}, {s(R_WS,4)}, {s(T0+4)} offen sc1
s_mov_b64 exec, -1
L_pkd:''')


    va.reset(xr_mark)
    a('L_p1join:\n;@clearv\n;@clearl')

    def wave_block(tag, cmp, body, other=None):
        a(f'{cmp}\ns_cbranch_scc1 L_{tag}_e\n;@opt on')
        a(body)
        if other is not None:
            a(f's_branch L_{tag}_j\nL_{tag}_e:'); a(other); a(f';@opt off\nL_{tag}_j:')
        else:
            a(f';@opt off\nL_{tag}_e:')
    def signal(tag, idx, base):
        wave_block(tag + 'sig', f's_cmp_lg_u32 {s(S_W)}, 7', [caddr(S_LB+1, idx, base), ssig(S_LB+1)])
    def poll(tag, idx, base):
        wave_block(tag + 'pol', f's_cmp_lg_u32 {s(S_W)}, 7', [caddr(T0+4, idx, base), gpoll(tag, T0+4)])
        a('s_waitcnt lgkmcnt(0)\ns_barrier')

    if stop_after < 2:
        a('s_waitcnt vmcnt(0)\ns_barrier')
    if stop_after >= 2:
        O = O2; OS = OS2; vL4 = vL4b; own = own2
        stamp('wolanded')
        wave_block('sBpol', f's_cmp_lg_u32 {s(S_W)}, {OPT.get("pbw", 7)}', [caddr(T0+4, S_GRP, OFF_CB), gpoll('sB', T0+4)])
        a('s_waitcnt lgkmcnt(0)\ns_barrier')
        stamp('syncB')
        OSL = 122880
        a(f's_lshl_b32 {s(T0+4)}, {s(S_W)}, 11\ns_add_u32 m0, {s(T0+4)}, {OSL}\ns_add_u32 {s(T0+5)}, {s(T0+2)}, {5120-1024}')
        for j in range(8):
            o = (j % 3) * 1280
            a(f'buffer_load_dwordx4 {v(O+4*j,4)}, {v(vL16)}, {s(R_WS,4)}, {s(T0+2)} offen offset:{o} sc1')
            if j == 1:
                a(f';@tag os0\nbuffer_load_dwordx4 {v(vL4)}, {s(R_WS,4)}, {s(T0+2)} offen sc1 lds')
                a(f';@tag os1\nbuffer_load_dwordx4 {v(vL4)}, {s(R_WS,4)}, {s(T0+5)} offen offset:1024 sc1 lds')
            if j % 3 == 2: a(f's_add_u32 {s(T0+2)}, {s(T0+2)}, 3840')
        a(f's_add_u32 {s(T0+4)}, {s(T0+4)}, {OSL}\nv_lshl_add_u32 {v(t0)}, {v(vL)}, 2, {s(T0+4)}')
        a(stamp_txt('oiss', 'fine2'))
        W1POS = [106496 + 7168 * i for i in range(8)] + [7168 * i for i in range(5)] + [51200 + 7168 * i for i in range(5)] + [XC0, XC0 + 51200]
        def w1dma(kss, group=False):
            L = [f's_add_u32 m0, {s(S_MD)}, {W1POS[ks]}\ns_add_u32 {s(T0+4)}, {s(S_W1)}, {ks*110592}\n;@tag w1_{ks}\n'
                 f'buffer_load_dwordx4 {v(vL16)}, {s(R_WS,4)}, {s(T0+4)} offen sc1 lds' for ks in kss]
            if group: return L
            return [f's_cbranch_vccz L_w1s{ks}\n{x}\nL_w1s{ks}:' for ks, x in zip(kss, L)]
        a(stamp_txt('scal', 'fine2'))
        NA = OPT.get('nw1a', 9)
        steps = [('m', 0), ('m', 1), ('m', 2), ('m', 3), ('s', 0), ('m', 4), ('m', 5), ('m', 6), ('m', 7), ('s', 1)]
        WD = w1dma(range(NA)) if stop_after >= 3 else []
        W0 = 7
        for n, (kind, j) in enumerate(steps):
            X = v(O + 4 * j, 4) if kind == 'm' else v(OS + 4 * j, 4)
            order = range(5) if n < 9 else (2, 3, 4, 0, 1)
            M = [f'{MF} {v(acc2+4*t,4)}, {v(WB_(kind,j)+4*t,4)}, {X}, {v(acc2+4*t,4) if (n or t in (0, 1, 4)) else 0}' for t in order]
            F = wread('m', 5 + n) if n in (1, 2) else []
            if n == 3: F = [';@wait os1\n' + '\n'.join(f'ds_read2st64_b32 {v(OS+2*i,2)}, {v(t0)} offset0:{2*i} offset1:{2*i+1}' for i in range(4))]
            if n >= W0:
                k = OPT.get('wdk', 2); F = F + WD[:k]; WD = WD[k:]
            if n == 7 and W0 == 7:
                wave_block('sPpol', f's_cmp_lg_u32 {s(S_W)}, 0', [f's_and_b32 {s(T0+5)}, s2, 7', caddr(T0+4, T0+5, OFF_CP + 2048), gpoll('sP', T0+4)])
            if n == W0: a(f's_cmp_lg_u32 {s(S_W)}, 7\ns_cselect_b64 vcc, -1, 0\ns_waitcnt vmcnt(0)')
            if n == 7: a('s_waitcnt lgkmcnt(0)\ns_barrier')
            a(stamp_txt(f'n{n}', 'fine2'))
            a(spread(M, F))
        stamp('p2mm')
        rcv = WP[0]; xf = WP[1]
        for i in range(3): a(f'ds_write_b128 {v(axw)}, {v(acc2+8+4*i,4)} offset:{1024*i}')
        a(WD)
        a('s_waitcnt lgkmcnt(0)\ns_barrier')
        for i in range(3): a(f'ds_read_b128 {v(rcv+4*i,4)}, {v(axr)} offset:{1024*i}')
        for i in range(3):
            for hh in (0, 2):
                a(f'v_pk_add_f32 {v(own[i]+hh,2)}, {v(own[i]+hh,2)}, {v(rcv+4*i+hh,2)}')
            for hh in range(2):
                a(f'v_cvt_pk_bf16_f32 {v(vHR+2*i+hh)}, {v(own[i]+2*hh)}, {v(own[i]+2*hh+1)}')
            if i == 1: a(f'buffer_store_dwordx4 {v(vHR,4)}, {v(vL16)}, {s(R_WS,4)}, {s(E0)} offen sc1')
        a(f'buffer_store_dwordx2 {v(vHR+4,2)}, {v(vL8)}, {s(R_WS,4)}, {s(E1)} offen sc1')
        for i in range(6):
            a(f'v_lshlrev_b32 {v(xf+2*i)}, 16, {v(vHR+i)}\nv_and_b32 {v(xf+2*i+1)}, 0xffff0000, {v(vHR+i)}')
        sm = rcv; sq = rcv + 2; p = rcv + 4; q = rcv + 6
        a(f'v_pk_add_f32 {v(sm,2)}, {v(xf+8,2)}, {v(xf+10,2)}\nv_pk_mul_f32 {v(sq,2)}, {v(xf+8,2)}, {v(xf+8,2)}')
        a(f'v_pk_fma_f32 {v(sq,2)}, {v(xf+10,2)}, {v(xf+10,2)}, {v(sq,2)}')
        for i in range(4): a(f'v_mul_f32 {v(sm+i)}, {s(E5)}, {v(sm+i)}')
        for i in (0, 2, 4, 6):
            a(f'v_pk_add_f32 {v(sm,2)}, {v(sm,2)}, {v(xf+i,2)}\nv_pk_fma_f32 {v(sq,2)}, {v(xf+i,2)}, {v(xf+i,2)}, {v(sq,2)}')
        def xg_reduce(p, q):
            return f'''v_mov_b32 {v(q)}, {v(p)}
v_mov_b32 {v(q+1)}, {v(p+1)}
v_permlane32_swap_b32 {v(p)}, {v(q)}
v_permlane32_swap_b32 {v(p+1)}, {v(q+1)}
v_pk_add_f32 {v(p,2)}, {v(p,2)}, {v(q,2)}
v_mov_b32 {v(q)}, {v(p)}
v_mov_b32 {v(q+1)}, {v(p+1)}
v_permlane16_swap_b32 {v(p)}, {v(q)}
v_permlane16_swap_b32 {v(p+1)}, {v(q+1)}
v_pk_add_f32 {v(p,2)}, {v(p,2)}, {v(q,2)}'''
        a(f'v_add_f32 {v(p)}, {v(sm)}, {v(sm+1)}\nv_add_f32 {v(p+1)}, {v(sq)}, {v(sq+1)}')
        a(xg_reduce(p, q))
        a(f's_mov_b64 exec, 0xffff\nbuffer_store_dwordx2 {v(p,2)}, {v(vL8)}, {s(R_WS,4)}, {s(E2)} offen sc1\ns_mov_b64 exec, -1')
        stamp('p2st')

    if stop_after >= 3:
        va.reset(base_mark)
        W = va.a(160, 4); cs3 = va.a(8, 4); bt = va.a(8, 4); acc3 = [va.a(8, 4), va.a(8, 4)]
        fX = [va.a(4, 4) for _ in range(4)]; u = va.a(8, 4); gp = va.a(4, 4); rr = va.a(8, 2); kk = va.a(2)
        aP = fX[0]; aXl = vONE
        a(f'''v_lshrrev_b32 {v(t0)}, 4, {v(vL)}
v_lshlrev_b32 {v(t0)}, 3, {v(t0)}
buffer_load_dwordx2 {v(u,2)}, {v(t0)}, {s(R_B1,4)}, {s(S_C3)} offen
buffer_load_dwordx2 {v(u+2,2)}, {v(t0)}, {s(R_B1,4)}, {s(S_C3)} offen offset:32''')
        def w1pre(kss):
            R = []; M = []
            for ks in kss:
                pos = W1POS[ks]
                wi, base = (2, 106496) if pos >= 106496 else ((1, 56000) if pos >= 56000 else (0, 0))
                for t in range(2):
                    R.append(f'ds_read_b128 {v(W+8*ks+4*t,4)}, {v(aP+wi)} offset:{pos-base+1024*t}')
                    M.append(f'{MF} {v(cs3+4*t,4)}, {v(W+8*ks+4*t,4)}, {v(vONE,4)}, {v(cs3+4*t,4) if ks else 0}')
            a(R[:6]); k = 6
            for m in M:
                a(m); a(R[k:k+1]); k += 1
        XS = [3 * SLOT, 2 * SLOT, 3 * SLOT, 2 * SLOT]
        SL4 = {0: 0, 1: SLOT, 2: 3 * SLOT, 3: 2 * SLOT, 4: 0, 5: SLOT, 6: 3 * SLOT}
        def xdma(j, rounds=range(5)):
            return [f's_add_u32 m0, {s(S_MXl)}, {XS[j] + r*4096}\ns_add_u32 {s(T0+4)}, {s(S_HX)}, {j*20480 + r*4096}\n;@tag x{j}_{r}\n'
                    f'buffer_load_dwordx4 {v(vL16)}, {s(R_WS,4)}, {s(T0+4)} offen sc1 lds' for r in rounds]
        def dma5(m0base, m0off, srcreg, srccode, tag):
            G = OPT.get('dgrp', 1)
            m0 = f's_add_u32 m0, {s(m0base)}, {m0off}'
            ld = lambda t: f'buffer_load_dwordx4 {v(vL16)}, {s(R_WS,4)}, {s(srcreg)} offen offset:{1024*t} sc1 lds'
            last = f's_add_u32 m0, {s(m0base)}, {m0off + 3072}\ns_nop 0\nbuffer_load_dwordx4 {v(vD10)}, {s(R_WS,4)}, {s(srcreg)} offen offset:1024 sc1 lds'
            if G: return [f'{m0}\n{srccode}\n{ld(0)}', ld(1), ld(2), ld(3), last]
            return [f'{m0}\n{srccode}\n{ld(0)}'] + [f'{m0}\ns_nop 0\n{ld(t)}' for t in (1, 2, 3)] + [last]
        def w2dma(c):
            skip = f'\ns_cmp_ge_u32 {s(S_W)}, 6\ns_cselect_b32 {s(E5)}, {OOR}, {s(E5)}' if c == 6 else ''
            return dma5(E7, SL4[c], E5, f's_add_u32 {s(E5)}, {s(S_W2)}, {c*8*40960}{skip}', f'sc{c}')
        def xdma5(j):
            return dma5(E7, XS[j], E5, f's_add_u32 {s(E5)}, {s(E4)}, {j*20480}', f'x{j}_4')
        hs = acc3[1]
        assert NA >= 8
        NB = min(18, NA + OPT.get('nw1b', 5))
        a(f'v_add_u32 {v(aP)}, {s(S_P0)}, {v(vL16)}\nv_add_u32 {v(aP+1)}, 56000, {v(aP)}\nv_add_u32 {v(aP+2)}, 106496, {v(aP)}\nv_lshlrev_b32 {v(t7)}, 3, {v(vL)}')
        a(';@opt on\ns_waitcnt vmcnt(5)\ns_barrier')
        wave_block('w1b', f's_cmp_eq_u32 {s(S_W)}, 7', w1dma(range(NA, NB), True))
        w1pre(range(NA))
        wave_block('w1d', f's_cmp_eq_u32 {s(S_W)}, 7', [f's_waitcnt vmcnt({NB-NA})'], [caddr(T0+5, S_GRP, OFF_C2), caddr(T0+4, S_RT1, OFF_C2), 's_waitcnt vmcnt(0) lgkmcnt(0)'])
        a('s_barrier\n;@clearv')
        stamp('drained2')
        wave_block('w1c', f's_cmp_eq_u32 {s(S_W)}, 7', w1dma(range(NB, 20), True) + [f's_waitcnt vmcnt({20-NB})'], [ssig(T0+5), gpoll('s2', T0+4, pre='')])
        a('s_barrier')
        stamp('sync2')
        a(xdma(0, [0, 1]))
        for i in range(4):
            a(f'buffer_load_dwordx2 {v(hs+2*i,2)}, {v(t7)}, {s(R_WS,4)}, {s(S_HS)} offen offset:{512*i} sc1')
        a(xdma(0, [2, 3, 4]))
        w1pre(range(NA, NB))
        c0 = math.sqrt(2 / math.pi); K1 = -2 * LOG2E * c0; K2 = K1 * 0.044715
        a(f'v_mov_b32 {v(kk)}, {fhex(K2)}\nv_mov_b32 {v(kk+1)}, {fhex(K1)}')
        for i in range(4):
            a(f'v_lshlrev_b32 {v(bt+2*i)}, 16, {v(u+i)}\nv_and_b32 {v(bt+2*i+1)}, 0xffff0000, {v(u+i)}')
        a(f'''v_add_u32 {v(vD10)}, 3072, {v(vL16)}
v_and_b32 {v(t0)}, 15, {v(vL)}
v_lshl_add_u32 {v(t5)}, {v(t0)}, 3, {s(S_R0)}
v_lshl_add_u32 {v(t6)}, {v(t0)}, 3, {s(S_R1)}
s_mov_b32 {s(E1)}, {fhex(1/640)}
s_mov_b32 {s(E2)}, {fhex(1e-5)}
s_lshl_b32 {s(E4)}, {s(S_MG)}, 12
s_add_u32 {s(E4)}, {s(E4)}, {s(S_HX)}
s_mul_i32 {s(T0+6)}, {s(S_KH)}, 20480
s_add_u32 {s(T0+6)}, {s(T0+6)}, {2*SLOT}
s_barrier''')
        w1pre(range(NB, 20))
        a(f'''v_add_u32 {v(aXl)}, {s(T0+6)}, {v(vL16)}
v_add_u32 {v(aXl+1)}, {SLOT}, {v(aXl)}
v_mov_b32 {v(aXl+3)}, {v(t7)}
v_add_u32 {v(aXl+2)}, {s(T0+6)}, {v(t7)}''')
        stamp('w1pre')
        a(';@wait x0_0\ns_waitcnt lgkmcnt(0)\ns_barrier')
        a(stamp_txt('x0'))
        p = hs; q = hs + 2
        stats = (f'''v_pk_add_f32 {v(hs,2)}, {v(hs,2)}, {v(hs+2,2)}
v_pk_add_f32 {v(hs+4,2)}, {v(hs+4,2)}, {v(hs+6,2)}
v_pk_add_f32 {v(p,2)}, {v(hs,2)}, {v(hs+4,2)}
''' + xg_reduce(p, q) + f'''
v_mul_f32 {v(p)}, {s(E1)}, {v(p)}
v_mul_f32 {v(p+1)}, {s(E1)}, {v(p+1)}
v_fma_f32 {v(p+1)}, -{v(p)}, {v(p)}, {v(p+1)}
v_max_f32 {v(p+1)}, 0, {v(p+1)}
v_add_f32 {v(q)}, {s(E2)}, {v(p+1)}
v_rsq_f32 {v(q)}, {v(q)}
v_mul_f32 {v(q+1)}, {v(q)}, {v(q)}
v_fma_f32 {v(q+1)}, {v(q+1)}, {v(p+1)}, {s(E2)}
v_rsq_f32 {v(q+1)}, {v(q+1)}
v_mul_f32 {v(hs+4)}, {v(q)}, {v(q+1)}
v_mul_f32 {v(hs+5)}, -{v(p)}, {v(hs+4)}
;@tag rrw
ds_write_b64 {v(t5)}, {v(hs+4,2)}''').split('\n')
        stats = stats[:-2] + [stats[-2] + '\n' + stats[-1]]
        def xread(n):
            j, ks = divmod(n, 20)
            if ks % 5 == 2:
                o = (XS[j] - 2 * SLOT + ks * 1024) // 512
                return f'ds_read2st64_b64 {v(fX[n&3],4)}, {v(aXl+2)} offset0:{o} offset1:{o+1}'
            return f'ds_read_b128 {v(fX[n&3],4)}, {v(aXl + XS[j]//SLOT - 2)} offset:{ks*1024}'
        def epi(j, packed):
            x = acc3[j & 1]; r0 = rr + 2 * j; L = []
            if packed:
                r = v(r0, 2); P4 = (0, 2, 4, 6)
                L += [f'v_pk_fma_f32 {v(u+i,2)}, {r}, {v(cs3+i,2)}, {v(bt+i,2)} op_sel:[1,0,0] op_sel_hi:[1,1,1]' for i in P4]
                L += [f'v_pk_fma_f32 {v(x+i,2)}, {v(x+i,2)}, {r}, {v(u+i,2)} op_sel_hi:[1,0,1]' for i in P4]
                L += [f'v_pk_mul_f32 {v(u+i,2)}, {v(x+i,2)}, {v(x+i,2)}' for i in P4]
                L += [f'v_pk_fma_f32 {v(u+i,2)}, {v(u+i,2)}, {v(kk,2)}, {v(kk,2)} op_sel:[0,0,1] op_sel_hi:[1,0,1]' for i in P4]
                L += [f'v_pk_mul_f32 {v(u+i,2)}, {v(u+i,2)}, {v(x+i,2)}' for i in P4]
                L += [f'v_exp_f32 {v(u+i)}, {v(u+i)}' for i in range(8)]
                L += [f'v_pk_add_f32 {v(u+i,2)}, {v(u+i,2)}, 1.0 op_sel_hi:[1,0]' for i in P4]
                L += [f'v_rcp_f32 {v(u+i)}, {v(u+i)}' for i in range(8)]
                L += [f'v_pk_mul_f32 {v(x+i,2)}, {v(x+i,2)}, {v(u+i,2)}' for i in P4]
            else:
                R8 = range(8)
                L += [f'v_fma_f32 {v(u+i)}, {v(cs3+i)}, {v(r0+1)}, {v(bt+i)}' for i in R8]
                L += [f'v_fma_f32 {v(x+i)}, {v(x+i)}, {v(r0)}, {v(u+i)}' for i in R8]
                L += [f'v_mul_f32 {v(u+i)}, {v(x+i)}, {v(x+i)}' for i in R8]
                L += [f'v_fma_f32 {v(u+i)}, {v(u+i)}, {v(kk)}, {v(kk+1)}' for i in R8]
                L += [f'v_mul_f32 {v(u+i)}, {v(u+i)}, {v(x+i)}' for i in R8]
                L += [f'v_exp_f32 {v(u+i)}, {v(u+i)}' for i in R8]
                L += [f'v_add_f32 {v(u+i)}, 1.0, {v(u+i)}' for i in R8]
                L += [f'v_rcp_f32 {v(u+i)}, {v(u+i)}' for i in R8]
                L += [f'v_mul_f32 {v(x+i)}, {v(x+i)}, {v(u+i)}' for i in R8]
            L += [f'v_cvt_pk_bf16_f32 {v(gp+i)}, {v(x+2*i)}, {v(x+2*i+1)}' for i in range(4)]
            L.append(f'''s_cmp_eq_u32 {s(S_MG)}, 3
s_cbranch_scc1 L_g{j}s
buffer_store_dwordx4 {v(gp,4)}, {v(vL16)}, {s(R_WS,4)}, {s(S_GP)} offen sc1
s_branch L_g{j}b
L_g{j}s:
buffer_store_dwordx2 {v(gp,2)}, {v(aXl+3)}, {s(R_WS,4)}, {s(S_GP)} offen sc1
L_g{j}b:
s_add_u32 {s(S_GP)}, {s(S_GP)}, {54*1024}''')
            return L
        if OPT.get('prio3', 1): a(f's_cmp_lt_u32 {s(S_W)}, 4\ns_cbranch_scc1 L_pr3\ns_setprio 1\nL_pr3:')
        for n in range(3): a(xread(n))
        for j in range(4):
            M = []
            for ks in range(20):
                n = 20 * j + ks
                pre = ''
                nx = n + 3
                if nx < 80:
                    jx, kx = divmod(nx, 20)
                    if jx == 0 and kx in (4, 8): pre = stamp_txt(f'x0_{kx}a') + f';@wait x0_{1 if kx == 4 else 4}\ns_barrier\n' + stamp_txt(f'x0_{kx}b')
                    if jx > 0 and kx == 0: pre = stamp_txt(f'x{jx}a') + f';@wait x{jx}_4\n;@lwait rrw\ns_barrier\n' + stamp_txt(f'x{jx}b')
                    if jx == 1 and kx == 0: pre += '\n'.join(f'ds_read_b64 {v(rr+2*i,2)}, {v(t6)} offset:{128*i}' for i in range(4)) + '\n'
                for t in range(2):
                    d = v(acc3[j & 1] + 4 * t, 4)
                    ins = f'{MF} {d}, {v(W+8*ks+4*t,4)}, {v(fX[n&3],4)}, {d if ks else 0}'
                    if t == 0 and OPT.get('lw3', 1) and (n & 1) == 0 and 2 <= n < 76 and not (j == 0) and ks not in (0, 18): ins = 's_waitcnt lgkmcnt(1)\n' + ins
                    if t == 1 and nx < 80: ins += '\n' + pre + xread(nx)
                    M.append(ins)
            W4 = stop_after >= 4
            TW = []
            if j == 0:
                M = spread(M, xdma5(1) + TW, start=2, end=14)
                a(spread(M, stats, start=10, end=36))
            else:
                M[3] += '\ns_barrier'
                D_ = (xdma5(j + 1) if j < 3 else []) + TW + (w2dma(j - 1) if W4 else [])
                M = spread(M, D_, start=4, end=OPT.get('d3end', 26) if j < 3 else 14)
                a(spread(M, epi(j - 1, OPT.get('pk3', 0)) if not OPT.get('noepi') else [], start=4, end=len(M) - OPT.get('e3end', 2)))
        stamp('p3mm')
        a(epi(3, 1))
        stamp('p3st')

    if stop_after >= 4:
        va.reset(base_mark)
        b2r = va.a(6, 2); aW = va.a(12); axw = va.a(); axr = va.a(); vL8 = aXl + 3
        NX = OPT.get('nx', 12)
        acc4 = va.a(20, 4); X4 = va.a(4 * NX, 4); WB = [va.a(20, 4) for _ in range(6)]
        a(f"""v_lshrrev_b32 {v(t0)}, 4, {v(vL)}
v_lshlrev_b32 {v(t0)}, 3, {v(t0)}
buffer_load_dwordx2 {v(b2r,2)}, {v(t0)}, {s(R_B2,4)}, {s(S_CM)} offen
buffer_load_dwordx2 {v(b2r+2,2)}, {v(t0)}, {s(R_B2,4)}, {s(S_CM)} offen offset:32
buffer_load_dwordx2 {v(b2r+4,2)}, {v(t0)}, {s(R_B2,4)}, {s(S_CS)} offen
s_mul_i32 {s(T0+6)}, {s(S_KH)}, 5120""")
        for i, sc in enumerate((S_CM, S_CO, S_CS)):
            a(f's_lshl_b32 {s(T0+7)}, {s(sc)}, 5\ns_add_u32 {s(T0+7)}, {s(T0+7)}, {s(T0+6)}\nv_add_u32 {v(aW+i)}, {s(T0+7)}, {v(vL16)}')
            for sl in (2, 1, 3): a(f'v_add_u32 {v(aW+3*sl+i)}, {sl*SLOT}, {v(aW+i)}')
        tl = [(0, 0), (0, 1024), (1, 0), (1, 1024), (2, 0)]
        wbuf = lambda i: WB[i] if i < 4 else WB[4 + (i & 1)]
        def w2read(i):
            c = i // 4; off = (i % 4) * 10240
            return [f'ds_read_b128 {v(wbuf(i)+4*t,4)}, {v(aW+3*(SL4[c]//SLOT)+ai)} offset:{off+ci}' for t, (ai, ci) in enumerate(tl)]
        for i in range(4): a(w2read(i))
        S_GX = T0
        XCH4 = 0
        a(f"""s_mul_i32 {s(S_GX)}, {s(S_STILE)}, 54
s_add_u32 {s(S_GX)}, {s(S_GX)}, {s(S_KH)}
s_lshl_b32 {s(S_GX)}, {s(S_GX)}, 10
s_add_u32 {s(S_GX)}, {s(S_GX)}, {OFF_G}
s_mul_i32 {s(T0+6)}, {s(S_W)}, 3072
s_add_u32 {s(T0+6)}, {s(T0+6)}, {SL4[3]}
v_add_u32 {v(axw)}, {s(T0+6)}, {v(vL16)}
s_xor_b32 {s(T0+6)}, {s(S_W)}, 4
s_mul_i32 {s(T0+6)}, {s(T0+6)}, 3072
s_add_u32 {s(T0+6)}, {s(T0+6)}, {SL4[3]}
v_add_u32 {v(axr)}, {s(T0+6)}, {v(vL16)}
s_add_u32 {s(T0+1)}, {s(S_RB)}, {s(S_CM)}
s_add_u32 {s(T0+2)}, {s(S_RB)}, {s(S_CS)}
s_cmp_lg_u32 {s(S_KH)}, 0
s_cselect_b32 {s(T0+2)}, 0x4000000, {s(T0+2)}
s_cselect_b32 {s(T0+3)}, 0, 1.0
s_cselect_b64 vcc, -1, 0
{caddr(S_LB+1, S_RT1, OFF_C3)}
{caddr(T0+5, S_GRP, OFF_C3)}
s_waitcnt lgkmcnt(0)
s_barrier""")
        stamp('drained3')
        wave_block('s3sig', f's_cmp_lg_u32 {s(S_W)}, 7', [ssig(S_LB+1)])
        a(w2read(4))
        a(w2dma(3))
        if OPT.get('sc4early', 1): a(w2dma(4))
        own = [acc4, acc4 + 4, acc4 + 16]; bf = X4
        for i in range(6):
            o = own[i // 2] + 2 * (i & 1)
            a(f'v_lshlrev_b32 {v(o)}, 16, {v(vHR+i)}\nv_and_b32 {v(o+1)}, 0xffff0000, {v(vHR+i)}')
            a(f'v_lshlrev_b32 {v(bf)}, 16, {v(b2r+i)}\nv_and_b32 {v(bf+1)}, 0xffff0000, {v(b2r+i)}')
            a(f'v_pk_add_f32 {v(o,2)}, {v(o,2)}, {v(bf,2)}')
        for i in range(4): a(f'v_mul_f32 {v(acc4+16+i)}, {s(T0+3)}, {v(acc4+16+i)}')
        a(f'''v_and_b32 {v(t1)}, 15, {v(vL)}
v_mul_u32_u24 {v(t1)}, 1280, {v(t1)}
v_bfe_u32 {v(t2)}, {v(vL)}, 4, 1
v_lshl_add_u32 {v(t1)}, {v(t2)}, 5, {v(t1)}
v_lshrrev_b32 {v(t2)}, 5, {v(vL)}
v_lshl_add_u32 {v(t1)}, {v(t2)}, 4, {v(t1)}''')
        wave_block('s3pol', f's_cmp_lg_u32 {s(S_W)}, 7', [gpoll('s3', T0+5)])
        a('s_barrier')
        stamp('sync3')
        def xload(i):
            x = f'buffer_load_dwordx4 {v(X4+4*(i%NX),4)}, {v(vL16)}, {s(R_WS,4)}, {s(S_GX)} offen offset:{(i&1)*2048} sc1'
            for kh in range(2):
                if (2 * i + kh) % 7 == 3 and 2 * i + kh < 42:
                    y = '\n'.join(f'buffer_load_dwordx2 {v(X4+4*(i%NX)+2*hf,2)}, {v(vL8)}, {s(R_WS,4)}, {s(S_GX)} offen offset:{(i&1)*2048+512*hf} sc1' for hf in range(2))
                    x = f's_cbranch_vcc{"z" if kh else "nz"} L_xn{i}\n{y}\ns_branch L_xj{i}\nL_xn{i}:\n{x}\nL_xj{i}:'
            if i & 1: x += f'\ns_add_u32 {s(S_GX)}, {s(S_GX)}, 4096'
            return x
        NP = OPT.get('np', 6)
        nxt = [0]
        def xl(k):
            L = []
            for _ in range(k):
                if nxt[0] < 27: L.append(xload(nxt[0])); nxt[0] += 1
            return L
        a(xl(NP))
        for i in range(27):
            F = []
            nx = i + 1
            if nx >= 5 and nx < 27:
                if nx % 4 == 0 and nx > 8:
                    c = nx // 4
                    a(stamp_txt(f'sc{c}a') + f';@wait sc{c}\ns_barrier\n' + stamp_txt(f'sc{c}b'))
                    if c in (3, 4): F += w2dma(c + 2)
                if nx == 6 and not OPT.get('sc4early', 1): F += w2dma(4)
                F = w2read(nx) + F
            order = range(5) if i < 26 else (2, 3, 4, 0, 1)
            M = [f'{MF} {v(acc4+4*t,4)}, {v(wbuf(i)+4*t,4)}, {v(X4+4*(i%NX),4)}, {v(acc4+4*t,4) if (i or t in (0, 1, 4)) else 0}' for t in order]
            a(spread(M, F))
            a(xl(min(2, i + 1 + NX - nxt[0])))
        stamp('p4mm')
        rcv = WB[0]; bf = WB[2]
        for i in range(3): a(f'ds_write_b128 {v(axw)}, {v(acc4+8+4*i,4)} offset:{XCH4+1024*i}')
        a('s_waitcnt lgkmcnt(0)\ns_barrier')
        for i in range(3): a(f'ds_read_b128 {v(rcv+4*i,4)}, {v(axr)} offset:{XCH4+1024*i}')
        for i in range(3):
            for hh in (0, 2):
                a(f'v_pk_add_f32 {v(own[i]+hh,2)}, {v(own[i]+hh,2)}, {v(rcv+4*i+hh,2)}')
            for hh in range(2):
                a(f'v_cvt_pk_bf16_f32 {v(bf+2*i+hh)}, {v(own[i]+2*hh)}, {v(own[i]+2*hh+1)}')
            if i == 1:
                a(f'v_permlane16_swap_b32 {v(bf)}, {v(bf+2)}\nv_permlane16_swap_b32 {v(bf+1)}, {v(bf+3)}')
                a(f'buffer_store_dwordx4 {v(bf,4)}, {v(t1)}, {s(R_OUT,4)}, {s(T0+1)} offen\ns_cbranch_vccnz L_fin')
        a(f'buffer_store_dwordx2 {v(bf+4,2)}, {v(vRO)}, {s(R_OUT,4)}, {s(T0+2)} offen\nL_fin:')
        stamp('end')
    if ts:
        a(f'''s_lshl_b32 {s(S_TS)}, s2, 3
s_add_u32 {s(S_TS)}, {s(S_TS)}, {s(S_W)}
s_lshl_b32 {s(S_TS)}, {s(S_TS)}, 8
s_add_u32 {s(S_TS)}, {s(S_TS)}, {OFF_TS}
v_lshlrev_b32 {v(t7)}, 2, {v(vL)}
buffer_store_dword v0, {v(t7)}, {s(R_WS,4)}, {s(S_TS)} offen''')
    a('L_end:\ns_endpgm\n;@clearv\n;@clearl')
    for blk in ool:
        a(blk); a(';@clearv\n;@clearl')
    body = a.finalize()
    return body, va.hi, names

def wrap(body, listmode=False):
    ref = open('cdna_kernels/%s.s.ref' % NAME).read().split('\n')
    hdr = [l for l in ref if l.startswith(';') and '@launch' not in l]
    kn = NAME + '_kernel'
    nv = 256
    launch = (f'; @launch kernel={kn} grid=(256,1,1) block=(512,1,1) lds=163840' if listmode
              else '; @launch grid=(256,1,1) block=(512,1,1) lds=163840')
    return '\n'.join(hdr) + '\n' + launch + '\n' + f'''.amdgcn_target "amdgcn-amd-amdhsa--gfx950"
.text
.globl {kn}
.p2align 8
.type {kn},@function
{kn}:
{body}.section .rodata,"a"
.p2align 6
.amdhsa_kernel {kn}
  .amdhsa_next_free_vgpr {nv}
  .amdhsa_next_free_sgpr 102
  .amdhsa_accum_offset {nv}
  .amdhsa_group_segment_fixed_size 0
  .amdhsa_kernarg_size 88
  .amdhsa_user_sgpr_count 2
  .amdhsa_user_sgpr_kernarg_segment_ptr 1
  .amdhsa_system_sgpr_workgroup_id_x 1
.end_amdhsa_kernel
'''

if __name__ == '__main__':
    import argparse
    ap = argparse.ArgumentParser()
    ap.add_argument('--stop', type=int, default=4)
    ap.add_argument('--ts', action='store_true')
    ap.add_argument('--list', action='store_true')
    ap.add_argument('--opt', default='')
    ap.add_argument('-o', default='cdna_kernels/%s.s' % NAME)
    args = ap.parse_args()
    for kv in filter(None, args.opt.split(',')):
        k_, v_ = kv.split('='); OPT[k_] = int(v_)
    body, hi, names = gen(args.stop, args.ts)
    import subprocess, re, tempfile, os
    with tempfile.TemporaryDirectory() as td:
        open(td + '/a.s', 'w').write(wrap(body.replace('CODE_BYTES', '0x7000').replace('KERNEL_START', NAME + '_kernel'), args.list))
        subprocess.run(['clang', '-x', 'assembler', '-target', 'amdgcn-amd-amdhsa', '-mcpu=gfx950', '-c', td + '/a.s', '-o', td + '/a.o'], check=True)
        h = subprocess.run(['llvm-objdump', '-h', td + '/a.o'], capture_output=True, text=True).stdout
        size = int(re.search(r'\.text\s+([0-9a-f]+)', h).group(1), 16)
    print('code bytes', size)
    txt = wrap(body.replace('CODE_BYTES', str(size - 64)).replace('KERNEL_START', NAME + '_kernel'), args.list)
    if names: txt += '; stamps: ' + ' '.join(names) + '\n'
    open(args.o, 'w').write(txt)
    print('vgpr hi', hi, 'lines', body.count('\n'), names)
```

```python
import sys, math, struct
sys.path.insert(0, 'gen')
from asmlib import Asm, weave, spread

NAME = 'sequential_preLN__linear_attn_block__mixer_channel_mlp__prompt'

OFF_KV = 23 << 20
OFF_CA = 65536
OFF_CB = 73728
OFF_C2 = 75776
OFF_C3 = 79872
OFF_CP = 81920
ZBYTES = 86016
OFF_O = 1 << 20
OFF_H = 5 << 20
OFF_HST = 8 << 20
OFF_G = 9 << 20
OFF_W2P = 17 << 20
OFF_W1P = OFF_W2P + 540 * 4096
OFF_W0P = 22 << 20
OFF_TS = 24 << 20
WS_REC = 32 << 20

LOG2E = 1.4426950408889634
def f2u(x): return struct.unpack('<I', struct.pack('<f', x))[0]
def fhex(x): return '0x%08x' % f2u(x)

class VA:
    def __init__(self, start, limit=256):
        self.cur = start; self.limit = limit; self.hi = start
    def a(self, n=1, al=1):
        self.cur = (self.cur + al - 1) // al * al
        r = self.cur; self.cur += n
        assert self.cur <= self.limit, 'out of VGPRs'
        self.hi = max(self.hi, self.cur)
        return r
    def mark(self): return self.cur
    def reset(self, m): self.cur = m

def v(r, n=1): return f'v{r}' if n == 1 else f'v[{r}:{r+n-1}]'
def s(r, n=1): return f's{r}' if n == 1 else f's[{r}:{r+n-1}]'

P_X, P_WQKV, P_WO, P_BX, P_W1, P_B1, P_W2, P_B2, P_OUT, P_DBG, P_WS = range(4, 26, 2)
S_W = 26; S_RT1 = 27; S_HP = 28; S_GRP = 29; S_MEM = 30; S_CT = 31
R_X = 32; R_WQ = 36; R_WO = 40; R_W1 = 44; R_W2 = 48; R_WS = 52; R_OUT = 56; R_DBG = 60; R_B1 = 64; R_B2 = 68
T0 = 72
S_MG = 80; S_KH = 81; S_T = 82; S_STILE = 83; S_CM = 84; S_CO = 85; S_CS = 86; S_RB = 87; S_ODD = 88; S_MD = 89
M_A = 90; M_B = 92; M_C = 94; M_D = 96
S_TS = 98
S_U0 = 100; S_U1 = 101

def srd(a, r, ptr, add, nrec):
    if add is None:
        a(f's_mov_b32 {s(r)}, {s(ptr)}\ns_mov_b32 {s(r+1)}, {s(ptr+1)}')
    else:
        a(f's_add_u32 {s(r)}, {s(ptr)}, {add}\ns_addc_u32 {s(r+1)}, {s(ptr+1)}, 0')
    a(f's_mov_b32 {s(r+2)}, {nrec}\ns_mov_b32 {s(r+3)}, 0x20000')

def mask64(a, r, val):
    a(f's_mov_b32 {s(r)}, 0x{val & 0xffffffff:08x}\ns_mov_b32 {s(r+1)}, 0x{val >> 32:08x}')

def lanemask(f):
    m = 0
    for l in range(64):
        if f(l): m |= 1 << l
    return m

MF = 'v_mfma_f32_16x16x32_bf16'
SLOT = 40960
OPT = {}

def gen(stop_after=4, ts=False):
    QXOR = OPT.get('qxor', 1)
    KVS = OPT.get('kvs', 1024)
    a = Asm()
    va = VA(1)
    vL = va.a(); vL16 = va.a(); vRO = va.a(); vONE = va.a(4, 4)
    vHR = va.a(6, 2)
    vDUM = va.a(); vD10 = va.a()
    vTmp = va.a(8, 4)
    base_mark = va.mark()
    vXR = va.a(6, 2)
    xr_mark = va.mark()
    t0, t1, t2, t3, t4, t5, t6, t7 = range(vTmp, vTmp + 8)
    names = []
    RT = ['start', 'p1loop', 'sigA', 'syncB', 'drained2', 'sync2', 'drained3', 'sync3', 'end']
    def stamp_txt(name, key='fine3'):
        if not ts or not OPT.get(key): return ''
        idx = len(names); names.append(name)
        return f';@opt on\ns_memtime {s(S_TS,2)}\ns_waitcnt lgkmcnt(0)\nv_writelane_b32 v0, {s(S_TS)}, {idx}\n'
    def stamp(name, idx=None):
        if not ts: return
        if idx is None:
            idx = len(names); names.append(name)
        a(f''';@opt on
s_memtime {s(S_TS,2)}
s_waitcnt lgkmcnt(0)
v_writelane_b32 v0, {s(S_TS)}, {idx}
;@opt off''')
        if name in RT:
            a(f';@opt on\ns_memrealtime {s(S_TS,2)}\ns_waitcnt lgkmcnt(0)\nv_writelane_b32 v0, {s(S_TS)}, {63 - RT.index(name)}\n;@opt off')
        return idx

    a(f'''s_cmp_ge_u32 s2, 256
s_cbranch_scc1 L_end
s_load_dwordx16 s[4:19], s[0:1], 0
s_load_dwordx4 s[20:23], s[0:1], 64
s_load_dwordx2 s[24:25], s[0:1], 80
s_getpc_b64 {s(T0+6,2)}
s_lshr_b32 {s(S_T)}, s2, 3
v_lshrrev_b32 {v(t0)}, 5, v0
s_lshl_b32 {s(T0+4)}, {s(S_T)}, 11
v_lshl_add_u32 {v(t1)}, {v(t0)}, 7, {s(T0+4)}
v_min_u32 {v(t1)}, CODE_BYTES, {v(t1)}
s_mov_b32 exec_lo, 1
s_mov_b32 exec_hi, 1
global_load_dword {v(vDUM)}, {v(t1)}, {s(T0+6,2)}
s_mov_b64 exec, -1
v_lshrrev_b32 {v(t0)}, 6, v0
v_and_b32 {v(vL)}, 63, v0
v_readfirstlane_b32 {s(S_W)}, {v(t0)}
s_and_b32 {s(T0)}, s2, 7
s_and_b32 {s(S_RT1)}, {s(T0)}, 3
s_lshl_b32 {s(S_RT1)}, {s(S_RT1)}, 2
s_and_b32 {s(T0+2)}, {s(S_T)}, 3
s_add_u32 {s(S_RT1)}, {s(S_RT1)}, {s(T0+2)}
s_lshr_b32 {s(S_HP)}, {s(T0)}, 2
s_lshl_b32 {s(S_HP)}, {s(S_HP)}, 3
s_lshr_b32 {s(T0+3)}, {s(S_T)}, 2
s_add_u32 {s(S_HP)}, {s(S_HP)}, {s(T0+3)}
s_and_b32 {s(S_MG)}, {s(S_W)}, 3
s_lshr_b32 {s(S_KH)}, {s(S_W)}, 2
v_lshlrev_b32 {v(vL16)}, 4, {v(vL)}
s_mov_b32 s3, 1
s_cmp_ge_u32 {s(S_W)}, 4
;@save p1
s_cbranch_scc1 L_p1c''')

    def late_ids():
        a(f'''s_and_b32 {s(T0)}, s2, 7
s_lshl_b32 {s(S_GRP)}, {s(T0)}, 1
s_and_b32 {s(T0+4)}, {s(S_T)}, 1
s_add_u32 {s(S_GRP)}, {s(S_GRP)}, {s(T0+4)}
s_lshr_b32 {s(S_MEM)}, {s(S_T)}, 1
s_and_b32 {s(S_CT)}, {s(S_MEM)}, 7
s_and_b32 {s(S_ODD)}, {s(S_CT)}, 1
s_lshl_b32 {s(S_STILE)}, {s(S_GRP)}, 3
s_lshr_b32 {s(T0+4)}, {s(S_MEM)}, 3
s_lshl_b32 {s(T0+4)}, {s(T0+4)}, 2
s_add_u32 {s(S_STILE)}, {s(S_STILE)}, {s(T0+4)}
s_add_u32 {s(S_STILE)}, {s(S_STILE)}, {s(S_MG)}
s_lshl_b32 {s(T0+4)}, {s(S_ODD)}, 5
s_lshl_b32 {s(T0+5)}, {s(S_KH)}, 6
s_add_u32 {s(S_CM)}, {s(T0+4)}, {s(T0+5)}
s_xor_b32 {s(T0+5)}, {s(T0+5)}, 64
s_add_u32 {s(S_CO)}, {s(T0+4)}, {s(T0+5)}
s_cmp_eq_u32 {s(S_ODD)}, 0
s_cselect_b32 {s(S_CS)}, 128, 0
s_mul_i32 {s(S_RB)}, {s(S_STILE)}, 20480
s_mul_i32 {s(T0+4)}, {s(S_CT)}, 160
s_add_u32 {s(S_RB)}, {s(S_RB)}, {s(T0+4)}
s_lshl_b32 {s(S_MD)}, {s(S_W)}, 10
s_sub_u32 {s(T0+5)}, 819200, {s(T0+4)}
s_sub_u32 {s(T0+6)}, 1280, {s(T0+4)}''')
        srd(a, R_WO, P_WO, s(T0+4), s(T0+5))
        srd(a, R_B2, P_B2, s(T0+4), s(T0+6))
        srd(a, R_DBG, P_DBG, None, 256)
        srd(a, R_OUT, P_OUT, None, 2621440)
        for i in range(4): a(f'v_mov_b32 {v(vONE+i)}, 0x3f803f80')
        a(f'''v_and_b32 {v(t0)}, 15, {v(vL)}
v_mul_u32_u24 {v(t0)}, 1280, {v(t0)}
v_lshrrev_b32 {v(t1)}, 4, {v(vL)}
v_lshl_add_u32 {v(vRO)}, {v(t1)}, 3, {v(t0)}''')

    SA = 32768; RK, RV = 16384, 24576
    SP = 131072; MISC = 155648; FLG = MISC; ST = MISC + 1024; PKS = 3 * SA + 24576
    WQPOS = [SP + 8192 * q for q in range(3)] + [2 * SA + 8192 * q for q in range(4)] + [3 * SA + 8192 * q for q in range(3)]
    KVR = 0; WO = 0; XRL = 106496
    F_WQ, F_KVR, F_DRA, F_DRB, F_PB, F_PK, F_GA, F_H1, F_H0, F_P2 = 0, 12, 16, 20, 24, 28, 32, 36, 40, 44
    OOR = WS_REC
    S_LB = 0
    SLP = OPT.get('sleep', 2)
    NTR = ' nt' if OPT.get('ntr', 1) else ''; NTX = ' nt' if OPT.get('ntx', 0) else ''; NTW = ' nt' if OPT.get('ntw', 0) else ''
    ool = []

    def phi4(x, tmp, cL, cE6L, e6v, pk=1):
        if not pk:
            return ([f'v_fma_f32 {v(tmp+i)}, {v(x+i)}, {v(cL)}, {v(cE6L)}' for i in range(4)] + [f'v_exp_f32 {v(tmp+i)}, {v(tmp+i)} clamp' for i in range(4)]
                    + [f'v_max_f32 {v(x+i)}, {v(e6v)}, {v(x+i)}' for i in range(4)] + [f'v_add_f32 {v(x+i)}, {v(x+i)}, {v(tmp+i)}' for i in range(4)])
        L = [f'v_pk_fma_f32 {v(tmp+i,2)}, {v(x+i,2)}, {v(cL,2)}, {v(cE6L,2)} op_sel_hi:[1,0,0]' for i in (0, 2)]
        L += [f'v_exp_f32 {v(tmp+i)}, {v(tmp+i)} clamp' for i in range(4)]
        L += [f'v_max_f32 {v(x+i)}, {v(e6v)}, {v(x+i)}' for i in range(4)]
        L += [f'v_pk_add_f32 {v(x+i,2)}, {v(x+i,2)}, {v(tmp+i,2)}' for i in (0, 2)]
        return L
    mk = lambda r, f: f's_mov_b32 {s(r)}, 0x{lanemask(f) & 0xffffffff:08x}\ns_mov_b32 {s(r+1)}, 0x{lanemask(f) >> 32:08x}'

    def larrive(vFL, off):
        a(f's_mov_b64 exec, 1\nds_add_u32 {v(vFL)}, {v(vFL+1)} offset:{off}\ns_mov_b64 exec, -1')
    def lwait(vFL, off, tag, tmp):
        a(f''';@opt on
s_waitcnt lgkmcnt(0)
s_mov_b32 {s(S_LB)}, 0x1000000
L_lw{tag}:
ds_read_b32 {v(tmp)}, {v(vFL)} offset:{off}
s_sub_u32 {s(S_LB)}, {s(S_LB)}, 1
s_cselect_b32 {s(S_LB+1)}, 0, 4
s_waitcnt lgkmcnt(0)
v_readfirstlane_b32 {s(T0+7)}, {v(tmp)}
s_cmp_lt_u32 {s(T0+7)}, {s(S_LB+1)}
s_cbranch_scc1 L_lw{tag}
;@clearl''')
    caddr = lambda dst, idx, base: f's_lshl_b32 {s(dst)}, {s(idx)}, 7\ns_add_u32 {s(dst)}, {s(dst)}, {base}'
    ssig = lambda off: f's_atomic_add s3, {s(P_WS,2)}, {s(off)}'
    def last_signals(vFL, off, tag, tmp, idx, base, wait='s_waitcnt vmcnt(0)'):
        a(f'''{caddr(S_LB+1, idx, base)}
s_mov_b64 exec, 1
{wait}
ds_add_rtn_u32 {v(tmp)}, {v(vFL)}, {v(vFL+1)} offset:{off}
s_mov_b64 exec, -1
s_waitcnt lgkmcnt(0)
v_readfirstlane_b32 {s(T0+7)}, {v(tmp)}
s_cmp_lg_u32 {s(T0+7)}, 3
s_cbranch_scc1 L_ls{tag}
{ssig(S_LB+1)}
L_ls{tag}:''')
    def gpoll(tag, off, tgt=16, pre='s_waitcnt lgkmcnt(0)'):
        return f'''{pre}
s_mov_b32 {s(T0+7)}, 0x400000
L_{tag}_p:
s_mov_b32 {s(S_LB)}, 0
s_atomic_add {s(S_LB)}, {s(P_WS,2)}, {s(off)} glc
s_sub_u32 {s(T0+7)}, {s(T0+7)}, 1
s_cselect_b32 {s(S_LB+1)}, 0, {tgt}
s_waitcnt lgkmcnt(0)
s_cmp_ge_u32 {s(S_LB)}, {s(S_LB+1)}
s_cbranch_scc1 L_{tag}_d
s_sleep {SLP}
s_branch L_{tag}_p
L_{tag}_d:'''

    def x_addrs(aX):
        a(f"""v_lshrrev_b32 {v(t4)}, 4, {v(vL)}
v_and_b32 {v(t7)}, 15, {v(vL)}
s_lshl_b32 {s(T0+4)}, {s(S_MG)}, 12
v_lshrrev_b32 {v(t0)}, 1, {v(t7)}
v_xor_b32 {v(t0)}, {v(t0)}, {v(t4)}
v_lshlrev_b32 {v(t0)}, 4, {v(t0)}
v_lshl_add_u32 {v(t0)}, {v(t7)}, 7, {v(t0)}
v_add_u32 {v(aX)}, {s(T0+4)}, {v(t0)}
v_xor_b32 {v(aX+1)}, 64, {v(aX)}
v_add_u32 {v(aX+2)}, {2*SA}, {v(aX)}
v_add_u32 {v(aX+3)}, {2*SA}, {v(aX+1)}""")
    def w_addrs(rA, rB, rC, xor, base):
        g_, r_, c_, s_ = t4, t5, t6, t7
        a(f"""v_lshrrev_b32 {v(g_)}, 4, {v(vL)}
v_bfe_u32 {v(r_)}, {v(vL)}, 2, 2
v_and_b32 {v(c_)}, 3, {v(vL)}
v_lshl_add_u32 {v(t0)}, {v(g_)}, 3, {v(r_)}
v_lshlrev_b32 {v(t0)}, 7, {v(t0)}
v_and_b32 {v(t1)}, 1, {v(g_)}
v_lshlrev_b32 {v(t1)}, 1, {v(t1)}
v_lshrrev_b32 {v(t2)}, 1, {v(r_)}
v_or_b32 {v(t1)}, {v(t1)}, {v(t2)}
v_lshlrev_b32 {v(t1)}, 5, {v(t1)}
v_and_b32 {v(s_)}, 1, {v(c_)}
v_mul_u32_u24 {v(s_)}, 40, {v(s_)}
s_xor_b32 {s(T0+4)}, {s(S_HP)}, {xor}
s_and_b32 {s(T0+4)}, {s(T0+4)}, 3
s_lshl_b32 {s(T0+4)}, {s(T0+4)}, 4
s_mov_b32 {s(T0+5)}, {base}
v_lshl_add_u32 {v(t2)}, {v(c_)}, 3, {s(T0+4)}
v_xor_b32 {v(t3)}, {v(t2)}, {v(t1)}
v_add3_u32 {v(rA)}, {v(t3)}, {v(t0)}, {s(T0+5)}
v_add_u32 {v(t2)}, 40, {v(t2)}
v_xor_b32 {v(t3)}, {v(t2)}, {v(t1)}
v_add3_u32 {v(rB)}, {v(t3)}, {v(t0)}, {s(T0+5)}
v_add3_u32 {v(t2)}, {v(s_)}, {s(T0+4)}, 32
v_xor_b32 {v(t3)}, {v(t2)}, {v(t1)}
v_add3_u32 {v(rC)}, {v(t3)}, {v(t0)}, {s(T0+5)}""")

    va.reset(xr_mark)
    acc2 = va.a(20, 4); O2 = va.a(32, 4); OS2 = va.a(8, 4)
    WP = [va.a(20, 4) for _ in range(8)]
    aM = va.a(3); vL8 = va.a()
    aS = O2; axr_ = O2 + 3
    axw = vHR; axr = vHR + 1; vL4b = vHR + 2
    XC0 = WO + 38912
    E0, E1, E2, E3, E4, E5, E6, E7 = 36, 37, 38, 39, 6, 7, 10, 11
    S_T0 = S_U0; S_O3 = S_U1; S_W1 = E6
    RRB = SLOT
    S_HX, S_GP, S_MXl, S_HS, S_C3, S_R0, S_R1, S_P0 = range(R_W1, R_W1 + 8); S_W2 = E3
    R4 = OPT.get('r4', 0); S_ORD = R_WO; S_W2M = R_WO + 1; S_W2B = R_WO + 2
    def p2_scalars():
        a(f'''s_lshl_b32 {s(T0+2)}, {s(S_STILE)}, 4
s_lshl_b32 {s(T0+3)}, {s(S_KH)}, 3
s_add_u32 {s(T0+2)}, {s(T0+2)}, {s(T0+3)}
s_mul_i32 {s(T0+2)}, {s(T0+2)}, 1280
s_add_u32 {s(T0+2)}, {s(T0+2)}, {OFF_O}
s_mul_i32 {s(S_T0)}, {s(S_HP)}, 7
s_mul_i32 {s(T0+4)}, {s(S_HP)}, 6
s_add_u32 {s(T0+4)}, {s(T0+4)}, 12
s_cmp_lt_u32 {s(S_HP)}, 12
s_cselect_b32 {s(S_T0)}, {s(S_T0)}, {s(T0+4)}
s_add_u32 {s(S_W1)}, {s(S_T0)}, {s(S_W)}
s_lshl_b32 {s(S_W1)}, {s(S_W1)}, 10
s_add_u32 {s(S_W1)}, {s(S_W1)}, {OFF_W1P}''')
        a(f'''s_and_b32 {s(S_O3)}, {s(S_T0)}, 1
s_lshl_b32 {s(T0+4)}, {s(S_T0)}, 5
s_sub_u32 {s(T0+6)}, 3456, {s(T0+4)}''')
        srd(a, R_B1, P_B1, s(T0+4), s(T0+6))
        a(f'''s_mul_i32 {s(E0)}, {s(S_CT)}, 5
s_add_u32 {s(E0)}, {s(E0)}, 1
s_lshr_b32 {s(E0)}, {s(E0)}, 1
s_mul_i32 {s(E1)}, {s(S_STILE)}, 20
s_add_u32 {s(E0)}, {s(E0)}, {s(E1)}
s_cmp_eq_u32 {s(S_ODD)}, 0
s_cselect_b32 {s(E1)}, 2, -1
s_add_u32 {s(E1)}, {s(E1)}, {s(E0)}
s_lshl_b32 {s(E1)}, {s(E1)}, 10
s_lshl_b32 {s(E2)}, {s(S_ODD)}, 9
s_add_u32 {s(E1)}, {s(E1)}, {s(E2)}
s_add_u32 {s(E1)}, {s(E1)}, {OFF_H}
s_cmp_lg_u32 {s(S_KH)}, 0
s_cselect_b32 {s(E1)}, {OOR}, {s(E1)}
s_cselect_b32 {s(E5)}, 0, 1.0
s_add_u32 {s(E0)}, {s(E0)}, {s(S_KH)}
s_lshl_b32 {s(E0)}, {s(E0)}, 10
s_add_u32 {s(E0)}, {s(E0)}, {OFF_H}
s_lshl_b32 {s(E2)}, {s(S_STILE)}, 3
s_add_u32 {s(E2)}, {s(E2)}, {s(S_CT)}
s_lshl_b32 {s(E2)}, {s(E2)}, 8
s_lshl_b32 {s(T0+3)}, {s(S_KH)}, 7
s_add_u32 {s(E2)}, {s(E2)}, {s(T0+3)}
s_add_u32 {s(E2)}, {s(E2)}, {OFF_HST}
s_mul_i32 {s(E3)}, {s(S_CT)}, 5120
s_mul_i32 {s(T0+3)}, {s(S_W)}, 40960
s_add_u32 {s(E3)}, {s(E3)}, {s(T0+3)}
s_add_u32 {s(E3)}, {s(E3)}, {OFF_W2P}
s_mul_i32 {s(E7)}, {s(S_W)}, 5120
s_lshr_b32 {s(S_ORD)}, {s(S_MEM)}, 3
s_add_u32 {s(S_ORD)}, {s(S_ORD)}, {s(S_CT)}
s_and_b32 {s(S_ORD)}, {s(S_ORD)}, {R4}
s_mul_i32 {s(T0+3)}, {s(S_ORD)}, {26*40960}
s_add_u32 {s(E3)}, {s(E3)}, {s(T0+3)}
s_mul_i32 {s(T0+3)}, {s(S_ORD)}, {54*40960}
s_sub_u32 {s(S_W2B)}, {s(E3)}, {s(T0+3)}
s_cmp_ge_u32 {s(S_W)}, 4
s_cselect_b32 {s(S_W2M)}, {s(S_W2B)}, {s(E3)}
s_lshl_b32 {s(S_C3)}, {s(S_O3)}, 5
s_lshl_b32 {s(T0+6)}, {s(S_MG)}, 6
s_add_u32 {s(S_C3)}, {s(S_C3)}, {s(T0+6)}
s_cmp_eq_u32 {s(S_C3)}, 224
s_cselect_b32 {s(S_C3)}, 0, {s(S_C3)}
s_lshl_b32 {s(S_P0)}, {s(S_C3)}, 5
s_lshl_b32 {s(S_HX)}, {s(S_RT1)}, 3
s_lshl_b32 {s(T0+6)}, {s(S_KH)}, 2
s_add_u32 {s(S_HX)}, {s(S_HX)}, {s(T0+6)}
s_mul_i32 {s(S_GP)}, {s(S_HX)}, 54
s_mul_i32 {s(S_HX)}, {s(S_HX)}, 20
s_add_u32 {s(S_HX)}, {s(S_HX)}, {s(S_MG)}
s_lshl_b32 {s(S_HX)}, {s(S_HX)}, 10
s_add_u32 {s(S_HX)}, {s(S_HX)}, {OFF_H}
s_mul_i32 {s(S_MXl)}, {s(S_KH)}, 20480
s_lshl_b32 {s(T0+6)}, {s(S_MG)}, 10
s_add_u32 {s(S_MXl)}, {s(S_MXl)}, {s(T0+6)}
s_lshl_b32 {s(T0+6)}, {s(S_T0)}, 5
s_add_u32 {s(T0+6)}, {s(T0+6)}, {s(S_C3)}
s_lshr_b32 {s(T0+7)}, {s(T0+6)}, 6
s_add_u32 {s(S_GP)}, {s(S_GP)}, {s(T0+7)}
s_lshl_b32 {s(S_GP)}, {s(S_GP)}, 10
s_bfe_u32 {s(T0+7)}, {s(T0+6)}, 0x10005
s_lshl_b32 {s(T0+7)}, {s(T0+7)}, 9
s_add_u32 {s(S_GP)}, {s(S_GP)}, {s(T0+7)}
s_add_u32 {s(S_GP)}, {s(S_GP)}, {OFF_G}
s_cmp_ge_u32 {s(S_HP)}, 12
s_cselect_b32 {s(T0+6)}, {OOR}, {s(S_GP)}
s_cmp_eq_u32 {s(S_MG)}, 3
s_cselect_b32 {s(S_GP)}, {s(T0+6)}, {s(S_GP)}
s_lshl_b32 {s(S_HS)}, {s(S_RT1)}, 3
s_add_u32 {s(S_HS)}, {s(S_HS)}, {s(S_W)}
s_lshl_b32 {s(S_HS)}, {s(S_HS)}, 11
s_add_u32 {s(S_HS)}, {s(S_HS)}, {OFF_HST}
s_lshl_b32 {s(S_R0)}, {s(S_W)}, 7
s_add_u32 {s(S_R0)}, {s(S_R0)}, {RRB}
s_lshl_b32 {s(S_R1)}, {s(S_KH)}, 9
s_add_u32 {s(S_R1)}, {s(S_R1)}, {RRB}''')
    def p2_setup():
        g_, r_, c_ = t4, t5, t6
        a(f'v_lshrrev_b32 {v(g_)}, 4, {v(vL)}\ns_xor_b32 {s(T0+4)}, {s(S_KH)}, 1\ns_mul_i32 {s(T0+4)}, {s(T0+4)}, 51200')
        for i, sc in enumerate((S_CM, S_CO, S_CS)):
            a(f's_lshl_b32 {s(T0+5)}, {s(sc)}, 5\ns_add_u32 {s(T0+5)}, {s(T0+5)}, {s(T0+4)}\nv_add_u32 {v(aM+i)}, {s(T0+5)}, {v(vL16)}')
        a(f'''s_movk_i32 {s(T0+7)}, 1024
s_mul_i32 {s(T0+5)}, {s(S_MG)}, 3072
s_add_u32 {s(T0+5)}, {s(T0+5)}, {XC0}
s_add_u32 {s(T0+6)}, {s(T0+5)}, {s(T0+4)}
v_add_u32 {v(axw)}, {s(T0+6)}, {v(vL16)}
s_sub_u32 {s(T0+6)}, 51200, {s(T0+4)}
s_add_u32 {s(T0+6)}, {s(T0+6)}, {s(T0+5)}
v_add_u32 {v(axr)}, {s(T0+6)}, {v(vL16)}
v_lshlrev_b32 {v(vL8)}, 3, {v(vL)}
v_mul_u32_u24 {v(vL4b)}, {1280-256}, {v(g_)}
v_add3_u32 {v(vL4b)}, {v(vL4b)}, {v(vL16)}, {s(T0+7)}
v_and_b32 {v(t2)}, 15, {v(vL)}
v_mul_u32_u24 {v(t2)}, 160, {v(t2)}
v_lshl_add_u32 {v(t2)}, {v(g_)}, 3, {v(t2)}
s_mul_i32 {s(T0+4)}, {s(S_MG)}, 2560
s_add_u32 {s(T0+4)}, {s(T0+4)}, {XRL}
s_add_u32 {s(T0+5)}, {s(T0+4)}, {s(S_CM)}
v_add_u32 {v(axr_)}, {s(T0+5)}, {v(t2)}
s_add_u32 {s(T0+5)}, {s(T0+4)}, {s(S_CS)}
v_add_u32 {v(axr_+1)}, {s(T0+5)}, {v(t2)}''')
    tl = [(0, 0), (0, 1024), (1, 0), (1, 1024), (2, 0)]
    WB_ = lambda kind, j: WP[j % 6] if kind == 'm' else WP[6 + j]
    def wread(kind, j):
        idx = (j if j < 6 else j + 2) if kind == 'm' else 6 + j
        return [f'ds_read_b128 {v(WB_(kind,j)+4*t,4)}, {v(aM+ai)} offset:{idx*5120+ci}' for t, (ai, ci) in enumerate(tl)]
    def xinit():
        a(f'ds_read_b64 {v(vXR,2)}, {v(axr_)}\nds_read_b64 {v(vXR+2,2)}, {v(axr_)} offset:32\nds_read_b64 {v(vXR+4,2)}, {v(axr_+1)}')
    own2 = [acc2, acc2 + 4, acc2 + 16]
    def xinit2():
        for i in range(6):
            o = own2[i // 2] + 2 * (i & 1)
            a(f'v_lshlrev_b32 {v(o)}, 16, {v(vXR+i)}\nv_and_b32 {v(o+1)}, 0xffff0000, {v(vXR+i)}')
        for i in range(4): a(f'v_mul_f32 {v(acc2+16+i)}, {s(E5)}, {v(acc2+16+i)}')
    def preread(): return [x for j in range(6) for x in wread('m', j)] + [x for j in range(2) for x in wread('s', j)]

    p1_mark = base_mark
    va.reset(base_mark)
    vX = va.a(4); vW = va.a(6); aX = vHR; vFL = vHR + 4
    a(f"""v_lshrrev_b32 {v(t0)}, 3, {v(vL)}
v_and_b32 {v(t1)}, 7, {v(vL)}
v_lshrrev_b32 {v(t2)}, 4, {v(vL)}
s_lshl_b32 {s(T0+4)}, {s(S_MG)}, 5
v_add_u32 {v(t3)}, {s(T0+4)}, {v(t0)}
v_mul_u32_u24 {v(t3)}, 1280, {v(t3)}
v_xor_b32 {v(vX)}, {v(t1)}, {v(t2)}
v_lshl_add_u32 {v(vX)}, {v(vX)}, 4, {v(t3)}
v_xor_b32 {v(vX+1)}, 64, {v(vX)}
v_add_u32 {v(vX+1)}, {8*1280-1024}, {v(vX+1)}
v_add_u32 {v(vX+2)}, {16*1280-2048}, {v(vX)}
v_add_u32 {v(vX+3)}, {16*1280-2048}, {v(vX+1)}
s_mul_i32 {s(T0+6)}, {s(S_RT1)}, 163840""")
    S_MX = M_C; S_MW = M_C + 1; S_SX = M_D; S_SW = M_D + 1; S_CH = S_U1
    a(f's_lshl_b32 {s(S_MX)}, {s(S_MG)}, 12\ns_lshl_b32 {s(S_MW)}, {s(S_MG)}, 11')
    a(f"""s_mul_i32 {s(S_CH)}, {s(T0+2)}, 3
s_add_u32 {s(S_CH)}, {s(S_CH)}, {s(T0+3)}
s_and_b32 {s(T0+7)}, {s(T0)}, 3
s_add_u32 {s(S_CH)}, {s(S_CH)}, {s(T0+7)}
s_lshr_b32 {s(T0+7)}, {s(T0)}, 2
s_lshl_b32 {s(T0+7)}, {s(T0+7)}, 1
s_add_u32 {s(S_CH)}, {s(S_CH)}, {s(T0+7)}
s_cmp_ge_u32 {s(S_CH)}, 10
s_cselect_b32 {s(T0+7)}, 10, 0
s_sub_u32 {s(S_CH)}, {s(S_CH)}, {s(T0+7)}
s_cmp_ge_u32 {s(S_CH)}, 10
s_cselect_b32 {s(T0+7)}, 10, 0
s_sub_u32 {s(S_CH)}, {s(S_CH)}, {s(T0+7)}
s_lshl_b32 {s(T0+4)}, {s(S_MG)}, 4
v_add_u32 {v(t3)}, {s(T0+4)}, {v(t0)}
v_mul_u32_u24 {v(t3)}, 3840, {v(t3)}
v_and_b32 {v(t2)}, 1, {v(t2)}
v_lshlrev_b32 {v(t2)}, 1, {v(t2)}
v_xor_b32 {v(t1)}, {v(t1)}, {v(t2)}
v_lshl_add_u32 {v(t3)}, {v(t1)}, 4, {v(t3)}
v_xor_b32 {v(t0)}, 64, {v(t3)}
v_add_u32 {v(t0)}, {8*3840-1024}, {v(t0)}
s_mul_i32 {s(T0+5)}, {s(S_HP)}, 80
s_and_b32 {s(T0+5)}, {s(T0+5)}, 0xffffffc0
s_add_u32 {s(T0+5)}, {s(T0+5)}, 1280
v_add_u32 {v(vW)}, {s(T0+5)}, {v(t3)}
v_add_u32 {v(vW+1)}, {s(T0+5)}, {v(t0)}
s_add_u32 {s(T0+5)}, {s(T0+5)}, 1280
v_xor_b32 {v(t1)}, 16, {v(t3)}
v_xor_b32 {v(t2)}, 16, {v(t0)}
v_add_u32 {v(vW+2)}, {s(T0+5)}, {v(t1)}
v_add_u32 {v(vW+3)}, {s(T0+5)}, {v(t2)}
s_waitcnt lgkmcnt(0)""")
    srd(a, R_X, P_X, s(T0+6), 163840)
    srd(a, R_WQ, P_WQKV, None, 2457600)
    adv = f's_add_u32 {s(S_CH)}, {s(S_CH)}, 1\ns_cmp_eq_u32 {s(S_CH)}, 10\ns_cselect_b32 {s(S_CH)}, 0, {s(S_CH)}'
    def p1_dma(c):
        sl = c % 4
        L = [f's_lshl_b32 {s(S_SX)}, {s(S_CH)}, 7\ns_mul_i32 {s(S_SW)}, {s(S_CH)}, 245760\ns_add_u32 m0, {s(S_MX)}, {sl*SA}\n{adv}\n'
             f'buffer_load_dwordx4 {v(vX)}, {s(R_X,4)}, {s(S_SX)} offen{NTX} lds']
        for i in range(1, 4):
            L.append(f'buffer_load_dwordx4 {v(vX+i)}, {s(R_X,4)}, {s(S_SX)} offen offset:{1024*i}{NTX} lds')
        for sec in range(2):
            L[-1] += f'\ns_add_u32 m0, {s(S_MW)}, {RK + 8192*sec + sl*SA}'
            for b in range(2):
                tg = f';@tag c{c}\n' if (sec == 1 and b == 1) else ''
                L.append(f'{tg}buffer_load_dwordx4 {v(vW+2*sec+b)}, {s(R_WQ,4)}, {s(S_SW)} offen offset:{1024*b}{NTW} lds')
        return L
    def wq_dma(qs):
        L = []
        for q in qs:
            L.append(f's_mul_i32 {s(S_SW)}, {s(S_CH)}, 245760\ns_add_u32 m0, {s(S_MW)}, {WQPOS[q]}\n{adv}\n'
                     f'buffer_load_dwordx4 {v(vW+4)}, {s(R_WQ,4)}, {s(S_SW)} offen{NTW} lds')
            L.append(f';@tag q{q}\nbuffer_load_dwordx4 {v(vW+5)}, {s(R_WQ,4)}, {s(S_SW)} offen offset:1024{NTW} lds')
        return L
    stamp('start')
    a(p1_dma(0))
    a(f"""s_xor_b32 {s(T0+5)}, {s(S_HP)}, {QXOR}
s_mul_i32 {s(T0+5)}, {s(T0+5)}, 80
s_and_b32 {s(T0+5)}, {s(T0+5)}, 0xffffffc0
v_add_u32 {v(vW+4)}, {s(T0+5)}, {v(t3)}
v_add_u32 {v(vW+5)}, {s(T0+5)}, {v(t0)}""")
    x_addrs(aX)
    for i in range(4): a(f'v_mov_b32 {v(vONE+i)}, 0x3f803f80')
    aQ = va.a(6); aST = va.a(); zp = va.a(2); aTW = zp + 1
    XR = va.a(160, 4); gram = va.a(8, 4); rsum = va.a(8, 4)
    lmark = va.mark()
    ltouch = f'''v_min_u32 {v(t0)}, 31, {v(vL)}
v_mul_lo_u32 {v(t0)}, {v(t0)}, {s(S_U0)}
v_lshlrev_b32 {v(t1)}, 7, {v(vL)}
buffer_load_dword {v(vDUM)}, {v(t1)}, {s(R_B1,4)}, {s(P_BX)} offen
buffer_load_dword {v(vDUM)}, {v(t0)}, {s(R_W2,4)}, {s(P_BX+1)} offen{NTR}'''
    i_ls = stamp('loopstart')
    NQ8 = OPT.get('nq8', 0); NQ1 = OPT.get('nq1', 2)
    a(p1_dma(1))
    for i in range(10):
        a(f';@wait c{i}\ns_barrier')
        sl = i % 4
        for j in range(2):
            for m in range(2): a(f'ds_read_b128 {v(XR+16*i+8*j+4*m,4)}, {v(aX+2*(sl>>1)+j)} offset:{(sl&1)*SA + 2048*m}')
        M = []
        for j in range(2):
            z = (i == 0 and j == 0)
            for m in range(2):
                x = v(XR + 16 * i + 8 * j + 4 * m, 4)
                M.append(f'{MF} {v(gram+4*m,4)}, {x}, {x}, {0 if z else v(gram+4*m,4)}')
                M.append(f'{MF} {v(rsum+4*m,4)}, {v(vONE,4)}, {x}, {0 if z else v(rsum+4*m,4)}')
        D_ = p1_dma(i + 2) if i <= 7 else []
        if i == 6: a(f'buffer_load_dword {v(vD10)}, {v(zp)}, {s(R_DBG,4)}, 0 offen sc1')
        a(D_[:2]); a(weave(M, D_[2:]))
        if i == 0:
            srd(a, R_WS, P_WS, None, WS_REC)
            late_ids()
        if i == 1:
            w_addrs(aQ + 1, aQ + 2, aQ, QXOR, 2 * SA)
            for k in range(3): a(f'v_add_u32 {v(aQ+3+k)}, {SP-2*SA}, {v(aQ+k)}')
            a(mk(M_A, lambda l: (l & 3) == 1)); a(mk(M_B, lambda l: (l & 3) == 2)); a(mk(T0+2, lambda l: (l & 3) == 3))
            a(mk(T0, lambda l: ((l & 15) >> 2) == (l >> 4)))
            a(f"""v_and_b32 {v(t0)}, 15, {v(vL)}
v_lshlrev_b32 {v(t0)}, 2, {v(t0)}
s_lshl_b32 {s(T0+4)}, {s(S_MG)}, 7
s_add_u32 {s(T0+4)}, {s(T0+4)}, {ST}
v_add_u32 {v(aST)}, {s(T0+4)}, {v(t0)}
v_mov_b32 {v(zp)}, 0
v_mov_b32 {v(vFL)}, {FLG}
v_mov_b32 {v(vFL+1)}, 1
""")
        if i == 2:
            a(f'''s_lshl_b32 {s(T0+5)}, {s(S_T)}, 2
s_add_u32 {s(T0+5)}, {s(T0+5)}, {s(S_MG)}
s_lshl_b32 {s(P_BX)}, {s(T0+5)}, 13
s_lshl_b32 {s(T0+6)}, s2, 2
s_add_u32 {s(T0+6)}, {s(T0+6)}, {s(S_MG)}
s_movk_i32 {s(S_U0)}, 3456
s_movk_i32 {s(P_BX+1)}, {(1<<16)//27+1}
s_cmp_lt_u32 {s(T0+6)}, 540
s_cselect_b32 {s(R_W2)}, {s(P_W2)}, {s(P_W1)}
s_cselect_b32 {s(R_W2+1)}, {s(P_W2+1)}, {s(P_W1+1)}
s_mov_b32 {s(R_W2+2)}, 2211840
s_mov_b32 {s(R_W2+3)}, 0x20000
s_cselect_b32 {s(S_U0)}, 1280, {s(S_U0)}
s_cselect_b32 {s(T0+5)}, 0, 540
s_cselect_b32 {s(P_BX+1)}, {(1<<16)//10+1}, {s(P_BX+1)}
s_sub_u32 {s(T0+5)}, {s(T0+6)}, {s(T0+5)}
s_mul_i32 {s(P_BX+1)}, {s(P_BX+1)}, {s(T0+5)}
s_lshr_b32 {s(P_BX+1)}, {s(P_BX+1)}, 16
s_mul_i32 {s(P_BX+1)}, {s(P_BX+1)}, {s(S_U0)}
s_mul_i32 {s(P_BX+1)}, {s(P_BX+1)}, 31
s_lshl_b32 {s(T0+5)}, {s(T0+5)}, 7
s_add_u32 {s(P_BX+1)}, {s(P_BX+1)}, {s(T0+5)}''')
            srd(a, R_B1, P_WO, None, 819200)
        if i == OPT.get('lt', 1) - 20: a(ltouch)
        if i == OPT.get('wq0at', 7): a(wq_dma(range(3)))
        if i == OPT.get('lt', 1) - 10: a(ltouch)
        if i == 8: a(wq_dma(range(3, 3 + NQ8)))
    tmp = vTmp
    a(f's_mov_b32 {s(T0+4)}, {fhex(1/640)}\ns_mov_b32 {s(T0+5)}, {fhex(1e-5)}')
    SS = []
    for m in range(2):
        G = gram + 4 * m; sm = rsum + 4 * m; sq = tmp + 4 * m + 1; o = tmp + 4 * m + 2
        SS.append(f"""v_cndmask_b32 {v(sq)}, {v(G)}, {v(G+1)}, {s(M_A,2)}
v_cndmask_b32 {v(sq)}, {v(sq)}, {v(G+2)}, {s(M_B,2)}
v_cndmask_b32 {v(sq)}, {v(sq)}, {v(G+3)}, {s(T0+2,2)}
v_mul_f32 {v(sm)}, {s(T0+4)}, {v(sm)}
v_mul_f32 {v(sq)}, {s(T0+4)}, {v(sq)}
v_fma_f32 {v(sq)}, -{v(sm)}, {v(sm)}, {v(sq)}
v_max_f32 {v(sq)}, 0, {v(sq)}
v_add_f32 {v(sq)}, {s(T0+5)}, {v(sq)}
v_rsq_f32 {v(o)}, {v(sq)}
v_mul_f32 {v(o+1)}, -{v(sm)}, {v(o)}""".split('\n'))
    for x, y in zip(*SS): a(x); a(y)
    a(f's_mov_b64 exec, {s(T0,2)}')
    for m in range(2):
        a(f'ds_write2_b32 {v(aST)}, {v(tmp+4*m+2)}, {v(tmp+4*m+3)} offset0:{16*m} offset1:{128+16*m}')
    a('s_mov_b64 exec, -1')
    a(f"""v_readfirstlane_b32 {s(T0+4)}, {v(vD10)}
s_cmp_ge_u32 {s(T0+4)}, {ZBYTES//1024}
s_cbranch_scc1 L_zok
s_mov_b32 {s(T0+5)}, 0x400000
L_zpoll:
buffer_load_dword {v(vD10)}, {v(zp)}, {s(R_DBG,4)}, 0 offen sc1
s_waitcnt vmcnt(0)
v_readfirstlane_b32 {s(T0+4)}, {v(vD10)}
s_sub_u32 {s(T0+5)}, {s(T0+5)}, 1
s_cmp_eq_u32 {s(T0+5)}, 0
s_cbranch_scc1 L_zok
s_cmp_lt_u32 {s(T0+4)}, {ZBYTES//1024}
s_cbranch_scc1 L_zpoll
L_zok:""")
    a(wq_dma(range(3 + NQ8, 3 + NQ8 + NQ1)))
    a('s_waitcnt lgkmcnt(0)')
    i_le = stamp('p1loop')
    a('s_barrier')
    QD = wq_dma(range(3 + NQ8 + NQ1, 10))
    va.reset(gram)
    stt = vX
    for m in range(2):
        a(f'ds_read2_b32 {v(stt+2*m,2)}, {v(aST)} offset0:{16*m} offset1:{128+16*m}')
    acc = va.a(24, 4); csq = va.a(12, 4); fq = [va.a(12, 4), vTmp - 0]
    fq[1] = None
    fq1 = [vTmp, vTmp + 4, vW + 0]
    assert vW % 2 == 0
    QB = OPT.get('qb', 3)
    def bufid(n): return (n & 1) if (QB == 2 or n < 4) else (2, 0, 1)[(n - 4) % 3]
    FQn = lambda n, t: ((fq[0] + 4 * t), fq1[t], XR + 4 * t)[bufid(n)]
    def qreads(n):
        q = n >> 1; pos = WQPOS[q]; st_ = 3 if pos >= SP else 0; off = pos - (SP if pos >= SP else 2 * SA) + 4096 * (n & 1)
        return [f'ds_read_b64_tr_b16 {v(FQn(n,t)+2*jh,2)}, {v(aQ+st_+t)} offset:{off + 512*jh}' for t in range(3) for jh in range(2)]
    groups = {0: (2, 0), 6: (6, 4), 14: (9, 8)}
    def qsync(n):
        ql, fo = groups[n]
        if OPT.get('fine'): stamp(f'q{n}a')
        a(f';@wait q{ql}'); larrive(vFL, F_WQ + fo); lwait(vFL, F_WQ + fo, f'q{n}', vD10)
        if OPT.get('fine'): stamp(f'q{n}b')
    LT = OPT.get('lt', 5)
    if LT == 2: a(ltouch)
    if LT: a(QD); QD = []
    if LT == 1: a(ltouch)
    if LT == 3: a(ltouch.split('\n')[2:4])
    if LT == 5: a(ltouch.split('\n')[0:2] + ltouch.split('\n')[4:])
    if OPT.get('holdb', 0): lwait(vFL, F_KVR, 'hb', vD10)
    qsync(0)
    a(qreads(0))
    CSS = OPT.get('css', 0)
    if CSS:
        for r in range(csq, csq + 12): a(f'v_mov_b32 {v(r)}, 0')
    for n in range(20):
        M = []; C_ = []
        for t in range(3):
            for m in range(2):
                d = v(acc + (2 * t + m) * 4, 4)
                M.append(f'{MF} {d}, {v(FQn(n,t),4)}, {v(XR+8*n+4*m,4)}, {d if n else 0}')
            (C_ if CSS else M).append(f'{MF} {v(csq+4*t,4)}, {v(FQn(n,t),4)}, {v(vONE,4)}, {v(csq+4*t,4) if (n or CSS) else 0}')
        want = [n + 1] if (QB == 2 or n < 2) else ([3, 4] if n == 2 else [n + 2])
        want = [x for x in want if x < 20]
        R = [r for x in want for r in qreads(x)]
        g = [x for x in want if x in groups]
        if g:
            a(QD); QD = []
            a(M[:2]); qsync(g[0]); a(weave(M[2:], R, per=2))
        else:
            k = OPT.get('qdper', 3); a(weave(M, R + QD[:k], per=2 if len(R) > 6 else 1)); QD = QD[k:]
        if CSS:
            a(f's_cmp_lg_u32 {s(S_MG)}, {n & 3}\ns_cbranch_scc1 L_cq{n}'); a(C_); a(f'L_cq{n}:')
    if CSS:
        CSX = MISC + 2048
        a(f'''v_and_b32 {v(t0)}, 48, {v(vL)}
v_add_u32 {v(t0)}, {CSX}, {v(t0)}
s_mul_i32 {s(T0+4)}, {s(S_MG)}, 192
v_add_u32 {v(t1)}, {s(T0+4)}, {v(t0)}
s_mov_b32 exec_lo, 0x10001
s_mov_b32 exec_hi, 0x10001''')
        for t in range(3): a(f'ds_write_b128 {v(t1)}, {v(csq+4*t,4)} offset:{64*t}')
        a('s_mov_b64 exec, -1')
    larrive(vFL, F_PB)
    if CSS:
        lwait(vFL, F_PB, 'cq', vD10)
        cp_ = XR + 36
        for w_ in range(4):
            for t in range(3): a(f'ds_read_b128 {v(cp_+12*w_+4*t,4)}, {v(t0)} offset:{192*w_+64*t}')
    stamp('passB')
    va.reset(XR)
    kc = va.a(6, 2); cL, cE6L, e6v = kc, kc + 2, kc + 4
    tmp = va.a(16, 4); pk = va.a(12, 4); kvr = va.a(16, 4); fr = va.a(12, 4); Dq = va.a(32, 4); O = va.a(8, 4); tt = va.a(8, 2); cden = va.a(4, 4)
    aPA = va.a(); aSB = va.a(); vL4 = va.a(); OS = va.a(2)
    a(f"""v_mov_b32 {v(cL)}, {fhex(LOG2E)}
v_mov_b32 {v(cE6L)}, {fhex(-1e-6*LOG2E)}
v_mov_b32 {v(e6v)}, {fhex(1e-6)}
v_mov_b32 {v(cden)}, {fhex(1e-6)}
v_mov_b32 {v(cden+1)}, {fhex(1e-6)}
v_mov_b32 {v(cden+2)}, 0
v_mov_b32 {v(cden+3)}, 0
v_lshlrev_b32 {v(vL4)}, 2, {v(vL)}
s_xor_b32 {s(T0+2)}, {s(S_HP)}, {QXOR}
s_lshl_b32 {s(T0)}, {s(S_MG)}, 1
s_lshl_b32 {s(T0+1)}, {s(S_RT1)}, 3
s_add_u32 {s(T0)}, {s(T0)}, {s(T0+1)}
s_lshl_b32 {s(T0)}, {s(T0)}, 4
s_add_u32 {s(T0)}, {s(T0)}, {s(T0+2)}
s_mul_i32 {s(T0)}, {s(T0)}, 1280
s_add_u32 {s(T0)}, {s(T0)}, {OFF_O}
s_add_u32 {s(T0+1)}, {s(T0)}, {16*1280}
s_lshl_b32 {s(T0+3)}, {s(T0+2)}, 7
s_add_u32 {s(T0+3)}, {s(T0+3)}, {OFF_CA}
s_lshl_b32 {s(T0+2)}, {s(T0+2)}, 12
s_add_u32 {s(T0+2)}, {s(T0+2)}, {OFF_KV}""")
    a(mk(M_A, lambda l: (l >> 4) == 0)); a(mk(M_B, lambda l: (l >> 4) == 1))
    a(mk(M_C, lambda l: ((l >> 4) == 0 and (l & 1) == 0) or ((l >> 4) == 1 and (l & 1) == 1)))
    a(mk(M_D, lambda l: (l & 1) == 0))
    if CSS:
        assert cp_ == kvr and Dq + 32 >= cp_ + 48
        for i in range(0, 12, 2):
            a(f'v_pk_add_f32 {v(cp_+i,2)}, {v(cp_+i,2)}, {v(cp_+12+i,2)}\nv_pk_add_f32 {v(cp_+24+i,2)}, {v(cp_+24+i,2)}, {v(cp_+36+i,2)}')
        for i in range(0, 12, 2): a(f'v_pk_add_f32 {v(csq+i,2)}, {v(cp_+i,2)}, {v(cp_+24+i,2)}')
    dst = {1: 0, 0: 2, 2: 4}
    for t in range(3):
        c = csq + 4 * t
        for m in range(2):
            for i in (0, 2):
                a(f'v_pk_fma_f32 {v(tmp+8*m+i,2)}, {v(stt+2*m,2)}, {v(c+i,2)}, {v(e6v,2)} op_sel:[1,0,0] op_sel_hi:[1,1,0]')
        for m in range(2):
            x = acc + (2 * t + m) * 4
            for i in (0, 2):
                a(f'v_pk_fma_f32 {v(x+i,2)}, {v(x+i,2)}, {v(stt+2*m,2)}, {v(tmp+8*m+i,2)} op_sel_hi:[1,0,1]')
        P = [phi4(acc + (2 * t + m) * 4, tmp + 8 * m + 4, cL, cE6L, e6v) for m in range(2)]
        for x, y in zip(*P): a(x); a(y)
        for m in range(2):
            x = acc + (2 * t + m) * 4; o = pk + 6 * m + dst[t]
            a(f'v_cvt_pk_bf16_f32 {v(o)}, {v(x)}, {v(x+1)}\nv_cvt_pk_bf16_f32 {v(o+1)}, {v(x+2)}, {v(x+3)}')
    stamp('qepi')
    lwait(vFL, F_GA, 'ga', tmp)
    stamp('syncA')
    for b in (3, 2, 0, 1):
        a(f'buffer_load_dwordx4 {v(kvr+4*b,4)}, {v(vL16)}, {s(R_WS,4)}, {s(T0+2)} offen offset:{1024*b} sc1')
    M0, M1, EM, XX = kvr, kvr + 4, kvr + 8, kvr + 12
    em, xx, tx = tt, tt + 2, tt + 4; f = fr
    for i in range(2): a(f'v_cvt_pk_bf16_f32 {v(xx+i)}, {v(XX+2*i)}, {v(XX+2*i+1)}')
    for i in range(2): a(f'v_cvt_pk_bf16_f32 {v(em+i)}, {v(EM+2*i)}, {v(EM+2*i+1)}')
    for i in range(2): a(f'v_permlane32_swap_b32 {v(xx+i)}, {v(tx+i)}')
    for i in range(2): a(f'v_cndmask_b32 {v(tx+i)}, 0, {v(tx+i)}, {s(M_C,2)}')
    for i in range(2):
        a(f'v_cndmask_b32 {v(f+8+i)}, {v(tx+i)}, {v(em+i)}, {s(M_D,2)}')
        a(f'v_cndmask_b32 {v(f+10+i)}, {v(em+i)}, {v(tx+i)}, {s(M_D,2)}')
    for i in range(2):
        a(f'v_cndmask_b32 {v(f+2+i)}, 0, {v(xx+i)}, {s(M_A,2)}')
        a(f'v_cndmask_b32 {v(f+4+i)}, 0, {v(xx+i)}, {s(M_B,2)}')
    X0 = lambda m: v(pk + 6 * m, 4); X1 = lambda m: v(pk + 6 * m + 2, 4)
    for m in range(2):
        a(f'{MF} {v(Dq+16*m+8,4)}, {v(f+8,4)}, {X0(m)}, {v(cden,4)}\n{MF} {v(Dq+16*m+12,4)}, {v(f+8,4)}, {X1(m)}, {v(cden,4)}')
    for i in range(2): a(f'v_cvt_pk_bf16_f32 {v(f+i)}, {v(M0+2*i)}, {v(M0+2*i+1)}')
    for i in range(2): a(f'v_cvt_pk_bf16_f32 {v(f+6+i)}, {v(M1+2*i)}, {v(M1+2*i+1)}')
    for m in range(2):
        a(f'{MF} {v(Dq+16*m,4)}, {v(f,4)}, {X0(m)}, 0\n{MF} {v(Dq+16*m+4,4)}, {v(f+4,4)}, {X1(m)}, 0')
    for m in range(2):
        d = Dq + 16 * m
        a(f'v_rcp_f32 {v(tt+4*m)}, {v(d+8)}\nv_rcp_f32 {v(tt+4*m+1)}, {v(d+13)}')
    for m in range(2):
        d = Dq + 16 * m
        a(f'v_mul_f32 {v(tt+4*m+2)}, {v(tt+4*m)}, {v(d+10)}\nv_mul_f32 {v(tt+4*m+3)}, {v(tt+4*m+1)}, {v(d+15)}')
        a(f'v_cvt_pk_bf16_f32 {v(OS+m)}, {v(tt+4*m+2)}, {v(tt+4*m+3)}')
        a(f'buffer_store_dword {v(OS+m)}, {v(vL4)}, {s(R_WS,4)}, {s(T0+m)} offen offset:1024 sc1')
    for m in range(2):
        d = Dq + 16 * m
        for i in (0, 2): a(f'v_pk_mul_f32 {v(d+i,2)}, {v(d+i,2)}, {v(tt+4*m,2)} op_sel_hi:[1,0]')
        for i in (4, 6): a(f'v_pk_mul_f32 {v(d+i,2)}, {v(tt+4*m,2)}, {v(d+i,2)} op_sel:[1,0] op_sel_hi:[1,1]')
        for i in range(4): a(f'v_cvt_pk_bf16_f32 {v(O+4*m+i)}, {v(d+2*i)}, {v(d+2*i+1)}')
        a(f'buffer_store_dwordx4 {v(O+4*m,4)}, {v(vL16)}, {s(R_WS,4)}, {s(T0+m)} offen sc1')
    stamp('ost')
    p2_setup()
    p2_scalars()
    last_signals(vFL, F_DRB, 'B', vD10, S_RT1, OFF_CB)
    stamp('sigB')
    JB = OPT.get('jb', 1)
    if JB: a('s_barrier')
    else: lwait(vFL, F_H0, 'h0l', vD10)
    xinit(); a(preread()); xinit2()
    a('s_branch L_p1join')

    va.reset(base_mark)
    a('L_p1c:\n;@restore p1')
    stamp('start', 0)
    aX = vHR; vFL = vHR + 4
    a(f'v_mov_b32 {v(t0)}, 0\nv_mov_b32 {v(t1)}, 0\nv_mov_b32 {v(t2)}, 0\nv_mov_b32 {v(t3)}, 0\nv_mov_b32 {v(vFL)}, {FLG}\nv_mov_b32 {v(vFL+1)}, 1')
    a(f'ds_write_b128 {v(vFL)}, {v(t0,4)}\nds_write_b128 {v(vFL)}, {v(t0,4)} offset:16\nds_write_b128 {v(vFL)}, {v(t0,4)} offset:32')
    for i in range(4): a(f'v_mov_b32 {v(vONE+i)}, 0x3f803f80')
    x_addrs(aX)
    aT = va.a(10)
    w_addrs(aT, aT + 1, aT + 4, 0, RK)
    a(f"""v_xor_b32 {v(aT+2)}, 16, {v(aT)}
v_xor_b32 {v(aT+3)}, 16, {v(aT+1)}
v_xor_b32 {v(t0)}, 16, {v(aT+4)}
v_add_u32 {v(aT+2)}, {RV-RK}, {v(aT+2)}
v_add_u32 {v(aT+3)}, {RV-RK}, {v(aT+3)}
v_add_u32 {v(t0)}, {RV-RK}, {v(t0)}
v_cmp_lt_u32 vcc, 1, {v(t6)}
v_cndmask_b32 {v(aT+4)}, {v(aT+4)}, {v(t0)}, vcc""")
    for i in range(5): a(f'v_add_u32 {v(aT+5+i)}, {2*SA}, {v(aT+i)}')
    raw = va.a(32, 4); vPK = va.a(4); PKO = P_BX; PKI = P_BX + 1; S_GW = S_U1; S_PK2 = M_D
    kc = va.a(6, 2); cL, cE6L, e6v, zv = kc, kc + 2, kc + 4, kc + 5
    aST = va.a(); aW1 = va.a(); aW2 = va.a(); aRD = va.a(); aAT = va.a(); aSA = va.a(); vDW = va.a(3); aTW = va.a()
    def rawloads():
        for r in range(4):
            a(f'buffer_load_dwordx4 {v(raw+4*r,4)}, {v(vPK)}, {s(R_W2,4)}, {s(PKO)} offen{NTR}')
            if r < 3: a(f's_add_u32 {s(PKO)}, {s(PKO)}, {s(PKI)}')
        a(f'''s_lshl_b32 {s(S_PK2)}, {s(S_MG)}, 8
s_xor_b32 {s(T0+5)}, s2, 0xe0
s_add_u32 {s(S_PK2)}, {s(S_PK2)}, {s(T0+5)}
s_add_u32 {s(T0+5)}, {s(S_PK2)}, 484
s_mul_i32 {s(PKO)}, {s(T0+5)}, {(1<<16)//27+1}
s_lshr_b32 {s(PKO)}, {s(PKO)}, 16
s_mul_i32 {s(PKO)}, {s(PKO)}, {31*3456}
s_lshl_b32 {s(T0+5)}, {s(T0+5)}, 7
s_add_u32 {s(PKO)}, {s(PKO)}, {s(T0+5)}
s_cmp_ge_u32 {s(S_PK2)}, 56
s_cselect_b32 {s(PKO)}, 0x1000000, {s(PKO)}''')
        for r in range(4):
            a(f'buffer_load_dwordx4 {v(raw+16+4*r,4)}, {v(vPK+1)}, {s(R_W1,4)}, {s(PKO)} offen{NTR}')
            if r < 3: a(f's_add_u32 {s(PKO)}, {s(PKO)}, {8*3456}')
    S_ZO = T0; S_WJ = T0 + 1; S_WS0 = T0 + 2; S_WI = T0 + 3
    def setupS():
        a('s_waitcnt lgkmcnt(0)')
        srd(a, R_WS, P_WS, None, WS_REC)
        late_ids()
        a(f"""s_lshl_b32 {s(S_GW)}, s2, 2
s_add_u32 {s(S_GW)}, {s(S_GW)}, {s(S_MG)}
s_lshl_b32 {s(S_ZO)}, {s(S_GW)}, 10
s_add_u32 {s(T0+5)}, {s(S_ZO)}, {OFF_KV}
s_cmp_lt_u32 {s(S_GW)}, 64
s_cselect_b32 {s(S_ZO)}, {s(T0+5)}, {s(S_ZO)}
s_cmp_ge_u32 {s(S_GW)}, {ZBYTES//1024}
s_cselect_b32 {s(S_ZO)}, {OOR}, {s(S_ZO)}""")
        a(f'''v_lshrrev_b32 {v(t4)}, 3, {v(vL)}
v_and_b32 {v(t5)}, 7, {v(vL)}
v_lshlrev_b32 {v(t5)}, 4, {v(t5)}
s_movk_i32 {s(T0+4)}, 3456
s_movk_i32 {s(PKO)}, {(1<<16)//27+1}
s_cmp_lt_u32 {s(S_GW)}, 540
s_cselect_b32 {s(R_W2)}, {s(P_W2)}, {s(P_W1)}
s_cselect_b32 {s(R_W2+1)}, {s(P_W2+1)}, {s(P_W1+1)}
s_mov_b32 {s(R_W2+2)}, 2211840
s_mov_b32 {s(R_W2+3)}, 0x20000
s_cselect_b32 {s(T0+4)}, 1280, {s(T0+4)}
s_cselect_b32 {s(T0+5)}, 0, 540
s_cselect_b32 {s(PKO)}, {(1<<16)//10+1}, {s(PKO)}
v_mad_u32_u24 {v(vPK)}, {v(t4)}, {s(T0+4)}, {v(t5)}
s_lshl_b32 {s(PKI)}, {s(T0+4)}, 3
s_sub_u32 {s(T0+5)}, {s(S_GW)}, {s(T0+5)}
s_mul_i32 {s(PKO)}, {s(PKO)}, {s(T0+5)}
s_lshr_b32 {s(PKO)}, {s(PKO)}, 16
s_mul_i32 {s(PKO)}, {s(PKO)}, {s(T0+4)}
s_mul_i32 {s(PKO)}, {s(PKO)}, 31
s_lshl_b32 {s(T0+5)}, {s(T0+5)}, 7
s_add_u32 {s(PKO)}, {s(PKO)}, {s(T0+5)}
s_movk_i32 {s(T0+4)}, 3456
v_mad_u32_u24 {v(vPK+1)}, {v(t4)}, {s(T0+4)}, {v(t5)}''')
        assert all((j * ((1<<16)//10+1)) >> 16 == j // 10 for j in range(540)) and all((j * ((1<<16)//27+1)) >> 16 == j // 27 for j in range(540))
        srd(a, R_W1, P_W1, None, 2211840)
        srd(a, R_B1, P_B1, None, 3456)
        srd(a, R_X, P_B2, None, 1280)
        srd(a, R_WQ, P_WO, None, 819200)
        a(mk(M_A, lambda l: (l & 15) >= 8)); a(mk(M_B, lambda l: (l >> 4) == 1)); a(mk(M_C, lambda l: ((l & 15) >> 2) & 1))
        a(f"""v_mov_b32 {v(cL)}, {fhex(LOG2E)}
v_mov_b32 {v(cE6L)}, {fhex(-1e-6*LOG2E)}
v_mov_b32 {v(e6v)}, {fhex(1e-6)}
v_cndmask_b32 {v(zv)}, {v(e6v)}, 0, {s(M_A,2)}
s_lshl_b32 {s(T0+4)}, {s(S_MG)}, 7
s_add_u32 {s(T0+4)}, {s(T0+4)}, {ST}
v_and_b32 {v(t0)}, 48, {v(vL)}
v_add_u32 {v(aST)}, {s(T0+4)}, {v(t0)}
s_mul_i32 {s(T0+4)}, {s(S_MG)}, 5120
s_add_u32 {s(T0+4)}, {s(T0+4)}, {KVR}
v_add_u32 {v(aW1)}, {s(T0+4)}, {v(vL16)}
v_and_b32 {v(t1)}, 3, {v(vL)}
v_bfe_u32 {v(t2)}, {v(vL)}, 2, 2
v_lshl_add_u32 {v(t1)}, {v(t1)}, 2, {v(t2)}
v_add_u32 {v(t1)}, {v(t1)}, {v(t0)}
v_lshl_add_u32 {v(aW2)}, {v(t1)}, 4, {s(T0+4)}
s_lshl_b32 {s(T0+4)}, {s(S_MG)}, 10
v_lshl_add_u32 {v(aRD)}, {v(vL)}, 2, {s(T0+4)}
s_lshl_b32 {s(T0+5)}, {s(S_HP)}, 12
s_add_u32 {s(T0+5)}, {s(T0+5)}, {OFF_KV}
v_add_u32 {v(aAT)}, {s(T0+5)}, {v(aRD)}
s_lshl_b32 {s(T0+4)}, {s(S_MG)}, 11
s_add_u32 {s(T0+4)}, {s(T0+4)}, {PKS}
v_add_u32 {v(vPK+2)}, {s(T0+4)}, {v(vL16)}
v_lshrrev_b32 {v(t0)}, 2, {v(vL)}
v_lshlrev_b32 {v(t0)}, 7, {v(t0)}
v_and_b32 {v(t1)}, 3, {v(vL)}
v_lshl_add_u32 {v(t0)}, {v(t1)}, 3, {v(t0)}
v_add_u32 {v(vPK+3)}, {s(T0+4)}, {v(t0)}
s_lshl_b32 {s(S_U0)}, {s(S_GW)}, 12
s_add_u32 {s(S_U0)}, {s(S_U0)}, {OFF_W2P}
s_lshl_b32 {s(T0+4)}, {s(S_MG)}, 6
v_add_u32 {v(t0)}, {s(T0+4)}, {v(vL)}
s_movk_i32 {s(T0+4)}, 1120""")
        for j in range(3):
            a(f'''v_mul_u32_u24 {v(t1)}, 6554, {v(t0)}
v_lshrrev_b32 {v(t1)}, 16, {v(t1)}
v_lshlrev_b32 {v(t2)}, 4, {v(t0)}
v_mad_u32_u24 {v(vDW+j)}, {v(t1)}, {s(T0+4)}, {v(t2)}
v_add_u32 {v(t0)}, 256, {v(t0)}''')
        a(f'''s_lshl_b32 {s(S_WJ)}, {s(S_RT1)}, 3
s_lshr_b32 {s(T0+5)}, {s(S_HP)}, 1
s_add_u32 {s(S_WJ)}, {s(S_WJ)}, {s(T0+5)}
s_lshl_b32 {s(S_WJ)}, {s(S_WJ)}, 1
s_add_u32 {s(S_WJ)}, {s(S_WJ)}, {s(S_MG)}
s_and_b32 {s(T0+5)}, {s(S_HP)}, 7
s_bitcmp1_b32 0xa5, {s(T0+5)}
s_cselect_b32 {s(S_WJ)}, {s(S_WJ)}, 999
s_cmp_ge_u32 {s(S_MG)}, 2
s_cselect_b32 {s(S_WJ)}, 999, {s(S_WJ)}
s_mul_i32 {s(T0+4)}, {s(S_WJ)}, 6554
s_lshr_b32 {s(T0+4)}, {s(T0+4)}, 16
s_mul_i32 {s(T0+5)}, {s(T0+4)}, 10
s_sub_u32 {s(S_WS0)}, {s(S_WJ)}, {s(T0+5)}
s_lshl_b32 {s(S_WS0)}, {s(S_WS0)}, 7
s_cmp_ge_u32 {s(T0+4)}, 10
s_cselect_b32 {s(T0+5)}, {320*1280}, 0
s_cselect_b32 {s(T0+6)}, 10, 0
s_add_u32 {s(S_WS0)}, {s(S_WS0)}, {s(T0+5)}
s_sub_u32 {s(T0+4)}, {s(T0+4)}, {s(T0+6)}
s_cmp_ge_u32 {s(T0+4)}, 8
s_cselect_b32 {s(T0+5)}, 2, 0
s_sub_u32 {s(T0+5)}, {s(T0+4)}, {s(T0+5)}
s_mul_i32 {s(T0+5)}, {s(T0+5)}, {40*1280}
s_sub_u32 {s(T0+6)}, {s(T0+4)}, 6
s_mul_i32 {s(T0+7)}, {s(T0+6)}, {160*1280}
s_add_u32 {s(T0+7)}, {s(T0+7)}, {16*1280}
v_lshrrev_b32 {v(t0)}, 3, {v(vL)}
v_and_b32 {v(t1)}, 3, {v(t0)}
v_mul_u32_u24 {v(t1)}, 20, {v(t1)}
v_lshrrev_b32 {v(t2)}, 5, {v(vL)}
v_add_u32 {v(t1)}, {v(t1)}, {v(t2)}
s_cmp_lt_u32 {s(T0+6)}, 2
s_cselect_b32 {s(T0+5)}, {s(T0+7)}, {s(T0+5)}
s_cselect_b32 {s(S_WI)}, 1, 0
s_cselect_b64 vcc, -1, 0
s_add_u32 {s(S_WS0)}, {s(S_WS0)}, {s(T0+5)}
v_cndmask_b32 {v(t0)}, {v(t0)}, {v(t1)}, vcc
v_mul_u32_u24 {v(t0)}, 1280, {v(t0)}
v_and_b32 {v(t1)}, 7, {v(vL)}
v_lshl_add_u32 {v(aTW)}, {v(t1)}, 4, {v(t0)}
v_mov_b32 {v(t0)}, 0
v_mov_b32 {v(t1)}, 0
v_mov_b32 {v(t2)}, 0
v_mov_b32 {v(t3)}, 0
v_lshlrev_b32 {v(t4)}, 7, {v(vL)}''')
    def setupV():
        a(f'''buffer_store_dwordx4 {v(t0,4)}, {v(vL16)}, {s(R_WS,4)}, {s(S_ZO)} offen sc1
s_cmp_lg_u32 {s(S_W)}, 7
s_cbranch_scc1 L_ntb
buffer_load_dword {v(vDUM)}, {v(t4)}, {s(R_B1,4)}, 0 offen
buffer_load_dword {v(vDUM)}, {v(t4)}, {s(R_X,4)}, 0 offen
L_ntb:
s_cmp_ge_u32 {s(S_WJ)}, 200
s_cbranch_scc1 L_nwj
s_cmp_lg_u32 {s(S_WI)}, 0
s_movk_i32 {s(T0+4)}, {8*1280}
s_cselect_b32 {s(T0+4)}, {2*1280}, {s(T0+4)}
s_movk_i32 {s(T0+5)}, {20*1280}
s_cselect_b32 {s(T0+5)}, {80*1280}, {s(T0+5)}
s_add_u32 {s(T0+6)}, {s(S_WS0)}, {s(T0+4)}
s_add_u32 {s(T0+7)}, {s(S_WS0)}, {s(T0+5)}
s_add_u32 {s(T0+4)}, {s(T0+7)}, {s(T0+4)}
buffer_load_dwordx4 {v(raw,4)}, {v(aTW)}, {s(R_WQ,4)}, {s(S_WS0)} offen{NTR}
buffer_load_dwordx4 {v(raw+4,4)}, {v(aTW)}, {s(R_WQ,4)}, {s(T0+6)} offen{NTR}
buffer_load_dwordx4 {v(raw+8,4)}, {v(aTW)}, {s(R_WQ,4)}, {s(T0+7)} offen{NTR}
buffer_load_dwordx4 {v(raw+12,4)}, {v(aTW)}, {s(R_WQ,4)}, {s(T0+4)} offen{NTR}
L_nwj:''')
    acc = va.a(40, 4); csa = va.a(20, 4); pkf = va.a(16, 4)
    fX = [va.a(8, 4), va.a(8, 4)]; fW = [va.a(20, 4), va.a(20, 4)]
    A_ = lambda t, m: acc + (t * 2 + m) * 4
    zsig = f'''s_cmp_ge_u32 {s(S_GW)}, {ZBYTES//1024}
s_cbranch_scc1 L_nozsig
v_mov_b32 {v(t0)}, 0
s_mov_b64 exec, 1
buffer_atomic_add {v(vFL+1)}, {v(t0)}, {s(R_DBG,4)}, 0 offen sc1
s_mov_b64 exec, -1
L_nozsig:'''
    def packjob(rw, dst, lo=0):
        for hf in range(2):
            for r in range(2): a(f'ds_write_b128 {v(vPK+2)}, {v(rw+8*hf+4*r,4)} offset:{lo+1024*r}')
            for t in range(4): a(f'ds_read_b64_tr_b16 {v(pkf+4*t+2*hf,2)}, {v(vPK+3)} offset:{lo+32*t}')
        for t in range(4):
            a(f'buffer_store_dwordx4 {v(pkf+4*t,4)}, {v(vL16)}, {s(R_WS,4)}, {dst} offen offset:{1024*t} sc1')
    setupS()
    if OPT.get('sv', 0) < 0: setupV()
    stamp('loopstart', i_ls)
    def reads(n):
        sl = (n // 2) % 4; j = n & 1; b = n & 1
        L = [f'ds_read_b128 {v(fX[b]+4*m,4)}, {v(aX+2*(sl>>1)+j)} offset:{(sl&1)*SA + 2048*m}' for m in range(2)]
        for t in range(5):
            for jh in range(2):
                L.append(f'ds_read_b64_tr_b16 {v(fW[b]+4*t+2*jh,2)}, {v(aT+5*(sl>>1)+t)} offset:{(sl&1)*SA + 4096*j + 512*jh}')
        return L
    def mfmas(n):
        b = n & 1; L = []
        for t in ((0, 1, 2, 3, 4) if n < 19 else (0, 4, 2, 1, 3)):
            L.append(f'{MF} {v(csa+4*t,4)}, {v(vONE,4)}, {v(fW[b]+4*t,4)}, {v(csa+4*t,4) if n else 0}')
            for m in range(2):
                d = v(A_(t, m), 4)
                L.append(f'{MF} {d}, {v(fX[b]+4*m,4)}, {v(fW[b]+4*t,4)}, {d if n else 0}')
        return L
    a('s_waitcnt lgkmcnt(0)\ns_barrier')
    if OPT.get('fine'): stamp('b0')
    a(reads(0))
    PJ = OPT.get('pjat', 6)
    for n in range(20):
        if n & 1 and n < 19:
            if OPT.get('fine'): stamp(f'b{(n+1)//2}pre')
            a('s_barrier')
            if OPT.get('fine'): stamp(f'b{(n+1)//2}')
        a('s_waitcnt lgkmcnt(0)')
        a(weave(mfmas(n), reads(n + 1) if n < 19 else []))
        if n == OPT.get('sv', 0): setupV()
        if n == OPT.get('zs', 3):
            a('s_waitcnt vmcnt(0)')
            a(zsig)
            a(f's_cmp_ge_u32 {s(S_WJ)}, 200\ns_cbranch_scc1 L_nwp\ns_lshl_b32 {s(T0+4)}, {s(S_WJ)}, 12\ns_add_u32 {s(T0+4)}, {s(T0+4)}, {OFF_W0P}')
            packjob(raw, s(T0+4), SP - PKS)
            a(';@opt off\nL_nwp:')
    stamp('p1loop', i_le)
    a('s_setprio 1\ns_waitcnt vmcnt(0)\ns_barrier')
    a(f'''s_cmp_ge_u32 {s(S_WJ)}, 200
s_cbranch_scc1 L_nws
s_cmp_lg_u32 {s(S_MG)}, 0
s_cbranch_scc1 L_nws
s_mov_b32 {s(T0+4)}, {OFF_CP + 3072}
s_mov_b64 exec, 0xff
buffer_atomic_add {v(vFL+1)}, {v(t4)}, {s(R_WS,4)}, {s(T0+4)} offen sc1
s_mov_b64 exec, -1
L_nws:''')
    if OPT.get('fine'): stamp('B2')
    RAW = OPT.get('raw', 3)
    def cold():
        rawloads()
    stt = pkf; tmp = va.a(16, 4); op = fW[0] - 16; D = fW[0] + 8
    assert op == fX[0] and fW[1] == fW[0] + 20
    for m in range(2):
        a(f'ds_read_b128 {v(stt+8*m+4,4)}, {v(aST)} offset:{512+64*m}')
        a(f'ds_read_b128 {v(stt+8*m,4)}, {v(aST)} offset:{64*m}')
    if RAW == 1: cold()
    KA, KB, VA_, VB, KVC, KVCp = [v(op + 4 * i, 4) for i in range(6)]
    prods = [(KA, VA_), (KB, VB), (KVC, VA_), (KVC, VB), (KA, KVCp), (KB, KVCp), (KVC, KVCp)]
    PM = lambda i: f'{MF} {v(D+4*i,4)}, {prods[i][0]}, {prods[i][1]}, 0'
    for t in (0, 4, 2, 1, 3):
        cp = v(csa + 4 * t, 2)
        PKE = OPT.get('pke', 0)
        for m in range(2):
            tt_ = tmp + 8 * m
            if PKE:
                for i in (0, 2):
                    if t in (2, 3):
                        a(f'v_pk_mul_f32 {v(tt_+i,2)}, {cp}, {v(stt+8*m+4+i,2)}')
                    else:
                        zs = 1 if t == 4 else 0
                        a(f'v_pk_fma_f32 {v(tt_+i,2)}, {cp}, {v(stt+8*m+4+i,2)}, {v(e6v,2)} op_sel:[0,0,{zs}] op_sel_hi:[1,1,{zs}]')
            else:
                for i in range(4):
                    if t in (2, 3): a(f'v_mul_f32 {v(tt_+i)}, {v(csa+4*t)}, {v(stt+8*m+4+i)}')
                    else: a(f'v_fma_f32 {v(tt_+i)}, {v(csa+4*t)}, {v(stt+8*m+4+i)}, {v(zv if t == 4 else e6v)}')
        if t == 2: a(PM(4)); a(PM(6))
        if t == 1: a(PM(0)); a(PM(2))
        if t == 3: a(PM(5))
        for m in range(2):
            x = A_(t, m); tt_ = tmp + 8 * m
            if PKE:
                for i in (0, 2): a(f'v_pk_fma_f32 {v(x+i,2)}, {v(x+i,2)}, {v(stt+8*m+i,2)}, {v(tt_+i,2)}')
            else:
                for i in range(4): a(f'v_fma_f32 {v(x+i)}, {v(x+i)}, {v(stt+8*m+i)}, {v(tt_+i)}')
        if t == 4:
            for m in range(2):
                x = A_(t, m)
                a(f'v_cvt_pk_bf16_f32 {v(op+20+2*m)}, {v(x)}, {v(x+1)}\nv_cvt_pk_bf16_f32 {v(op+20+2*m+1)}, {v(x+2)}, {v(x+3)}')
        if t in (0, 1, 4):
            P = [phi4(A_(t, m), tmp + 8 * m + 4, cL, cE6L, e6v, PKE) for m in range(2)]
            for x, y in zip(*P): a(x); a(y)
        if t == 1: a(f'ds_write_b128 {v(aW1)}, {v(D,4)}')
        for m in range(2):
            x = A_(t, m)
            a(f'v_cvt_pk_bf16_f32 {v(op+4*t+2*m)}, {v(x)}, {v(x+1)}\nv_cvt_pk_bf16_f32 {v(op+4*t+2*m+1)}, {v(x+2)}, {v(x+3)}')
        if t == 4:
            for i in range(4): a(f'v_cndmask_b32 {v(op+20+i)}, {v(vONE)}, {v(op+20+i)}, {s(M_A,2)}')
    a(PM(3)); a(PM(1))
    for r in range(4): a(f'v_cndmask_b32 {v(D+16+r)}, {v(D+16+r)}, {v(D+20+r)}, {s(M_C,2)}')
    a(f'ds_write_b128 {v(aW2)}, {v(D+16,4)} offset:2048')
    for r in range(4): a(f'v_cndmask_b32 {v(D+8+r)}, {v(D+8+r)}, {v(D+12+r)}, {s(M_B,2)}')
    a(f"""ds_write_b128 {v(aW1)}, {v(D+8,4)} offset:3072
ds_write_b128 {v(aW2)}, {v(D+24,4)} offset:3584
ds_write_b128 {v(aW1)}, {v(D+4,4)} offset:1024""")
    if OPT.get('fine'): stamp('kvepi')
    larrive(vFL, F_KVR); lwait(vFL, F_KVR, 'kvr', vD10)
    if OPT.get('fine'): stamp('kvr')
    rd = acc
    for p in range(4):
        for hh in range(2): a(f'ds_read2st64_b32 {v(rd+4*p+2*hh,2)}, {v(aRD)} offset0:{p*20+2*hh} offset1:{p*20+2*hh+1}')
    for hh in (0, 2):
        a(f'v_pk_add_f32 {v(rd+hh,2)}, {v(rd+hh,2)}, {v(rd+4+hh,2)}\nv_pk_add_f32 {v(rd+8+hh,2)}, {v(rd+8+hh,2)}, {v(rd+12+hh,2)}')
    for hh in (0, 2):
        a(f'v_pk_add_f32 {v(rd+hh,2)}, {v(rd+hh,2)}, {v(rd+8+hh,2)}')
        for k in range(2): a(f'buffer_atomic_add_f32 {v(rd+hh+k)}, {v(aAT)}, {s(R_WS,4)}, 0 offen offset:{(hh+k)*256}')
    a(f's_and_b32 {s(T0+5)}, s2, 7\n' + caddr(M_C, T0+5, OFF_CP + 3072) + f'\ns_mov_b32 {s(M_C+1)}, 0')
    if OPT.get('swa', 1): a(f's_cmp_lg_u32 {s(S_W)}, 4\ns_cbranch_scc1 L_w0_n\ns_atomic_add {s(M_C+1)}, {s(P_WS,2)}, {s(M_C)} glc\nL_w0_n:')
    stamp('atomics')
    if RAW == 2: cold()
    a(f'''s_lshl_b32 {s(T0+6)}, {s(S_MG)}, 10
s_mul_i32 {s(T0+4)}, {s(S_MG)}, 20480
s_sub_u32 {s(T0+4)}, {s(S_RB)}, {s(T0+4)}
s_mul_i32 {s(T0+5)}, {s(S_CT)}, 160
s_sub_u32 {s(T0+5)}, {64*1280}, {s(T0+5)}''')
    srd(a, R_X, P_X, s(T0+4), s(T0+5))
    last_signals(vFL, F_DRA, 'A', vD10, S_HP, OFF_CA, ';@wait at')
    a('s_setprio 0')
    stamp('sigA')
    if RAW == 3: cold()
    THR = OPT.get('thr', 5)
    a(f'''s_mul_i32 {s(T0)}, {s(S_MG)}, 5120
s_mul_i32 {s(T0+1)}, {s(S_MG)}, 40960
s_mul_i32 {s(T0+4)}, {s(S_CT)}, 5120
s_add_u32 {s(T0+1)}, {s(T0+1)}, {s(T0+4)}
s_add_u32 {s(T0+1)}, {s(T0+1)}, {OFF_W0P}
s_cmp_ge_u32 {s(S_MG)}, 2
s_cselect_b32 {s(T0+2)}, {20*40960}, 0
s_sub_u32 {s(T0+2)}, {s(T0+1)}, {s(T0+2)}
v_add_u32 {v(aTW)}, 3072, {v(vL16)}''')
    S_PA = M_A; S_PV = M_A + 1; S_PD = M_B
    a(f'''s_xor_b32 {s(S_PA)}, {s(S_HP)}, {QXOR}
s_lshl_b32 {s(S_PA)}, {s(S_PA)}, 7
s_add_u32 {s(S_PA)}, {s(S_PA)}, {OFF_CA}
s_mov_b32 {s(S_PV)}, 0
s_cmp_lg_u32 {s(S_W)}, 7
s_cselect_b32 {s(S_PD)}, 1, 0
v_mov_b32 {v(t5)}, 4''')
    pa_n = [0]
    def pa_step(final=False):
        k = pa_n[0]; pa_n[0] += 1
        a(f'''s_cmp_lg_u32 {s(S_PD)}, 0
s_cbranch_scc1 L_pa{k}
;@opt on''')
        if final:
            a(f's_waitcnt lgkmcnt(0)\ns_cmp_ge_u32 {s(S_PV)}, 16\ns_cbranch_scc1 L_paf'); a(gpoll('sA', S_PA)); a('L_paf:')
            a(f'ds_write_b32 {v(vFL)}, {v(t5)} offset:{F_GA}')
        else:
            a(f'''s_waitcnt lgkmcnt(0)
s_cmp_lt_u32 {s(S_PV)}, 16
s_cbranch_scc1 L_pq{k}
ds_write_b32 {v(vFL)}, {v(t5)} offset:{F_GA}
s_mov_b32 {s(S_PD)}, 1
s_branch L_pa{k}
L_pq{k}:
s_mov_b32 {s(S_PV)}, 0
s_atomic_add {s(S_PV)}, {s(P_WS,2)}, {s(S_PA)} glc''')
        a(f';@opt off\nL_pa{k}:')
    def wodma(r):
        if OPT.get('pas', 0) or r == 4: pa_step()
        src = f's_add_u32 {s(T0+4)}, {s(T0+1)}, {(4*r+10)*40960}' if r < 2 else (f's_add_u32 {s(T0+4)}, {s(T0+2)}, {18*40960}' if r == 2 else f's_add_u32 {s(T0+4)}, {s(T0+1)}, {(4*r-10)*40960}')
        a(f's_add_u32 m0, {s(T0)}, {WO + r*20480}\n{src}')
        for t in range(4): a(f'buffer_load_dwordx4 {v(vL16)}, {s(R_WS,4)}, {s(T0+4)} offen offset:{1024*t} sc1 lds')
        a(f's_add_u32 m0, {s(T0)}, {WO + r*20480 + 3072}\ns_nop 0\n;@tag r{r}\nbuffer_load_dwordx4 {v(aTW)}, {s(R_WS,4)}, {s(T0+4)} offen offset:1024 sc1 lds')
        a(f's_waitcnt vmcnt({THR})')
    a(f's_cmp_lg_u32 {s(S_W)}, 4\ns_cbranch_scc1 L_w0_o\ns_cmp_ge_u32 {s(M_C+1)}, 100\ns_cbranch_scc1 L_w0_k'); a(gpoll('sW', M_C, 100))
    a(f'L_w0_k:\nds_write_b32 {v(vFL)}, {v(t5)} offset:{F_PK}\ns_branch L_w0_j\nL_w0_o:')
    lwait(vFL, F_PK, 'w0', vD10)
    a('L_w0_j:')
    wodma(1); wodma(2)
    lwait(vFL, F_DRA, 'dra', vD10)
    wodma(0)
    lwait(vFL, F_PB, 'pb', vD10)
    wodma(3); wodma(4)
    for n in range(3): a(f's_add_u32 m0, {s(T0+6)}, {XRL + n*4096}\ns_nop 0\nbuffer_load_dwordx4 {v(vDW+n)}, {s(R_X,4)}, 0 offen lds')
    pa_step(True)
    a(';@wait r0')
    larrive(vFL, F_H1)
    packjob(raw, s(S_U0))
    a(f's_cmp_ge_u32 {s(S_PK2)}, 56\ns_cbranch_scc1 L_pk2b\ns_lshl_b32 {s(T0+4)}, {s(S_PK2)}, 12\ns_add_u32 {s(T0+4)}, {s(T0+4)}, {OFF_W2P + 1024*4096}')
    packjob(raw + 16, s(T0+4))
    a(';@opt off\nL_pk2b:')
    if not JB:
        a(';@wait wx'); larrive(vFL, F_H0)
    if OPT.get('fine'): stamp('packed')
    lwait(vFL, F_H1, 'h1', vD10)
    p2_setup()
    a(preread())
    p2_scalars()
    if JB:
        a('s_waitcnt vmcnt(0)\ns_barrier')
        xinit(); xinit2()
        a(f'''s_cmp_lg_u32 {s(S_W)}, 6
s_cbranch_scc1 L_pkd
{caddr(T0+4, S_RT1, OFF_CP)}
s_waitcnt lgkmcnt(0)
s_mov_b32 {s(S_LB)}, 1
s_atomic_add {s(S_LB)}, {s(P_WS,2)}, {s(T0+4)} glc
s_waitcnt lgkmcnt(0)
s_cmp_lg_u32 {s(S_LB)}, 15
s_cbranch_scc1 L_pkd
v_lshlrev_b32 {v(t0)}, 7, {v(vL)}
s_mov_b32 {s(T0+4)}, {OFF_CP + 2048}
s_mov_b64 exec, 0xff
buffer_atomic_add {v(vFL+1)}, {v(t0)}, {s(R_WS,4)}, {s(T0+4)} offen sc1
s_mov_b64 exec, -1
L_pkd:''')
    else:
        lwait(vFL, F_H0, 'h0c', vD10)
        xinit(); xinit2()
        a(f'''{caddr(T0+4, S_RT1, OFF_CP)}
s_mov_b64 exec, 1
s_waitcnt vmcnt(0)
ds_add_rtn_u32 {v(vD10)}, {v(vFL)}, {v(vFL+1)} offset:{F_P2}
s_mov_b64 exec, -1
s_waitcnt lgkmcnt(0)
v_readfirstlane_b32 {s(T0+7)}, {v(vD10)}
s_cmp_lg_u32 {s(T0+7)}, 3
s_cbranch_scc1 L_pkd
s_mov_b32 {s(S_LB)}, 1
s_atomic_add {s(S_LB)}, {s(P_WS,2)}, {s(T0+4)} glc
s_waitcnt lgkmcnt(0)
s_cmp_lg_u32 {s(S_LB)}, 15
s_cbranch_scc1 L_pkd
v_lshlrev_b32 {v(t0)}, 7, {v(vL)}
s_mov_b32 {s(T0+4)}, {OFF_CP + 2048}
s_mov_b64 exec, 0xff
buffer_atomic_add {v(vFL+1)}, {v(t0)}, {s(R_WS,4)}, {s(T0+4)} offen sc1
s_mov_b64 exec, -1
L_pkd:''')


    va.reset(xr_mark)
    a('L_p1join:\n;@clearv\n;@clearl')

    def wave_block(tag, cmp, body, other=None):
        a(f'{cmp}\ns_cbranch_scc1 L_{tag}_e\n;@opt on')
        a(body)
        if other is not None:
            a(f's_branch L_{tag}_j\nL_{tag}_e:'); a(other); a(f';@opt off\nL_{tag}_j:')
        else:
            a(f';@opt off\nL_{tag}_e:')
    def signal(tag, idx, base):
        wave_block(tag + 'sig', f's_cmp_lg_u32 {s(S_W)}, 7', [caddr(S_LB+1, idx, base), ssig(S_LB+1)])
    def poll(tag, idx, base):
        wave_block(tag + 'pol', f's_cmp_lg_u32 {s(S_W)}, 7', [caddr(T0+4, idx, base), gpoll(tag, T0+4)])
        a('s_waitcnt lgkmcnt(0)\ns_barrier')

    if stop_after < 2:
        a('s_waitcnt vmcnt(0)\ns_barrier')
    if stop_after >= 2:
        O = O2; OS = OS2; vL4 = vL4b; own = own2
        stamp('wolanded')
        wave_block('sBpol', f's_cmp_lg_u32 {s(S_W)}, {OPT.get("pbw", 7)}', [caddr(T0+4, S_GRP, OFF_CB), gpoll('sB', T0+4)])
        a('s_waitcnt lgkmcnt(0)\ns_barrier')
        stamp('syncB')
        OSL = 122880
        a(f's_lshl_b32 {s(T0+4)}, {s(S_W)}, 11\ns_add_u32 m0, {s(T0+4)}, {OSL}\ns_add_u32 {s(T0+5)}, {s(T0+2)}, {5120-1024}')
        for j in range(8):
            o = (j % 3) * 1280
            a(f'buffer_load_dwordx4 {v(O+4*j,4)}, {v(vL16)}, {s(R_WS,4)}, {s(T0+2)} offen offset:{o} sc1')
            if j == 1:
                a(f';@tag os0\nbuffer_load_dwordx4 {v(vL4)}, {s(R_WS,4)}, {s(T0+2)} offen sc1 lds')
                a(f';@tag os1\nbuffer_load_dwordx4 {v(vL4)}, {s(R_WS,4)}, {s(T0+5)} offen offset:1024 sc1 lds')
            if j % 3 == 2: a(f's_add_u32 {s(T0+2)}, {s(T0+2)}, 3840')
        a(f's_add_u32 {s(T0+4)}, {s(T0+4)}, {OSL}\nv_lshl_add_u32 {v(t0)}, {v(vL)}, 2, {s(T0+4)}')
        a(stamp_txt('oiss', 'fine2'))
        W1POS = [106496 + 7168 * i for i in range(8)] + [7168 * i for i in range(5)] + [51200 + 7168 * i for i in range(5)] + [XC0, XC0 + 51200]
        def w1dma(kss, group=False):
            L = [f's_add_u32 m0, {s(S_MD)}, {W1POS[ks]}\ns_add_u32 {s(T0+4)}, {s(S_W1)}, {ks*110592}\n;@tag w1_{ks}\n'
                 f'buffer_load_dwordx4 {v(vL16)}, {s(R_WS,4)}, {s(T0+4)} offen sc1 lds' for ks in kss]
            if group: return L
            return [f's_cbranch_vccz L_w1s{ks}\n{x}\nL_w1s{ks}:' for ks, x in zip(kss, L)]
        a(stamp_txt('scal', 'fine2'))
        NA = OPT.get('nw1a', 9)
        steps = [('m', 0), ('m', 1), ('m', 2), ('m', 3), ('s', 0), ('m', 4), ('m', 5), ('m', 6), ('m', 7), ('s', 1)]
        WD = w1dma(range(NA)) if stop_after >= 3 else []
        W0 = 7
        for n, (kind, j) in enumerate(steps):
            X = v(O + 4 * j, 4) if kind == 'm' else v(OS + 4 * j, 4)
            order = range(5) if n < 9 else (2, 3, 4, 0, 1)
            M = [f'{MF} {v(acc2+4*t,4)}, {v(WB_(kind,j)+4*t,4)}, {X}, {v(acc2+4*t,4) if (n or t in (0, 1, 4)) else 0}' for t in order]
            F = wread('m', 5 + n) if n in (1, 2) else []
            if n == 3: F = [';@wait os1\n' + '\n'.join(f'ds_read2st64_b32 {v(OS+2*i,2)}, {v(t0)} offset0:{2*i} offset1:{2*i+1}' for i in range(4))]
            if n >= W0:
                k = OPT.get('wdk', 2); F = F + WD[:k]; WD = WD[k:]
            if n == 7 and W0 == 7:
                wave_block('sPpol', f's_cmp_lg_u32 {s(S_W)}, 0', [f's_and_b32 {s(T0+5)}, s2, 7', caddr(T0+4, T0+5, OFF_CP + 2048), gpoll('sP', T0+4)])
            if n == W0: a(f's_cmp_lg_u32 {s(S_W)}, 7\ns_cselect_b64 vcc, -1, 0\ns_waitcnt vmcnt(0)')
            if n == 7: a('s_waitcnt lgkmcnt(0)\ns_barrier')
            a(stamp_txt(f'n{n}', 'fine2'))
            a(spread(M, F))
        stamp('p2mm')
        rcv = WP[0]; xf = WP[1]
        for i in range(3): a(f'ds_write_b128 {v(axw)}, {v(acc2+8+4*i,4)} offset:{1024*i}')
        a(WD)
        a('s_waitcnt lgkmcnt(0)\ns_barrier')
        for i in range(3): a(f'ds_read_b128 {v(rcv+4*i,4)}, {v(axr)} offset:{1024*i}')
        for i in range(3):
            for hh in (0, 2):
                a(f'v_pk_add_f32 {v(own[i]+hh,2)}, {v(own[i]+hh,2)}, {v(rcv+4*i+hh,2)}')
            for hh in range(2):
                a(f'v_cvt_pk_bf16_f32 {v(vHR+2*i+hh)}, {v(own[i]+2*hh)}, {v(own[i]+2*hh+1)}')
            if i == 1: a(f'buffer_store_dwordx4 {v(vHR,4)}, {v(vL16)}, {s(R_WS,4)}, {s(E0)} offen sc1')
        a(f'buffer_store_dwordx2 {v(vHR+4,2)}, {v(vL8)}, {s(R_WS,4)}, {s(E1)} offen sc1')
        for i in range(6):
            a(f'v_lshlrev_b32 {v(xf+2*i)}, 16, {v(vHR+i)}\nv_and_b32 {v(xf+2*i+1)}, 0xffff0000, {v(vHR+i)}')
        sm = rcv; sq = rcv + 2; p = rcv + 4; q = rcv + 6
        a(f'v_pk_add_f32 {v(sm,2)}, {v(xf+8,2)}, {v(xf+10,2)}\nv_pk_mul_f32 {v(sq,2)}, {v(xf+8,2)}, {v(xf+8,2)}')
        a(f'v_pk_fma_f32 {v(sq,2)}, {v(xf+10,2)}, {v(xf+10,2)}, {v(sq,2)}')
        for i in range(4): a(f'v_mul_f32 {v(sm+i)}, {s(E5)}, {v(sm+i)}')
        for i in (0, 2, 4, 6):
            a(f'v_pk_add_f32 {v(sm,2)}, {v(sm,2)}, {v(xf+i,2)}\nv_pk_fma_f32 {v(sq,2)}, {v(xf+i,2)}, {v(xf+i,2)}, {v(sq,2)}')
        def xg_reduce(p, q):
            return f'''v_mov_b32 {v(q)}, {v(p)}
v_mov_b32 {v(q+1)}, {v(p+1)}
v_permlane32_swap_b32 {v(p)}, {v(q)}
v_permlane32_swap_b32 {v(p+1)}, {v(q+1)}
v_pk_add_f32 {v(p,2)}, {v(p,2)}, {v(q,2)}
v_mov_b32 {v(q)}, {v(p)}
v_mov_b32 {v(q+1)}, {v(p+1)}
v_permlane16_swap_b32 {v(p)}, {v(q)}
v_permlane16_swap_b32 {v(p+1)}, {v(q+1)}
v_pk_add_f32 {v(p,2)}, {v(p,2)}, {v(q,2)}'''
        a(f'v_add_f32 {v(p)}, {v(sm)}, {v(sm+1)}\nv_add_f32 {v(p+1)}, {v(sq)}, {v(sq+1)}')
        a(xg_reduce(p, q))
        a(f's_mov_b64 exec, 0xffff\nbuffer_store_dwordx2 {v(p,2)}, {v(vL8)}, {s(R_WS,4)}, {s(E2)} offen sc1\ns_mov_b64 exec, -1')
        stamp('p2st')

    if stop_after >= 3:
        va.reset(base_mark)
        W = va.a(160, 4); cs3 = va.a(8, 4); bt = va.a(8, 4); acc3 = [va.a(8, 4), va.a(8, 4)]
        fX = [va.a(4, 4) for _ in range(4)]; u = va.a(8, 4); gp = va.a(4, 4); rr = va.a(8, 2); kk = va.a(2)
        aP = fX[0]; aXl = vONE
        a(f'''v_lshrrev_b32 {v(t0)}, 4, {v(vL)}
v_lshlrev_b32 {v(t0)}, 3, {v(t0)}
buffer_load_dwordx2 {v(u,2)}, {v(t0)}, {s(R_B1,4)}, {s(S_C3)} offen
buffer_load_dwordx2 {v(u+2,2)}, {v(t0)}, {s(R_B1,4)}, {s(S_C3)} offen offset:32''')
        def w1pre(kss):
            R = []; M = []
            for ks in kss:
                pos = W1POS[ks]
                wi, base = (2, 106496) if pos >= 106496 else ((1, 56000) if pos >= 56000 else (0, 0))
                for t in range(2):
                    R.append(f'ds_read_b128 {v(W+8*ks+4*t,4)}, {v(aP+wi)} offset:{pos-base+1024*t}')
                    M.append(f'{MF} {v(cs3+4*t,4)}, {v(W+8*ks+4*t,4)}, {v(vONE,4)}, {v(cs3+4*t,4) if ks else 0}')
            a(R[:6]); k = 6
            for m in M:
                a(m); a(R[k:k+1]); k += 1
        XS = [3 * SLOT, 2 * SLOT, 3 * SLOT, 2 * SLOT]
        SL4 = {0: 0, 1: SLOT, 2: 3 * SLOT, 3: 2 * SLOT, 4: 0, 5: SLOT, 6: 3 * SLOT}
        def xdma(j, rounds=range(5)):
            return [f's_add_u32 m0, {s(S_MXl)}, {XS[j] + r*4096}\ns_add_u32 {s(T0+4)}, {s(S_HX)}, {j*20480 + r*4096}\n;@tag x{j}_{r}\n'
                    f'buffer_load_dwordx4 {v(vL16)}, {s(R_WS,4)}, {s(T0+4)} offen sc1 lds' for r in rounds]
        def dma5(m0base, m0off, srcreg, srccode, tag):
            G = OPT.get('dgrp', 1)
            m0 = f's_add_u32 m0, {s(m0base)}, {m0off}'
            ld = lambda t: f'buffer_load_dwordx4 {v(vL16)}, {s(R_WS,4)}, {s(srcreg)} offen offset:{1024*t} sc1 lds'
            last = f's_add_u32 m0, {s(m0base)}, {m0off + 3072}\ns_nop 0\nbuffer_load_dwordx4 {v(vD10)}, {s(R_WS,4)}, {s(srcreg)} offen offset:1024 sc1 lds'
            if G: return [f'{m0}\n{srccode}\n{ld(0)}', ld(1), ld(2), ld(3), last]
            return [f'{m0}\n{srccode}\n{ld(0)}'] + [f'{m0}\ns_nop 0\n{ld(t)}' for t in (1, 2, 3)] + [last]
        def w2dma(c):
            skip = f'\ns_cmp_ge_u32 {s(S_W)}, 6\ns_cselect_b32 {s(E5)}, {OOR}, {s(E5)}' if c == 6 else ''
            base = S_W2 if c < 3 else (S_W2M if c == 3 else S_W2B)
            return dma5(E7, SL4[c], E5, f's_add_u32 {s(E5)}, {s(base)}, {c*8*40960}{skip}', f'sc{c}')
        def xdma5(j):
            return dma5(E7, XS[j], E5, f's_add_u32 {s(E5)}, {s(E4)}, {j*20480}', f'x{j}_4')
        hs = acc3[1]
        assert NA >= 8
        NB = min(18, NA + OPT.get('nw1b', 5))
        a(f'v_add_u32 {v(aP)}, {s(S_P0)}, {v(vL16)}\nv_add_u32 {v(aP+1)}, 56000, {v(aP)}\nv_add_u32 {v(aP+2)}, 106496, {v(aP)}\nv_lshlrev_b32 {v(t7)}, 3, {v(vL)}')
        a(';@opt on\ns_waitcnt vmcnt(5)\ns_barrier')
        wave_block('w1b', f's_cmp_eq_u32 {s(S_W)}, 7', w1dma(range(NA, NB), True))
        w1pre(range(NA))
        wave_block('w1d', f's_cmp_eq_u32 {s(S_W)}, 7', [f's_waitcnt vmcnt({NB-NA})'], [caddr(T0+5, S_GRP, OFF_C2), caddr(T0+4, S_RT1, OFF_C2), 's_waitcnt vmcnt(0) lgkmcnt(0)'])
        a('s_barrier\n;@clearv')
        stamp('drained2')
        wave_block('w1c', f's_cmp_eq_u32 {s(S_W)}, 7', w1dma(range(NB, 20), True) + [f's_waitcnt vmcnt({20-NB})'], [ssig(T0+5), gpoll('s2', T0+4, pre='')])
        a('s_barrier')
        stamp('sync2')
        a(xdma(0, [0, 1]))
        for i in range(4):
            a(f'buffer_load_dwordx2 {v(hs+2*i,2)}, {v(t7)}, {s(R_WS,4)}, {s(S_HS)} offen offset:{512*i} sc1')
        a(xdma(0, [2, 3, 4]))
        w1pre(range(NA, NB))
        c0 = math.sqrt(2 / math.pi); K1 = -2 * LOG2E * c0; K2 = K1 * 0.044715
        a(f'v_mov_b32 {v(kk)}, {fhex(K2)}\nv_mov_b32 {v(kk+1)}, {fhex(K1)}')
        for i in range(4):
            a(f'v_lshlrev_b32 {v(bt+2*i)}, 16, {v(u+i)}\nv_and_b32 {v(bt+2*i+1)}, 0xffff0000, {v(u+i)}')
        a(f'''v_add_u32 {v(vD10)}, 3072, {v(vL16)}
v_and_b32 {v(t0)}, 15, {v(vL)}
v_lshl_add_u32 {v(t5)}, {v(t0)}, 3, {s(S_R0)}
v_lshl_add_u32 {v(t6)}, {v(t0)}, 3, {s(S_R1)}
s_mov_b32 {s(E1)}, {fhex(1/640)}
s_mov_b32 {s(E2)}, {fhex(1e-5)}
s_lshl_b32 {s(E4)}, {s(S_MG)}, 12
s_add_u32 {s(E4)}, {s(E4)}, {s(S_HX)}
s_mul_i32 {s(T0+6)}, {s(S_KH)}, 20480
s_add_u32 {s(T0+6)}, {s(T0+6)}, {2*SLOT}
s_barrier''')
        w1pre(range(NB, 20))
        a(f'''v_add_u32 {v(aXl)}, {s(T0+6)}, {v(vL16)}
v_add_u32 {v(aXl+1)}, {SLOT}, {v(aXl)}
v_mov_b32 {v(aXl+3)}, {v(t7)}
v_add_u32 {v(aXl+2)}, {s(T0+6)}, {v(t7)}''')
        stamp('w1pre')
        a(';@wait x0_0\ns_waitcnt lgkmcnt(0)\ns_barrier')
        a(stamp_txt('x0'))
        p = hs; q = hs + 2
        stats = (f'''v_pk_add_f32 {v(hs,2)}, {v(hs,2)}, {v(hs+2,2)}
v_pk_add_f32 {v(hs+4,2)}, {v(hs+4,2)}, {v(hs+6,2)}
v_pk_add_f32 {v(p,2)}, {v(hs,2)}, {v(hs+4,2)}
''' + xg_reduce(p, q) + f'''
v_mul_f32 {v(p)}, {s(E1)}, {v(p)}
v_mul_f32 {v(p+1)}, {s(E1)}, {v(p+1)}
v_fma_f32 {v(p+1)}, -{v(p)}, {v(p)}, {v(p+1)}
v_max_f32 {v(p+1)}, 0, {v(p+1)}
v_add_f32 {v(q)}, {s(E2)}, {v(p+1)}
v_rsq_f32 {v(q)}, {v(q)}
v_mul_f32 {v(q+1)}, {v(q)}, {v(q)}
v_fma_f32 {v(q+1)}, {v(q+1)}, {v(p+1)}, {s(E2)}
v_rsq_f32 {v(q+1)}, {v(q+1)}
v_mul_f32 {v(hs+4)}, {v(q)}, {v(q+1)}
v_mul_f32 {v(hs+5)}, -{v(p)}, {v(hs+4)}
;@tag rrw
ds_write_b64 {v(t5)}, {v(hs+4,2)}''').split('\n')
        stats = stats[:-2] + [stats[-2] + '\n' + stats[-1]]
        def xread(n):
            j, ks = divmod(n, 20)
            if ks % 5 == 2:
                o = (XS[j] - 2 * SLOT + ks * 1024) // 512
                return f'ds_read2st64_b64 {v(fX[n&3],4)}, {v(aXl+2)} offset0:{o} offset1:{o+1}'
            return f'ds_read_b128 {v(fX[n&3],4)}, {v(aXl + XS[j]//SLOT - 2)} offset:{ks*1024}'
        def epi(j, packed):
            x = acc3[j & 1]; r0 = rr + 2 * j; L = []
            if packed:
                r = v(r0, 2); P4 = (0, 2, 4, 6)
                L += [f'v_pk_fma_f32 {v(u+i,2)}, {r}, {v(cs3+i,2)}, {v(bt+i,2)} op_sel:[1,0,0] op_sel_hi:[1,1,1]' for i in P4]
                L += [f'v_pk_fma_f32 {v(x+i,2)}, {v(x+i,2)}, {r}, {v(u+i,2)} op_sel_hi:[1,0,1]' for i in P4]
                L += [f'v_pk_mul_f32 {v(u+i,2)}, {v(x+i,2)}, {v(x+i,2)}' for i in P4]
                L += [f'v_pk_fma_f32 {v(u+i,2)}, {v(u+i,2)}, {v(kk,2)}, {v(kk,2)} op_sel:[0,0,1] op_sel_hi:[1,0,1]' for i in P4]
                L += [f'v_pk_mul_f32 {v(u+i,2)}, {v(u+i,2)}, {v(x+i,2)}' for i in P4]
                L += [f'v_exp_f32 {v(u+i)}, {v(u+i)}' for i in range(8)]
                L += [f'v_pk_add_f32 {v(u+i,2)}, {v(u+i,2)}, 1.0 op_sel_hi:[1,0]' for i in P4]
                L += [f'v_rcp_f32 {v(u+i)}, {v(u+i)}' for i in range(8)]
                L += [f'v_pk_mul_f32 {v(x+i,2)}, {v(x+i,2)}, {v(u+i,2)}' for i in P4]
            else:
                R8 = range(8)
                L += [f'v_fma_f32 {v(u+i)}, {v(cs3+i)}, {v(r0+1)}, {v(bt+i)}' for i in R8]
                L += [f'v_fma_f32 {v(x+i)}, {v(x+i)}, {v(r0)}, {v(u+i)}' for i in R8]
                L += [f'v_mul_f32 {v(u+i)}, {v(x+i)}, {v(x+i)}' for i in R8]
                L += [f'v_fma_f32 {v(u+i)}, {v(u+i)}, {v(kk)}, {v(kk+1)}' for i in R8]
                L += [f'v_mul_f32 {v(u+i)}, {v(u+i)}, {v(x+i)}' for i in R8]
                L += [f'v_exp_f32 {v(u+i)}, {v(u+i)}' for i in R8]
                L += [f'v_add_f32 {v(u+i)}, 1.0, {v(u+i)}' for i in R8]
                L += [f'v_rcp_f32 {v(u+i)}, {v(u+i)}' for i in R8]
                L += [f'v_mul_f32 {v(x+i)}, {v(x+i)}, {v(u+i)}' for i in R8]
            L += [f'v_cvt_pk_bf16_f32 {v(gp+i)}, {v(x+2*i)}, {v(x+2*i+1)}' for i in range(4)]
            L.append(f'''s_cmp_eq_u32 {s(S_MG)}, 3
s_cbranch_scc1 L_g{j}s
buffer_store_dwordx4 {v(gp,4)}, {v(vL16)}, {s(R_WS,4)}, {s(S_GP)} offen sc1
s_branch L_g{j}b
L_g{j}s:
buffer_store_dwordx2 {v(gp,2)}, {v(aXl+3)}, {s(R_WS,4)}, {s(S_GP)} offen sc1
L_g{j}b:
s_add_u32 {s(S_GP)}, {s(S_GP)}, {54*1024}''')
            return L
        if OPT.get('prio3', 1): a(f's_cmp_lt_u32 {s(S_W)}, 4\ns_cbranch_scc1 L_pr3\ns_setprio 1\nL_pr3:')
        for n in range(3): a(xread(n))
        for j in range(4):
            M = []
            for ks in range(20):
                n = 20 * j + ks
                pre = ''
                nx = n + 3
                if nx < 80:
                    jx, kx = divmod(nx, 20)
                    if jx == 0 and kx in (4, 8): pre = stamp_txt(f'x0_{kx}a') + f';@wait x0_{1 if kx == 4 else 4}\ns_barrier\n' + stamp_txt(f'x0_{kx}b')
                    if jx > 0 and kx == 0: pre = stamp_txt(f'x{jx}a') + f';@wait x{jx}_4\n;@lwait rrw\ns_barrier\n' + stamp_txt(f'x{jx}b')
                    if jx == 1 and kx == 0: pre += '\n'.join(f'ds_read_b64 {v(rr+2*i,2)}, {v(t6)} offset:{128*i}' for i in range(4)) + '\n'
                for t in range(2):
                    d = v(acc3[j & 1] + 4 * t, 4)
                    ins = f'{MF} {d}, {v(W+8*ks+4*t,4)}, {v(fX[n&3],4)}, {d if ks else 0}'
                    if t == 0 and OPT.get('lw3', 1) and (n & 1) == 0 and 2 <= n < 76 and not (j == 0) and ks not in (0, 18): ins = 's_waitcnt lgkmcnt(1)\n' + ins
                    if t == 1 and nx < 80: ins += '\n' + pre + xread(nx)
                    M.append(ins)
            W4 = stop_after >= 4
            TW = []
            if j == 0:
                M = spread(M, xdma5(1) + TW, start=2, end=14)
                a(spread(M, stats, start=10, end=36))
            else:
                M[3] += '\ns_barrier'
                D_ = (xdma5(j + 1) if j < 3 else []) + TW + (w2dma(j - 1) if W4 else [])
                M = spread(M, D_, start=4, end=OPT.get('d3end', 26) if j < 3 else 14)
                a(spread(M, epi(j - 1, OPT.get('pk3', 0)) if not OPT.get('noepi') else [], start=4, end=len(M) - OPT.get('e3end', 2)))
        stamp('p3mm')
        a(epi(3, 1))
        stamp('p3st')

    if stop_after >= 4:
        va.reset(base_mark)
        b2r = va.a(6, 2); aW = va.a(12); axw = va.a(); axr = va.a(); vL8 = aXl + 3
        NX = OPT.get('nx', 12)
        acc4 = va.a(20, 4); X4 = va.a(4 * NX, 4); WB = [va.a(20, 4) for _ in range(6)]
        a(f"""v_lshrrev_b32 {v(t0)}, 4, {v(vL)}
v_lshlrev_b32 {v(t0)}, 3, {v(t0)}
buffer_load_dwordx2 {v(b2r,2)}, {v(t0)}, {s(R_B2,4)}, {s(S_CM)} offen
buffer_load_dwordx2 {v(b2r+2,2)}, {v(t0)}, {s(R_B2,4)}, {s(S_CM)} offen offset:32
buffer_load_dwordx2 {v(b2r+4,2)}, {v(t0)}, {s(R_B2,4)}, {s(S_CS)} offen
s_mul_i32 {s(T0+6)}, {s(S_KH)}, 5120""")
        for i, sc in enumerate((S_CM, S_CO, S_CS)):
            a(f's_lshl_b32 {s(T0+7)}, {s(sc)}, 5\ns_add_u32 {s(T0+7)}, {s(T0+7)}, {s(T0+6)}\nv_add_u32 {v(aW+i)}, {s(T0+7)}, {v(vL16)}')
            for sl in (2, 1, 3): a(f'v_add_u32 {v(aW+3*sl+i)}, {sl*SLOT}, {v(aW+i)}')
        tl = [(0, 0), (0, 1024), (1, 0), (1, 1024), (2, 0)]
        wbuf = lambda i: WB[i] if i < 4 else WB[4 + (i & 1)]
        def w2read(i):
            c = i // 4; off = (i % 4) * 10240
            return [f'ds_read_b128 {v(wbuf(i)+4*t,4)}, {v(aW+3*(SL4[c]//SLOT)+ai)} offset:{off+ci}' for t, (ai, ci) in enumerate(tl)]
        for i in range(4): a(w2read(i))
        S_GX = T0; S_GXW = M_C; S_SPM = M_C + 1
        spm = lambda kh, o: sum(1 << i for i in range(27) if ((2*i+kh+26*o) % 54) % 7 == 3 and (2*i+kh+26*o) % 54 < 42)
        XCH4 = 0
        a(f"""s_mul_i32 {s(S_GX)}, {s(S_STILE)}, 54
s_add_u32 {s(S_GX)}, {s(S_GX)}, {s(S_KH)}
s_lshl_b32 {s(S_GX)}, {s(S_GX)}, 10
s_add_u32 {s(S_GX)}, {s(S_GX)}, {OFF_G}
s_mul_i32 {s(T0+6)}, {s(S_ORD)}, {26*1024}
s_add_u32 {s(S_GX)}, {s(S_GX)}, {s(T0+6)}
s_mul_i32 {s(S_GXW)}, {s(S_ORD)}, {54*1024}
s_sub_u32 {s(S_GXW)}, 4096, {s(S_GXW)}
s_lshl_b32 {s(T0+6)}, {s(S_ORD)}, 1
s_add_u32 {s(T0+6)}, {s(T0+6)}, {s(S_KH)}
s_mov_b32 {s(S_SPM)}, {spm(0,0)}
s_cmp_eq_u32 {s(T0+6)}, 1
s_cselect_b32 {s(S_SPM)}, {spm(1,0)}, {s(S_SPM)}
s_cmp_eq_u32 {s(T0+6)}, 2
s_cselect_b32 {s(S_SPM)}, {spm(0,1)}, {s(S_SPM)}
s_cmp_eq_u32 {s(T0+6)}, 3
s_cselect_b32 {s(S_SPM)}, {spm(1,1)}, {s(S_SPM)}
s_mul_i32 {s(T0+6)}, {s(S_W)}, 3072
s_add_u32 {s(T0+6)}, {s(T0+6)}, {SL4[3]}
v_add_u32 {v(axw)}, {s(T0+6)}, {v(vL16)}
s_xor_b32 {s(T0+6)}, {s(S_W)}, 4
s_mul_i32 {s(T0+6)}, {s(T0+6)}, 3072
s_add_u32 {s(T0+6)}, {s(T0+6)}, {SL4[3]}
v_add_u32 {v(axr)}, {s(T0+6)}, {v(vL16)}
s_add_u32 {s(T0+1)}, {s(S_RB)}, {s(S_CM)}
s_add_u32 {s(T0+2)}, {s(S_RB)}, {s(S_CS)}
s_cmp_lg_u32 {s(S_KH)}, 0
s_cselect_b32 {s(T0+2)}, 0x4000000, {s(T0+2)}
s_cselect_b32 {s(T0+3)}, 0, 1.0
s_cselect_b64 vcc, -1, 0
{caddr(S_LB+1, S_RT1, OFF_C3)}
{caddr(T0+5, S_GRP, OFF_C3)}
s_waitcnt lgkmcnt(0)
s_barrier""")
        stamp('drained3')
        wave_block('s3sig', f's_cmp_lg_u32 {s(S_W)}, 7', [ssig(S_LB+1)])
        a(w2read(4))
        a(w2dma(3))
        if OPT.get('sc4early', 1): a(w2dma(4))
        own = [acc4, acc4 + 4, acc4 + 16]; bf = X4
        for i in range(6):
            o = own[i // 2] + 2 * (i & 1)
            a(f'v_lshlrev_b32 {v(o)}, 16, {v(vHR+i)}\nv_and_b32 {v(o+1)}, 0xffff0000, {v(vHR+i)}')
            a(f'v_lshlrev_b32 {v(bf)}, 16, {v(b2r+i)}\nv_and_b32 {v(bf+1)}, 0xffff0000, {v(b2r+i)}')
            a(f'v_pk_add_f32 {v(o,2)}, {v(o,2)}, {v(bf,2)}')
        for i in range(4): a(f'v_mul_f32 {v(acc4+16+i)}, {s(T0+3)}, {v(acc4+16+i)}')
        a(f'''v_and_b32 {v(t1)}, 15, {v(vL)}
v_mul_u32_u24 {v(t1)}, 1280, {v(t1)}
v_bfe_u32 {v(t2)}, {v(vL)}, 4, 1
v_lshl_add_u32 {v(t1)}, {v(t2)}, 5, {v(t1)}
v_lshrrev_b32 {v(t2)}, 5, {v(vL)}
v_lshl_add_u32 {v(t1)}, {v(t2)}, 4, {v(t1)}''')
        wave_block('s3pol', f's_cmp_lg_u32 {s(S_W)}, 7', [gpoll('s3', T0+5)])
        a('s_barrier')
        stamp('sync3')
        issplit = lambda ks: ks % 7 == 3 and ks < 42
        kof = lambda i, kh, o: (2 * i + kh + 26 * o) % 54
        def xload(i):
            x = f'buffer_load_dwordx4 {v(X4+4*(i%NX),4)}, {v(vL16)}, {s(R_WS,4)}, {s(S_GX)} offen offset:{(i&1)*2048} sc1'
            if any(issplit(kof(i, kh, o)) for kh in range(2) for o in range(2 if R4 else 1)):
                y = '\n'.join(f'buffer_load_dwordx2 {v(X4+4*(i%NX)+2*hf,2)}, {v(vL8)}, {s(R_WS,4)}, {s(S_GX)} offen offset:{(i&1)*2048+512*hf} sc1' for hf in range(2))
                x = f's_bitcmp1_b32 {s(S_SPM)}, {i}\ns_cbranch_scc0 L_xn{i}\n{y}\ns_branch L_xj{i}\nL_xn{i}:\n{x}\nL_xj{i}:'
            if i & 1: x += f'\ns_add_u32 {s(S_GX)}, {s(S_GX)}, {s(S_GXW) if i == 13 else 4096}'
            return x
        NP = OPT.get('np', 6)
        nxt = [0]
        def xl(k):
            L = []
            for _ in range(k):
                if nxt[0] < 27: L.append(xload(nxt[0])); nxt[0] += 1
            return L
        a(xl(NP))
        PD = []
        for i in range(27):
            F = []
            nx = i + 1
            if nx >= 5 and nx < 27:
                if nx % 4 == 0 and nx > 8:
                    c = nx // 4
                    a(stamp_txt(f'sc{c}a') + f';@wait sc{c}\ns_barrier\n' + stamp_txt(f'sc{c}b'))
                    if c in (3, 4): PD += w2dma(c + 2)
                if nx == OPT.get('sc4at', 6) and not OPT.get('sc4early', 1): PD += w2dma(4)
                k = OPT.get('wper', 5); F += PD[:k]; PD = PD[k:]
                F = w2read(nx) + F
            order = range(5) if i < 26 else (2, 3, 4, 0, 1)
            M = [f'{MF} {v(acc4+4*t,4)}, {v(wbuf(i)+4*t,4)}, {v(X4+4*(i%NX),4)}, {v(acc4+4*t,4) if (i or t in (0, 1, 4)) else 0}' for t in order]
            a(spread(M, F))
            a(xl(min(OPT.get('xper', 2), i + 1 + NX - nxt[0])))
        stamp('p4mm')
        rcv = WB[0]; bf = WB[2]
        for i in range(3): a(f'ds_write_b128 {v(axw)}, {v(acc4+8+4*i,4)} offset:{XCH4+1024*i}')
        a('s_waitcnt lgkmcnt(0)\ns_barrier')
        for i in range(3): a(f'ds_read_b128 {v(rcv+4*i,4)}, {v(axr)} offset:{XCH4+1024*i}')
        for i in range(3):
            for hh in (0, 2):
                a(f'v_pk_add_f32 {v(own[i]+hh,2)}, {v(own[i]+hh,2)}, {v(rcv+4*i+hh,2)}')
            for hh in range(2):
                a(f'v_cvt_pk_bf16_f32 {v(bf+2*i+hh)}, {v(own[i]+2*hh)}, {v(own[i]+2*hh+1)}')
            if i == 1:
                a(f'v_permlane16_swap_b32 {v(bf)}, {v(bf+2)}\nv_permlane16_swap_b32 {v(bf+1)}, {v(bf+3)}')
                a(f'buffer_store_dwordx4 {v(bf,4)}, {v(t1)}, {s(R_OUT,4)}, {s(T0+1)} offen\ns_cbranch_vccnz L_fin')
        a(f'buffer_store_dwordx2 {v(bf+4,2)}, {v(vRO)}, {s(R_OUT,4)}, {s(T0+2)} offen\nL_fin:')
        stamp('end')
    if ts:
        a(f'''s_lshl_b32 {s(S_TS)}, s2, 3
s_add_u32 {s(S_TS)}, {s(S_TS)}, {s(S_W)}
s_lshl_b32 {s(S_TS)}, {s(S_TS)}, 8
s_add_u32 {s(S_TS)}, {s(S_TS)}, {OFF_TS}
v_lshlrev_b32 {v(t7)}, 2, {v(vL)}
buffer_store_dword v0, {v(t7)}, {s(R_WS,4)}, {s(S_TS)} offen''')
    a('L_end:\ns_endpgm\n;@clearv\n;@clearl')
    for blk in ool:
        a(blk); a(';@clearv\n;@clearl')
    body = a.finalize()
    return body, va.hi, names

def wrap(body, listmode=False):
    ref = open('cdna_kernels/%s.s.ref' % NAME).read().split('\n')
    hdr = [l for l in ref if l.startswith(';') and '@launch' not in l]
    kn = NAME + '_kernel'
    nv = 256
    launch = (f'; @launch kernel={kn} grid=(256,1,1) block=(512,1,1) lds=163840' if listmode
              else '; @launch grid=(256,1,1) block=(512,1,1) lds=163840')
    return '\n'.join(hdr) + '\n' + launch + '\n' + f'''.amdgcn_target "amdgcn-amd-amdhsa--gfx950"
.text
.globl {kn}
.p2align 8
.type {kn},@function
{kn}:
{body}.section .rodata,"a"
.p2align 6
.amdhsa_kernel {kn}
  .amdhsa_next_free_vgpr {nv}
  .amdhsa_next_free_sgpr 102
  .amdhsa_accum_offset {nv}
  .amdhsa_group_segment_fixed_size 0
  .amdhsa_kernarg_size 88
  .amdhsa_user_sgpr_count 2
  .amdhsa_user_sgpr_kernarg_segment_ptr 1
  .amdhsa_system_sgpr_workgroup_id_x 1
.end_amdhsa_kernel
'''

if __name__ == '__main__':
    import argparse
    ap = argparse.ArgumentParser()
    ap.add_argument('--stop', type=int, default=4)
    ap.add_argument('--ts', action='store_true')
    ap.add_argument('--list', action='store_true')
    ap.add_argument('--opt', default='')
    ap.add_argument('-o', default='cdna_kernels/%s.s' % NAME)
    args = ap.parse_args()
    for kv in filter(None, args.opt.split(',')):
        k_, v_ = kv.split('='); OPT[k_] = int(v_)
    body, hi, names = gen(args.stop, args.ts)
    import subprocess, re, tempfile, os
    with tempfile.TemporaryDirectory() as td:
        open(td + '/a.s', 'w').write(wrap(body.replace('CODE_BYTES', '0x7000').replace('KERNEL_START', NAME + '_kernel'), args.list))
        subprocess.run(['clang', '-x', 'assembler', '-target', 'amdgcn-amd-amdhsa', '-mcpu=gfx950', '-c', td + '/a.s', '-o', td + '/a.o'], check=True)
        h = subprocess.run(['llvm-objdump', '-h', td + '/a.o'], capture_output=True, text=True).stdout
        size = int(re.search(r'\.text\s+([0-9a-f]+)', h).group(1), 16)
    print('code bytes', size)
    txt = wrap(body.replace('CODE_BYTES', str(size - 64)).replace('KERNEL_START', NAME + '_kernel'), args.list)
    if names: txt += '; stamps: ' + ' '.join(names) + '\n'
    open(args.o, 'w').write(txt)
    print('vgpr hi', hi, 'lines', body.count('\n'), names)
```
